```python
import torch

def _softmax(x, axis=-1):
    return torch.softmax(x, dim=axis)
def _gelu(x):
    return torch.nn.functional.gelu(x, approximate="tanh")
def _silu(x):
    return torch.nn.functional.silu(x)
def _sigmoid(x):
    return torch.sigmoid(x)
def _layernorm(x, axis=-1, eps=1e-5):
    m = x.mean(dim=axis, keepdim=True)
    v = x.var(dim=axis, keepdim=True, unbiased=False)
    return (x - m) / torch.sqrt(v + eps)
def _scatter_add(tgt, idx, src, axis=0):
    return tgt.clone().index_add_(axis, idx, src)
def _segment_sum(src, seg, n):
    out = torch.zeros((n,) + src.shape[1:], dtype=src.dtype)
    return out.index_add_(0, seg, src)
def _pad(x, pw):
    flat = tuple(v for pair in reversed(pw) for v in pair)
    return torch.nn.functional.pad(x, flat)

kernel_name = 'gated_mix__sliding_local_dilated__compressed_kv_cla__prompt'

def setup_inputs():

    _w = (lambda a: (lambda t: t.to(torch.bfloat16) if t.is_floating_point() else t)(torch.as_tensor(a)))
    def _A_setup():
        B, S, D = 1, 2048, 576
        return {
            "x": _w((lambda *s: torch.randn(*s, dtype=torch.bfloat16) * 0.05)(B, S, D)),
            "wqkv": _w((lambda *s: torch.randn(*s, dtype=torch.bfloat16) * 1.6)(D, 3 * D)),
            "wo": _w((lambda *s: torch.randn(*s, dtype=torch.bfloat16) * 0.05)(D, D)),
        }
    _A_in = _A_setup()

    def _B_setup():
        B, H, Sq, Sk, D, M = 1, 32, 2048, 2048, 128, 576
        Dc = 4 * D
        return {
            "x": _w((lambda *s: torch.randn(*s, dtype=torch.bfloat16) * 0.05)(B, Sq, M)),
            "c_kv": _w((lambda *s: torch.randn(*s, dtype=torch.bfloat16) * 1.6)(B, Sk, Dc)),
            "w_q": _w((lambda *s: torch.randn(*s, dtype=torch.bfloat16) * 6.4)(M, H, D) * (M ** -0.5)),
            "w_uk": _w((lambda *s: torch.randn(*s, dtype=torch.bfloat16) * 6.4)(Dc, H, D) * (Dc ** -0.5)),
            "w_uv": _w((lambda *s: torch.randn(*s, dtype=torch.bfloat16) * 1.6)(Dc, H, D) * (Dc ** -0.5)),
            "w_o": _w((lambda *s: torch.randn(*s, dtype=torch.bfloat16) * 1.6)(H, D, M) * ((H * D) ** -0.5)),
        }
    _B_in = _B_setup()

    return {
        "A_x": _A_in["x"],
        "A_wqkv": _A_in["wqkv"],
        "A_wo": _A_in["wo"],
        "B_x": _B_in["x"],
        "B_c_kv": _B_in["c_kv"],
        "B_w_q": _B_in["w_q"],
        "B_w_uk": _B_in["w_uk"],
        "B_w_uv": _B_in["w_uv"],
        "B_w_o": _B_in["w_o"],
        "gate_w": _w((lambda *s: torch.randn(*s, dtype=torch.bfloat16) * 0.05)(576) * 16.0),
    }

def reference(A_x, A_wqkv, A_wo, B_x, B_c_kv, B_w_q, B_w_uk, B_w_uv, B_w_o, gate_w):
    def _A_ref(x, wqkv, wo):
        B, S, D = x.shape
        H = 32; Dh = D // H
        W, dil = 8, 2
        qkv = (lambda x, *d: x.permute(*d))((x @ wqkv).reshape(B, S, 3, H, Dh), 2, 0, 3, 1, 4)
        q, k, v = qkv[0], qkv[1], qkv[2]
        scale = Dh ** -0.5
        pos = torch.arange(S)
        off = torch.arange(W) * dil
        idx = pos[:, None] - off[None, :]
        mask = idx >= 0
        idx_c = torch.where(mask, idx, 0).reshape(-1)
        kg = k[:, :, idx_c, :].reshape(B, H, S, W, Dh)
        vg = v[:, :, idx_c, :].reshape(B, H, S, W, Dh)
        logits = torch.einsum("bhsd,bhswd->bhsw", q, kg) * scale
        logits = torch.where(mask[None, None, :, :], logits, -1e9)
        attn = _softmax(logits, axis=-1)
        o = torch.einsum("bhsw,bhswd->bhsd", attn, vg)
        return (lambda x, *d: x.permute(*d))(o, 0, 2, 1, 3).reshape(B, S, D) @ wo

    def _B_ref(x, c_kv, w_q, w_uk, w_uv, w_o):
        B, Sq, M = x.shape[0], x.shape[1], x.shape[2]
        Sk = c_kv.shape[1]
        H, D = w_q.shape[1], w_q.shape[2]
        q = torch.einsum("bqm,mhd->bhqd", x, w_q)
        k = torch.einsum("bkc,chd->bhkd", c_kv, w_uk)
        v = torch.einsum("bkc,chd->bhkd", c_kv, w_uv)
        scores = torch.einsum("bhqd,bhkd->bhqk", q, k) * (D ** -0.5)
        off = Sk - Sq
        qi = torch.arange(Sq)[:, None]
        kj = torch.arange(Sk)[None, :]
        cmask = kj <= (qi + off)
        scores = torch.where(cmask[None, None], scores, -1e9)
        p = _softmax(scores, axis=-1)
        ctx = torch.einsum("bhqk,bhkd->bhqd", p, v)
        return torch.einsum("bhqd,hdm->bqm", ctx, w_o)

    x = A_x
    g = _sigmoid((x * gate_w).sum(-1, keepdims=True))
    a = _A_ref(x, A_wqkv, A_wo)
    b = _B_ref(x, B_c_kv, B_w_q, B_w_uk, B_w_uv, B_w_o)
    return g * a + (1 - g) * b
```

```python
import re

def vr(b, n=1, p="v"):
    return f"{p}{b}" if n == 1 else f"{p}[{b}:{b+n-1}]"

class R:
    def __init__(s, p, b): s.p = p; s.b = b
    def __call__(s, n=1, o=0): return vr(s.b + o, n, s.p)
    def __add__(s, o): return R(s.p, s.b + o)
    def __repr__(s): return f"{s.p}{s.b}"

def V(b): return R("v", b)
def A(b): return R("a", b)

def mfma(d, a, b, c=None):
    cs = d(4) if c is None else (c if isinstance(c, str) else c(4))
    return f"v_mfma_f32_16x16x32_bf16 {d(4)}, {a(4)}, {b(4)}, {cs}"

_reg = re.compile(r"\b([vas])\[(\d+):(\d+)\]|\b([vas])(\d+)\b|\b(vcc|exec|m0|scc)\b")

def regs_of(op):
    out = []
    for m in _reg.finditer(op):
        if m.group(1): out += [(m.group(1), i) for i in range(int(m.group(2)), int(m.group(3)) + 1)]
        elif m.group(4): out.append((m.group(4), int(m.group(5))))
        else: out.append((m.group(6), 0))
    return out

TRANS = ("v_exp_f32", "v_log_f32", "v_rcp_f32", "v_rsq_f32", "v_sqrt_f32", "v_sin_f32", "v_cos_f32")

class I:
    def __init__(s, text):
        s.text = text
        t = text.split(";")[0].strip()
        s.skip = (not t) or t.endswith(":") or t.startswith(".")
        s.kind = None; s.rd = set(); s.wr = set(); s.states = 1
        if s.skip: return
        parts = t.split(None, 1)
        op = s.op = parts[0]
        ops = [o.strip() for o in parts[1].split(",")] if len(parts) > 1 else []
        s.ops = ops
        rs = [regs_of(o) for o in ops]
        allr = lambda l: set(r for x in l for r in x)
        if op.startswith("v_mfma"):
            s.kind = "mfma"; s.wr = set(rs[0]); s.ab = allr(rs[1:3]); s.c = set(rs[3]); s.rd = s.ab | s.c
        elif op.startswith("ds_read") or op.startswith("ds_bpermute") or op.startswith("ds_swizzle"):
            s.kind = "dsr"; s.wr = set(rs[0]); s.rd = allr(rs[1:])
        elif op.startswith("ds_"):
            s.kind = "dsw"; s.rd = allr(rs)
        elif op.startswith("buffer_load") or op.startswith("global_load"):
            if re.search(r"\blds\b", t): s.kind = "dma"; s.rd = allr(rs) | {("m0", 0)}
            else:
                s.kind = "vml"; s.wr = set(rs[0]); s.rd = allr(rs[1:])
                if "d16" in op: s.rd |= set()
        elif op.startswith("buffer_store") or op.startswith("buffer_atomic"):
            s.kind = "vms"; s.rd = allr(rs); s.data = set(rs[0])
            if op.startswith("buffer_atomic") and "sc0" in t: s.kind = "vml"; s.wr = set(rs[0])
        elif op.startswith("buffer_") : s.kind = "vmo"
        elif op == "s_waitcnt": s.kind = "wait"
        elif op == "s_nop": s.kind = "nop"; s.states = int(ops[0]) + 1
        elif op.startswith("s_load") or op in ("s_memtime", "s_memrealtime"):
            s.kind = "smem"; s.wr = set(rs[0]); s.rd = allr(rs[1:])
        elif op.startswith("s_"):
            s.kind = "salu"
            if op.startswith("s_cmp") or op.startswith("s_cbranch") or op in ("s_branch", "s_barrier", "s_endpgm", "s_sleep", "s_setprio", "s_setpc_b64", "s_bitcmp0_b32", "s_bitcmp1_b32"):
                s.rd = allr(rs)
            else:
                s.wr = set(rs[0]); s.rd = allr(rs[1:])
                if "saveexec" in op: s.wr.add(("exec", 0))
        elif op.startswith("v_"):
            s.kind = "valu"
            s.trans = any(op.startswith(x) for x in TRANS)
            s.wr = set(rs[0]); s.rd = allr(rs[1:])
            if op.startswith(("v_add_co", "v_sub_co", "v_addc_co")): s.wr |= set(rs[1]); s.rd = allr(rs[2:])
            if op.startswith(("v_fmac", "v_dot2c", "v_writelane")): s.rd |= set(rs[0])
            if op.startswith("v_permlane") and "swap" in op: s.wr |= set(rs[1]); s.rd |= set(rs[0])
            if op.startswith("v_cmpx"): s.wr.add(("exec", 0))
            s.dpp = ("row_" in t) or ("quad_perm" in t) or ("wave_" in t)
            if s.dpp: s.rd |= set(rs[0])
        else:
            raise ValueError("unknown instr: " + text)

def verify(lines, name="", lgkm0=None):
    ins = [I(l) for l in lines]
    ins = [i for i in ins if not i.skip]
    probs = []
    lq = []
    vq = []
    smem = set()
    def P(k, msg): probs.append(f"{name}[{k}] {ins[k].text.strip()}  :: {msg}")
    for k, i in enumerate(ins):
        touch = i.rd | i.wr
        if i.kind == "wait":
            m = re.search(r"lgkmcnt\((\d+)\)", i.text)
            if m:
                n = int(m.group(1))
                if n == 0: smem = set()
                elif smem: P(k, "counted lgkmcnt with SMEM outstanding")
                while len(lq) > n: lq.pop(0)
            m = re.search(r"vmcnt\((\d+)\)", i.text)
            if m:
                n = int(m.group(1))
                while len(vq) > n: vq.pop(0)
            continue
        for d in lq:
            if d & touch and not (i.kind == "dsr" and not (d & i.rd)): P(k, f"touches pending LDS dest {sorted(d & touch)[:2]}")
        for d in vq:
            if d & touch and not (i.kind == "vml" and not (d & i.rd)): P(k, f"touches pending VMEM dest {sorted(d & touch)[:2]}")
        if smem & touch: P(k, "touches pending SMEM dest")
        if i.kind in ("dsr", "dsw"):
            lq.append(set(i.wr))
            if len(lq) > 15 + 16: pass
        if i.kind in ("vml", "vms", "dma", "vmo"): vq.append(set(i.wr))
        if i.kind == "smem": smem |= i.wr
        dist = 0
        for j in range(k - 1, max(-1, k - 24), -1):
            p = ins[j]
            need = 0
            if p.kind == "mfma":
                if i.kind == "mfma":
                    if p.wr & i.ab: need = 8
                    elif (p.wr & i.c) and p.wr != i.c: need = 6
                    elif (p.wr & i.wr) and not (p.wr & i.c): need = 0
                elif i.kind in ("valu", "dsr", "dsw", "vml", "vms", "dma"):
                    if p.wr & touch: need = 8
                    elif i.kind == "valu" and (p.c & i.wr): need = 3
            elif p.kind == "valu":
                vw = set(r for r in p.wr if r[0] in "va" and len(r[0]) == 1)
                sw = p.wr - vw
                if i.kind == "mfma":
                    if vw & i.rd: need = 2
                    if ("exec", 0) in p.wr: need = max(need, 4)
                if i.kind == "valu":
                    if p.trans and not i.trans and (p.wr & i.rd): need = max(need, 1)
                    if i.op.startswith(("v_readfirstlane", "v_readlane")) and (vw & i.rd): need = max(need, 1)
                    if i.op.startswith("v_permlane") and (vw & i.rd): need = max(need, 2)
                    if i.dpp and (vw & i.rd): need = max(need, 2)
                    if sw & i.rd: need = max(need, 2)
                    if p.op.startswith("v_dot") and (p.wr & touch) and not (p.op == i.op and not (p.wr & set(r for o in i.ops[1:3] for r in regs_of(o)))): need = max(need, 3)
                if i.kind in ("vml", "vms", "dma") and (sw & i.rd): need = max(need, 5)
            elif p.kind == "salu":
                if ("m0", 0) in p.wr and i.kind == "dma": need = 1
            elif p.kind == "vms":
                if len(p.data) >= 3 and (p.data & i.wr): need = 2 if i.kind == "valu" else 1
            if need > dist: P(k, f"needs {need} wait states after [{p.text.strip()}], has {dist}")
            dist += p.states
            if dist >= 12: break
    return probs

HEADER = '''.amdgcn_target "amdgcn-amd-amdhsa--gfx950"
.text
'''
def kernel_open(name):
    return [f".globl {name}", ".p2align 8", f".type {name},@function", f"{name}:"]
def kernel_desc(name, nv=512, ao=256, ns=102):
    return f""".amdhsa_kernel {name}
  .amdhsa_next_free_vgpr {nv}
  .amdhsa_next_free_sgpr {ns}
  .amdhsa_accum_offset {ao}
  .amdhsa_group_segment_fixed_size 0
  .amdhsa_kernarg_size 104
  .amdhsa_user_sgpr_count 2
  .amdhsa_user_sgpr_kernarg_segment_ptr 1
  .amdhsa_system_sgpr_workgroup_id_x 1
.end_amdhsa_kernel
"""

def weave(mf, fill):
    out = []
    for i, m in enumerate(mf):
        out.append(m)
        out += fill.get(i, [])
    return out
```

```python
import sys, math, struct
sys.path.insert(0, "gen")
from asmlib import *

def f2u(x): return struct.unpack("<I", struct.pack("<f", x))[0]

HS = 65 * 16384
WS_KV = 0
WS_WA = 0x2200000
WS_WO = 0x2500000
WO_CT = 73 * 9216
WS_QA = 0x2B00000
WS_Z  = 0x3400000
Z_RT = 146 * 4096
WS_SIZE = 268435456
OOB = 0x7FFF0000
NEG = 0xF149F2CA
LDS_BYTES = 163840

sWave, sH, sJ, sSlot, sX = "s3", "s4", "s5", "s6", "s7"
pX, pWQKV, pWO, pC, pWQ, pWUK, pWUV, pWOB, pG, pOUT, pDBG, pWS = 16, 18, 20, 24, 26, 28, 30, 32, 34, 36, 38, 40
rA, rW, rWS, rO = 44, 48, 52, 56
def srd(r): return f"s[{r}:{r+3}]"
def mk_srd(r, p, size):
    return [f"s_mov_b32 s{r}, s{p}", f"s_mov_b32 s{r+1}, s{p+1}", f"s_mov_b32 s{r+2}, {size}", f"s_mov_b32 s{r+3}, 0x20000"]

vLane, vN, vG, vL16 = "v1", "v2", "v3", "v4"

def prologue(tag):
    L = []
    a = L.append
    a("s_cmp_ge_u32 s2, 256")
    a(f"s_cbranch_scc1 {tag}_END")
    a("s_load_dwordx16 s[16:31], s[0:1], 0")
    a("s_load_dwordx8 s[32:39], s[0:1], 64")
    a("s_load_dwordx2 s[40:41], s[0:1], 96")
    a("v_lshrrev_b32 v5, 6, v0")
    a(f"v_and_b32 {vLane}, 63, v0")
    a(f"v_readfirstlane_b32 {sWave}, v5")
    a(f"v_and_b32 {vN}, 15, v0")
    a(f"v_lshrrev_b32 {vG}, 4, {vLane}")
    a(f"v_lshlrev_b32 {vL16}, 4, {vLane}")
    a(f"s_and_b32 {sX}, s2, 7")
    a(f"s_lshr_b32 {sSlot}, s2, 3")
    a(f"s_and_b32 {sH}, {sSlot}, 3")
    a(f"s_lshl_b32 s8, {sX}, 2")
    a(f"s_add_u32 {sH}, {sH}, s8")
    a(f"s_lshr_b32 {sJ}, {sSlot}, 2")
    a("s_waitcnt lgkmcnt(0)")
    L += mk_srd(rWS, pWS, WS_SIZE)
    return L

def gather8(dst, voff, rs, soff_base, deltas, rowbytes, st="s10"):
    L = []
    for jj in range(8):
        L.append(f"s_add_u32 {st}, {soff_base}, {deltas[jj]*rowbytes}")
        op = "buffer_load_ushort"
        L.append(f"{op} v{dst + jj//2 + 8*(jj & 1)}, {voff}, {srd(rs)}, {st} offen")
    return L

def k0():
    L = prologue("K0"); a = L.append
    L += mk_srd(rA, pWQKV, 576 * 1728 * 2)
    L += mk_srd(rO, pG, 576 * 2)
    a(f"v_lshrrev_b32 v5, 2, {vN}")
    a(f"v_and_b32 v6, 3, {vN}")
    a(f"s_mul_i32 s8, {sH}, 18")
    a(f"s_lshl_b32 s9, {sWave}, 2")
    a("s_add_u32 s9, s9, s8")
    a("v_mul_u32_u24 v7, 576, v5")
    a("v_add3_u32 v7, v7, v6, s9")
    a(f"s_lshl_b32 s9, {sWave}, 2")
    a("v_add_u32 v8, s9, v6")
    a("v_lshrrev_b32 v9, 1, v8")
    a("v_mul_u32_u24 v9, 576, v9")
    a("v_and_b32 v10, 1, v8")
    a("s_add_u32 s8, s8, 16")
    a("v_add3_u32 v9, v9, v10, s8")
    a("v_cmp_eq_u32 vcc, 3, v5")
    a("s_nop 1")
    a("v_cndmask_b32 v7, v7, v9, vcc")
    a("v_cmp_lt_u32 s[12:13], 5, v8")
    a("s_nop 1")
    a("s_and_b64 s[12:13], s[12:13], vcc")
    a("v_cmp_eq_u32 s[14:15], 6, v8")
    a("s_nop 1")
    a("s_and_b64 s[14:15], s[14:15], vcc")
    a(f"v_mul_u32_u24 v9, {8*3456}, {vG}")
    a("v_lshl_add_u32 v7, v7, 1, v9")
    a(f"v_mov_b32 v9, {OOB}")
    a("v_cndmask_b32 v7, v7, v9, s[12:13]")
    a(f"v_lshlrev_b32 v8, 4, {vG}")
    a("v_cndmask_b32 v8, v9, v8, s[14:15]")
    for rnd in range(3):
        a(f"s_add_u32 s8, {sJ}, {8*rnd}")
        if rnd == 2:
            a("s_cmp_ge_u32 s8, 18"); a("s_cbranch_scc1 K0_WO")
        a(f"s_mul_i32 s9, s8, {32*3456}")
        L += gather8(12, "v7", rA, "s9", list(range(8)), 3456)
        a("s_lshl_b32 s9, s8, 6")
        a(f"buffer_load_dwordx4 v[16:19], v8, {srd(rO)}, s9 offen")
        a(f"s_mul_i32 s9, {sH}, 72"); a("s_lshl_b32 s8, s8, 2"); a("s_add_u32 s9, s9, s8"); a(f"s_add_u32 s9, s9, {sWave}")
        a("s_lshl_b32 s9, s9, 10"); a(f"s_add_u32 s9, s9, {WS_WA}")
        a("s_waitcnt vmcnt(0)")
        for q in range(4): a(f"v_lshl_or_b32 v{12+q}, v{20+q}, 16, v{12+q}")
        for q in range(4): a(f"v_or_b32 v{12+q}, v{12+q}, v{16+q}")
        a(f"buffer_store_dwordx4 v[12:15], {vL16}, {srd(rWS)}, s9 offen")
        a("s_nop 1")
    a("K0_WO:")
    L += mk_srd(rA, pWOB, 4096 * 576 * 2)
    L += mk_srd(rW, pWO, 576 * 576 * 2)
    parts = [(0, rA, [16*(j >> 2) + (j & 3) for j in range(8)]), (1, rA, [16*(j >> 2) + (j & 3) for j in range(8)]),
             (2, rW, list(range(8))), (3, rW, [18*(j >> 1) + (j & 1) for j in range(8)])]
    for part, rs, deltas in parts:
        if part == 2:
            a(f"s_cmp_ge_u32 {sSlot}, 8"); a("s_cbranch_scc1 K0_P3")
        if part == 3:
            a("s_branch K0_END")
            a("K0_P3:")
            a(f"s_cmp_lg_u32 {sSlot}, 8"); a("s_cbranch_scc1 K0_END")
        a(f"s_add_u32 s8, {sSlot}, {32*min(part,2)}")
        for ii in range(3):
            if ii == 2:
                a(f"s_cmp_lg_u32 {sWave}, 0"); a(f"s_cbranch_scc1 K0_S{part}")
            a("s_lshl_b32 s9, s8, 1")
            a(f"s_mul_i32 s11, {sX}, 72")
            if ii < 2:
                a(f"s_add_u32 s9, s9, {ii}"); a("v_mov_b32 v5, s9")
                a(f"s_lshl_b32 s12, {sWave}, 4"); a("s_add_u32 s11, s11, s12"); a(f"v_add_u32 v6, s11, {vN}")
            else:
                a(f"v_lshrrev_b32 v5, 3, {vN}"); a("v_add_u32 v5, s9, v5")
                a(f"v_and_b32 v6, 7, {vN}"); a("s_add_u32 s11, s11, 64"); a("v_add_u32 v6, s11, v6")
            if part < 2:
                a("v_lshlrev_b32 v5, 5, v5"); a(f"v_lshl_add_u32 v5, {vG}, 2, v5")
            elif part == 2:
                a("v_subrev_u32 v5, 128, v5"); a("v_lshlrev_b32 v5, 1, v5"); a(f"v_lshrrev_b32 v7, 1, {vG}"); a("v_add_u32 v5, v5, v7")
                a("v_mul_u32_u24 v5, 18, v5"); a(f"v_and_b32 v7, 1, {vG}"); a("v_lshl_add_u32 v5, v7, 3, v5")
            else:
                a("v_subrev_u32 v5, 144, v5"); a("v_lshlrev_b32 v5, 4, v5"); a(f"v_lshl_add_u32 v5, {vG}, 2, v5")
                a("v_mul_u32_u24 v5, 18, v5"); a("v_add_u32 v5, 16, v5")
            a("v_mul_u32_u24 v5, 1152, v5")
            a("v_lshl_add_u32 v7, v6, 1, v5")
            L += gather8(12, "v7", rs, "0", deltas, 1152)
            a(f"s_mul_i32 s9, {sX}, 73"); a("s_add_u32 s9, s9, s8"); a("s_mul_i32 s9, s9, 9")
            if ii < 2: a(f"s_add_u32 s9, s9, {sWave}"); a(f"s_add_u32 s9, s9, {4*ii}")
            else: a("s_add_u32 s9, s9, 8")
            a("s_lshl_b32 s9, s9, 10"); a(f"s_add_u32 s9, s9, {WS_WO}")
            a("s_waitcnt vmcnt(0)")
            for q in range(4): a(f"v_lshl_or_b32 v{12+q}, v{20+q}, 16, v{12+q}")
            a(f"buffer_store_dwordx4 v[12:15], {vL16}, {srd(rWS)}, s9 offen")
            a("s_nop 1")
        a(f"K0_S{part}:")
    a("K0_END:")
    a("s_endpgm")
    return L, [L]

CB = 65536
vCe, vCo, vWe, vWo = "v5", "v6", "v7", "v8"
vC0, vC1 = "v9", "v10"
vWp = ["v11", "v12", "v13", "v14"]
vLT = "v15"
sCg, sCl, sWg, sWl, sT, sCnt, sD0, sD1, sCg2, sAg = "s60", "s61", "s62", "s63", "s64", "s65", "s66", "s67", "s68", "s69"
sR0, sR1 = "s70", "s71"

def gemm_addr_setup(rowbytes, rowbase_v, wcol_s):
    L = []; a = L.append
    a(f"v_lshrrev_b32 v16, 3, {vLane}")
    a(f"v_and_b32 v17, 7, {vLane}")
    a(f"v_xor_b32 v18, v17, {vG}")
    a(f"v_mul_u32_u24 v19, {rowbytes}, v16")
    a(f"v_lshl_add_u32 {vCe}, v18, 4, v19")
    a("v_xor_b32 v18, 4, v18")
    a(f"v_lshl_add_u32 {vCo}, v18, 4, v19")
    a(f"v_add_u32 {vCo}, {8*rowbytes - 1024}, {vCo}")
    a(f"v_and_b32 v18, 1, {vG}")
    a("v_lshlrev_b32 v18, 1, v18")
    a("v_xor_b32 v18, v17, v18")
    a("v_lshlrev_b32 v19, 13, v16")
    a(f"v_lshl_add_u32 {vWe}, v18, 4, v19")
    a("v_xor_b32 v18, 4, v18")
    a(f"v_lshl_add_u32 {vWo}, v18, 4, v19")
    a(f"v_add_u32 {vWo}, {65536 - 1024}, {vWo}")
    a(f"v_lshrrev_b32 v16, 1, {vN}")
    a(f"v_xor_b32 v16, v16, {vG}")
    a(f"v_add_u32 v17, {rowbase_v}, {vN}")
    a("v_lshlrev_b32 v17, 7, v17")
    a(f"v_add_u32 v17, {CB}, v17")
    a(f"v_lshl_add_u32 {vC0}, v16, 4, v17")
    a(f"v_xor_b32 {vC1}, 64, {vC0}")
    a(f"v_bfe_u32 v16, {vLane}, 2, 2")
    a(f"v_lshl_add_u32 v17, {vG}, 3, v16")
    a("v_lshlrev_b32 v17, 7, v17")
    a(f"v_and_b32 v18, 3, {vLane}")
    a("v_lshl_add_u32 v17, v18, 3, v17")
    if wcol_s: a(f"v_add_u32 v17, {wcol_s}, v17")
    a("v_lshrrev_b32 v16, 1, v16")
    a(f"v_and_b32 v18, 1, {vG}")
    a("v_lshl_add_u32 v16, v18, 1, v16")
    for p in range(4):
        a(f"v_xor_b32 v18, {p}, v16")
        a(f"v_lshl_add_u32 {vWp[p]}, v18, 5, v17")
    a(f"v_mov_b32 {vLT}, {vL16}")
    a("s_mov_b32 s92, 0x8000")
    return L

def dma_pair(ve, vo, rs, lds_s, lds_imm, g_s, g_imm):
    return ([f"s_add_u32 m0, {lds_s}, {lds_imm}", f"s_add_u32 {sT}, {g_s}, {g_imm}"],
            [f"buffer_load_dwordx4 {ve}, {srd(rs)}, {sT} offen lds", f"buffer_load_dwordx4 {vo}, {srd(rs)}, {sT} offen offset:1024 lds"])

def place(fill, items, start, step):
    g = start
    for it in items:
        while g in fill and fill[g]: g += 1
        fill[g] = it if isinstance(it, list) else [it]
        g += step
    return g

def kstep(mf, reads, dmas, post, vm, rstep):
    n = len(mf)
    fill = {0: [f"s_waitcnt vmcnt({vm})"], 1: ["s_barrier"], n - 1: ["s_waitcnt lgkmcnt(0)"]}
    nd = sum(len(d[1]) for d in dmas)
    step = (n - 6) // nd
    g = 3
    for salus, ds_ in dmas:
        fill[g - 1] = list(salus)
        for d in ds_:
            fill[g] = [d]; g += step
    e = place(fill, reads, 2, rstep)
    assert e < n - 6, e
    e = place(fill, post, e, 1)
    assert e <= n - 1, e
    return weave(mf, fill)

def flat_dmas(dmas):
    L = []
    for salus, ds_ in dmas:
        L += salus + ds_
    return L

def acc1(i): return V(32 + 4*i) if i < 56 else A(4*(i - 56))
def k1():
    L = prologue("K1"); a = L.append
    L += mk_srd(rA, pC, 2048 * 512 * 2)
    a(f"s_cmp_lt_u32 {sWave}, 2")
    a(f"s_cselect_b32 s{rW}, s{pWUK}, s{pWUV}")
    a(f"s_cselect_b32 s{rW+1}, s{pWUK+1}, s{pWUV+1}")
    a(f"s_mov_b32 s{rW+2}, {512*4096*2}"); a(f"s_mov_b32 s{rW+3}, 0x20000")
    a(f"s_lshr_b32 s8, {sWave}, 1"); a("s_lshl_b32 s8, s8, 7")
    a(f"s_and_b32 s9, {sWave}, 1"); a("s_lshl_b32 s10, s9, 12")
    L += gemm_addr_setup(1024, "s8", "s10")
    a(f"s_lshl_b32 {sCg}, {sJ}, 18"); a(f"s_lshl_b32 s11, {sWave}, 16"); a(f"s_add_u32 {sCg}, {sCg}, s11")
    a(f"s_lshl_b32 {sCl}, {sWave}, 13"); a(f"s_add_u32 {sCl}, {sCl}, {CB}")
    a(f"s_lshl_b32 {sWg}, {sH}, 8"); a("s_lshl_b32 s11, s9, 7"); a(f"s_add_u32 {sWg}, {sWg}, s11")
    a(f"s_lshl_b32 {sWl}, {sWave}, 12")
    cdma = lambda half, lo=0, go=0: [dma_pair(vCe, vCo, rA, sCl, lo + half*4096 + q*2048, sCg, go + half*32768 + q*16384) for q in range(2)]
    wdma = lambda lo=0, go=0: [dma_pair(vWe, vWo, rW, sWl, lo + q*2048, sWg, go + q*131072) for q in range(2)]
    KS = 32 * 8192
    L += flat_dmas(cdma(0) + wdma() + cdma(1) + wdma(16384, KS) + cdma(0, 32768, 128) + wdma(32768, 2*KS) + cdma(1, 32768, 128)
                   + wdma(49152, 3*KS) + cdma(0, 65536, 256))
    a(f"s_add_u32 {sCg}, {sCg}, 256"); a(f"s_add_u32 {sCl}, {sCl}, 65536"); a(f"s_add_u32 {sWg}, {sWg}, {4*KS}")
    for i in range(64):
        r = acc1(i)
        for q in range(4):
            a(f"v_mov_b32 v{r.b+q}, 0" if r.p == "v" else f"v_accvgpr_write_b32 a{r.b+q}, 0")
    fC = lambda b, i: A(64 + 64*b + 4*i)
    fW = lambda b, i: A(96 + 64*b + 4*i)
    def reads(b, vc, wimm):
        R_ = []
        for i in range(8):
            m, p = i >> 2, i & 3
            R_.append([f"ds_read_b128 {fC(b,i)(4)}, {vc} offset:{i*2048}"])
            R_.append([f"ds_read_b64_tr_b16 {fW(b,i)(2)}, {vWp[p]} offset:{wimm + m*8192}",
                       f"ds_read_b64_tr_b16 {fW(b,i)(2,2)}, {vWp[p]} offset:{wimm + m*8192 + 512}"])
        return R_
    def mfs(b):
        M = []
        for rt in range(8):
            cols = range(8) if rt % 2 == 0 else range(7, -1, -1)
            for i in cols:
                if i < 4: M.append(mfma(acc1(rt*4 + i), fW(b, i), fC(b, rt)))
                else: M.append(mfma(acc1(32 + ((rt >> 1)*4 + (i - 4))*2 + (rt & 1)), fC(b, rt), fW(b, i)))
        return M
    a(f"s_mov_b32 {sCnt}, 0")
    a(f"s_mov_b32 {sR0}, 0")
    a(f"s_mov_b32 {sR1}, 2")
    a("s_waitcnt vmcnt(24)"); a("s_barrier")
    for r in reads(0, vC0, 0): L += r
    a("s_waitcnt lgkmcnt(0)")
    pre = list(L)
    B = ["K1_LOOP:"]
    ring_r = [[f"s_add_u32 {sR0}, {sR0}, 1", f"s_cmp_eq_u32 {sR0}, 3"], [f"s_cselect_b32 {sD0}, -65536, s92"], [f"s_cselect_b32 {sR0}, 0, {sR0}"]]
    ring_d = [[f"s_add_u32 {sR1}, {sR1}, 1", f"s_cmp_eq_u32 {sR1}, 3"], [f"s_cselect_b32 {sD1}, -65536, s92"], [f"s_cselect_b32 {sR1}, 0, {sR1}"]]
    tog = [[f"v_xor_b32 {vWp[0]}, 0x8000, {vWp[0]}", f"v_xor_b32 {vWp[1]}, 0x8000, {vWp[1]}"], [f"v_xor_b32 {vWp[2]}, 0x8000, {vWp[2]}", f"v_xor_b32 {vWp[3]}, 0x8000, {vWp[3]}"]]
    post = tog + [ring_r[0] + ring_r[1] + ring_r[2], [f"v_add_u32 {vC0}, {sD0}, {vC0}", f"v_add_u32 {vC1}, {sD0}, {vC1}"]]
    B += kstep(mfs(0), reads(1, vC1, 16384), wdma() + cdma(1), post, 16, 2)
    mid = [ring_d[0][0], "\n".join(ring_d[0][1:] + ring_d[1] + ring_d[2]), f"s_add_u32 {sCl}, {sCl}, {sD1}", f"s_add_u32 {sCg}, {sCg}, 128",
           f"s_cmp_ge_u32 {sCnt}, 5\ns_cselect_b32 s{rA+2}, 0, s{rA+2}"]
    B2 = kstep(mfs(1), reads(0, vC0, 0), wdma(16384, KS) + cdma(0), [], 16, 2)
    B += "\n".join(insert_after_mfmas(B2, mid, [5, 7, 9, 11, 13])).split("\n")
    B.pop()
    B += ["s_waitcnt lgkmcnt(0)", f"s_add_u32 {sWg}, {sWg}, {2*KS}", f"s_xor_b32 {sWl}, {sWl}, 0x8000",
          f"s_add_u32 {sCnt}, {sCnt}, 1", f"s_cmp_lt_u32 {sCnt}, 8", "s_cbranch_scc1 K1_LOOP"]
    fix_scc(B)
    E = []; a = E.append
    a("s_nop 7")
    a(f"s_mul_i32 s8, {sH}, {HS}")
    a(f"s_lshl_b32 s9, {sJ}, 17"); a("s_add_u32 s8, s8, s9")
    a(f"s_lshr_b32 s9, {sWave}, 1"); a("s_lshl_b32 s9, s9, 16"); a("s_add_u32 s8, s8, s9")
    a(f"s_and_b32 s9, {sWave}, 1"); a("s_lshl_b32 s10, s9, 11"); a("s_add_u32 s10, s10, s8")
    a("s_lshl_b32 s11, s9, 12"); a("s_add_u32 s11, s11, s8"); a(f"s_add_u32 s11, s11, {16384 + 8192}")
    for f in range(32):
        r = acc1(2*f)
        if r.p == "a":
            t = 16 + 8*(f & 1)
            for q in range(8): a(f"v_accvgpr_read_b32 v{t+q}, a{r.b+q}")
            r = V(t)
        for q in range(4): a(f"v_cvt_pk_bf16_f32 v{r.b+q}, v{r.b+2*q}, v{r.b+2*q+1}")
        if f < 16:
            rt, s1 = f >> 1, f & 1
            a(f"s_add_u32 s12, s10, {(rt >> 1)*16384 + (rt & 1)*4096}"); imm = s1*1024
        else:
            n1, dt = (f - 16) >> 2, (f - 16) & 3
            a(f"s_add_u32 s12, s11, {n1*16384}"); imm = dt*1024
        a(f"buffer_store_dwordx4 {r(4)}, {vL16}, {srd(rWS)}, s12 offen offset:{imm}")
    a("K1_END:")
    a("s_endpgm")
    return pre + B + E, [pre + B + B + E]

def insert_after_mfmas(lines, items, where):
    out = []; c = -1; m = dict(zip(where, items)); assert len(where) >= len(items)
    for l in lines:
        out.append(l)
        if l.startswith("v_mfma"):
            c += 1
            if c in m: out.append(m[c])
    return out

RING = 8
def k2():
    L = prologue("K2"); a = L.append
    L += mk_srd(rA, pX, 2048 * 576 * 2)
    L += mk_srd(rW, pWQ, 576 * 4096 * 2)
    sGs, sGl = "s72", "s73"
    a(f"s_lshl_b32 {sGs}, {sJ}, 2"); a(f"s_add_u32 {sGs}, {sGs}, {sWave}")
    a(f"s_sub_u32 {sGl}, 63, {sGs}")
    a(f"s_lshl_b32 s8, {sWave}, 6")
    L += gemm_addr_setup(1152, "s8", None)
    a(f"s_mul_i32 {sCg}, {sGs}, {32*1152}"); a(f"s_mul_i32 {sCg2}, {sGl}, {32*1152}")
    a(f"s_lshl_b32 {sCl}, {sWave}, 13"); a(f"s_add_u32 {sCl}, {sCl}, {CB}")
    a(f"s_and_b32 s9, {sWave}, 1"); a(f"s_lshr_b32 s10, {sWave}, 1")
    a(f"s_lshl_b32 {sWg}, {sH}, 8"); a("s_lshl_b32 s11, s9, 7"); a(f"s_add_u32 {sWg}, {sWg}, s11")
    a("s_lshl_b32 s11, s10, 17"); a(f"s_add_u32 {sWg}, {sWg}, s11")
    a(f"s_lshl_b32 {sWl}, s9, 12"); a("s_lshl_b32 s11, s10, 11"); a(f"s_add_u32 {sWl}, {sWl}, s11")
    sAl = "s74"
    a(f"s_lshl_b32 {sAl}, {sWave}, 10"); a(f"s_mul_i32 {sAg}, {sH}, 73728"); a(f"s_add_u32 {sAg}, {sAg}, {sAl}")
    a(f"s_add_u32 {sAg}, {sAg}, {WS_WA}"); a(f"s_add_u32 {sAl}, {sAl}, 8192")
    cdma = lambda half, lo=0, go=0: [dma_pair(vCe, vCo, rA, sCl, lo + half*4096 + q*2048, sCg2 if half else sCg, go + q*16*1152) for q in range(2)]
    KS = 32 * 8192
    def wdma(lo=0, k=0):
        return [dma_pair(vWe, vWo, rW, sWl, lo, sWg, k*KS),
                ([f"s_add_u32 m0, {sAl}, {lo}", f"s_add_u32 {sT}, {sAg}, {k*4096}"], [f"buffer_load_dwordx4 {vL16}, {srd(rWS)}, {sT} offen lds"])]
    L += flat_dmas(cdma(0) + wdma() + cdma(1) + wdma(16384, 1) + cdma(0, 32768, 128) + wdma(32768, 2) + cdma(1, 32768, 128)
                   + wdma(49152, 3) + cdma(0, 65536, 256))
    a(f"s_add_u32 {sCg}, {sCg}, 256"); a(f"s_add_u32 {sCg2}, {sCg2}, 256"); a(f"s_add_u32 {sCl}, {sCl}, 65536")
    a(f"s_add_u32 {sWg}, {sWg}, {4*KS}"); a(f"s_add_u32 {sAg}, {sAg}, {4*4096}")
    for r in range(32, 224): a(f"v_mov_b32 v{r}, 0")
    fX = lambda b, i: A(64 + 64*b + 4*i)
    fW = lambda b, i: A(80 + 64*b + 4*i)
    accQ = lambda aa, dt: V(32 + 4*(aa*8 + dt))
    accA = lambda aa, T: V(160 + 4*(aa*4 + T))
    def reads(b, vc, wimm):
        R_ = []
        for i in range(8):
            hf, p = i >> 2, i & 3
            if i < 4: R_.append([f"ds_read_b128 {fX(b,i)(4)}, {vc} offset:{i*2048}", f"ds_read_b128 {fW(b,8+i)(4)}, {vLT} offset:{wimm + 8192 + i*1024}"])
            R_.append([f"ds_read_b64_tr_b16 {fW(b,i)(2)}, {vWp[p]} offset:{wimm + hf*4096}",
                       f"ds_read_b64_tr_b16 {fW(b,i)(2,2)}, {vWp[p]} offset:{wimm + hf*4096 + 512}"])
        return R_
    def mfs(b):
        M = []
        for i in range(12):
            for aa in (range(4) if i % 2 == 0 else range(3, -1, -1)):
                M.append(mfma(accQ(aa, i) if i < 8 else accA(aa, i - 8), fW(b, i), fX(b, aa)))
        return M
    a(f"s_mov_b32 {sCnt}, 0"); a(f"s_mov_b32 {sR0}, 0"); a(f"s_mov_b32 {sR1}, 2")
    a("s_waitcnt vmcnt(21)"); a("s_barrier")
    for r in reads(0, vC0, 0): L += r
    a("s_waitcnt lgkmcnt(0)")
    pre = list(L)
    B = ["K2_GLOOP:"]
    ring_r = [f"s_add_u32 {sR0}, {sR0}, 1", f"s_cmp_eq_u32 {sR0}, 3", f"s_cselect_b32 {sD0}, -65536, s92", f"s_cselect_b32 {sR0}, 0, {sR0}"]
    ring_d = [f"s_add_u32 {sR1}, {sR1}, 1", f"s_cmp_eq_u32 {sR1}, 3", f"s_cselect_b32 {sD1}, -65536, s92", f"s_cselect_b32 {sR1}, 0, {sR1}"]
    tog = [[f"v_xor_b32 {vWp[0]}, 0x8000, {vWp[0]}", f"v_xor_b32 {vWp[1]}, 0x8000, {vWp[1]}"], [f"v_xor_b32 {vWp[2]}, 0x8000, {vWp[2]}", f"v_xor_b32 {vWp[3]}, 0x8000, {vWp[3]}"],
           [f"v_xor_b32 {vLT}, 0x8000, {vLT}"]]
    post = tog + [ring_r, [f"v_add_u32 {vC0}, {sD0}, {vC0}", f"v_add_u32 {vC1}, {sD0}, {vC1}"]]
    B += kstep(mfs(0), reads(1, vC1, 16384), wdma() + cdma(1), post, 14, 2)
    B2 = kstep(mfs(1), reads(0, vC0, 0), wdma(16384, 1) + cdma(0), [], 14, 2)
    mid = ["\n".join(ring_d), f"s_add_u32 {sCl}, {sCl}, {sD1}", f"s_add_u32 {sCg}, {sCg}, 128", f"s_add_u32 {sCg2}, {sCg2}, 128",
           f"s_cmp_ge_u32 {sCnt}, 6\ns_cselect_b32 s{rA+2}, 0, s{rA+2}"]
    B += "\n".join(insert_after_mfmas(B2, mid, [5, 7, 11, 13, 17])).split("\n")
    B.pop()
    B += ["s_waitcnt lgkmcnt(0)", f"s_add_u32 {sWg}, {sWg}, {2*KS}", f"s_add_u32 {sAg}, {sAg}, 8192", f"s_xor_b32 {sWl}, {sWl}, 0x8000", f"s_xor_b32 {sAl}, {sAl}, 0x8000",
          f"s_add_u32 {sCnt}, {sCnt}, 1", f"s_cmp_lt_u32 {sCnt}, 9", "s_cbranch_scc1 K2_GLOOP"]
    fix_scc(B)
    T = []; a = T.append
    a("s_waitcnt vmcnt(0)"); a("s_barrier")
    sKg, sKl, sLast, sN, sNextS, sNextL, sRec, sBo = "s75", "s76", "s77", "s78", "s79", "s80", "s81", "s82"
    a(f"s_mul_i32 {sKg}, {sH}, {HS}"); a(f"s_lshl_b32 s8, {sWave}, 12"); a(f"s_add_u32 {sKg}, {sKg}, s8")
    for r in range(RING - 1):
        slot = (r - 1) % RING
        a(f"s_add_u32 m0, s8, {slot*16384}"); a(f"s_add_u32 {sT}, {sKg}, {r*16384}")
        for q in range(4): a(f"buffer_load_dwordx4 {vL16}, {srd(rWS)}, {sT} offen offset:{q*1024} lds")
    a(f"s_lshl_b32 s9, {sJ}, 16"); a(f"s_sub_u32 s9, {64*16384}, s9"); a(f"s_add_u32 {sLast}, {sKg}, s9")
    a(f"s_add_u32 {sKg}, {sKg}, {(RING-1)*16384}")
    a(f"s_add_u32 {sKl}, s8, {(RING-2)*16384}")
    vOmg = 16
    a(f"v_add_u32 v20, 48, {vN}"); a("v_lshlrev_b32 v20, 2, v20")
    for aa in range(4): a(f"ds_bpermute_b32 v{vOmg+aa}, v20, v{accA(aa,1).b+2}")
    a(f"v_lshlrev_b32 v21, 16, {vG}"); a(f"v_lshl_add_u32 v21, {vN}, 4, v21")
    a("v_add_u32 v22, 0x8000, v21")
    a(f"s_lshl_b32 s9, {sH}, 18"); a(f"s_add_u32 s9, s9, {WS_QA}")
    a(f"s_lshl_b32 s10, {sGs}, 9"); a("s_add_u32 s10, s10, s9"); a(f"s_lshl_b32 s11, {sGl}, 9"); a("s_add_u32 s11, s11, s9")
    a("s_waitcnt lgkmcnt(0)")
    for aa in range(4):
        for hf in range(2):
            r = accA(aa, 2*hf).b
            for q in range(4): a(f"v_cvt_pk_bf16_f32 v{r+q}, v{r+2*q}, v{r+2*q+1}")
            a(f"buffer_store_dwordx4 v[{r}:{r+3}], v{21+hf}, {srd(rWS)}, {'s10' if aa < 2 else 's11'} offen offset:{(aa & 1)*256}")
    for aa in range(4): a(f"v_mul_f32 v{vOmg+aa}, {f2u(math.log2(math.e)):#x}, v{vOmg+aa}")
    for aa in range(4): a(f"v_exp_f32 v{vOmg+aa}, v{vOmg+aa}")
    for aa in range(4): a(f"v_add_f32 v{vOmg+aa}, 1.0, v{vOmg+aa}")
    Q = lambda aa, s: A(4*(aa*4 + s))
    a(f"s_mov_b32 s12, {f2u(math.log2(math.e) / math.sqrt(128.0)):#x}"); a("s_mov_b32 s13, s12")
    for aa in range(4):
        for s in range(4):
            r = accQ(aa, 2*s).b
            for q in range(4): a(f"v_pk_mul_f32 v[{r+2*q}:{r+2*q+1}], v[{r+2*q}:{r+2*q+1}], s[12:13]")
            for q in range(4): a(f"v_cvt_pk_bf16_f32 v{r+q}, v{r+2*q}, v{r+2*q+1}")
            for q in range(4): a(f"v_accvgpr_write_b32 a{Q(aa,s).b+q}, v{r+q}")
    Kf = lambda u, s: A(64 + 4*(u*4 + s))
    Vf = lambda dt: A(96 + 4*dt)
    ONE = A(128)
    O = lambda aa, dt: V(32 + 4*(aa*8 + dt))
    C = lambda G, u, a2: V(160 + 16*G + 4*(2*u + a2))
    S = lambda b: V(192 + 16*b)
    P = lambda b, a2: V(224 + 8*b + 4*a2)
    Ls = lambda aa: V(240 + 4*aa)
    vB = "v5"
    a(f"s_waitcnt vmcnt({4*(RING-2) + 8})"); a("s_barrier")
    a(f"v_add_u32 {vB}, {(RING-1)*16384}, {vL16}")
    for i in range(8): a(f"ds_read_b128 {Kf(i>>2, i&3)(4)}, {vB} offset:{i*1024}")
    for r in list(range(32, 160)) + list(range(232, 256)): a(f"v_mov_b32 v{r}, 0")
    a("v_mov_b32 v20, 0x3f803f80")
    for q in range(4): a(f"v_accvgpr_write_b32 a{ONE.b+q}, v20")
    for q in range(32): a(f"v_accvgpr_write_b32 a{96+q}, 0")
    a("s_waitcnt lgkmcnt(0)")
    for aa in range(4):
        for s in range(4): a(mfma(S(0) + 4*aa, Kf(0, s), Q(aa, s), "0" if s == 0 else None))
    a(f"v_lshlrev_b32 v20, 2, {vG}"); a(f"v_sub_u32 v20, {vN}, v20")
    sTri = [84, 86, 88, 90]
    for r in range(4): a(f"v_cmp_gt_i32 s[{sTri[r]}:{sTri[r]+1}], {r}, v20")
    vNEG = "v6"
    a(f"v_mov_b32 {vNEG}, {NEG:#x}")
    a("s_nop 3")
    for aa in range(4):
        b = S(0).b + 4*aa
        a(f"v_max3_f32 v{b}, v{b}, v{b+1}, v{b+2}"); a(f"v_max_f32 v{b}, v{b}, v{b+3}")
    for sw in ("v_permlane32_swap_b32", "v_permlane16_swap_b32"):
        for aa in range(4): b = S(0).b + 4*aa; a(f"v_mov_b32 v{b+1}, v{b}")
        a("s_nop 1")
        for aa in range(4): b = S(0).b + 4*aa; a(f"{sw} v{b+1}, v{b}")
        a("s_nop 1")
        for aa in range(4): b = S(0).b + 4*aa; a(f"v_max_f32 v{b}, v{b}, v{b+1}")
    for G in range(2):
        for u in range(2):
            for a2 in range(2):
                for r in range(4): a(f"v_sub_f32 v{C(G,u,a2).b+r}, 0, v{S(0).b + 4*(2*G+a2)}")
    a(f"v_mov_b32 v{S(1).b+12}, 0")
    for e in (13, 14, 15): a(f"v_mov_b32 v{S(1).b+e}, {vNEG}")
    def diag(G):
        o = []
        for r in range(4):
            for u in range(2): o.append(f"v_cndmask_b32 v{C(G,u,u).b+r}, v{C(G,u,u).b+r}, {vNEG}, s[{sTri[r]}:{sTri[r]+1}]")
            o.append(f"v_mov_b32 v{C(G,1,0).b+r}, {vNEG}")
        return o
    def full(G):
        return [f"v_mov_b32 v{C(G,u,a2).b+r}, {vNEG}" for (u, a2) in ((0,0),(0,1),(1,1)) for r in range(4)]
    def stub(name, G, sNext, sDiag):
        return [f"{name}:", f"s_cmp_eq_u32 {sNext}, {sDiag}", f"s_cbranch_scc0 {name}_F"] + diag(G) + [f"s_add_u32 {sNext}, {sNext}, 1", f"s_branch {name}_R",
                f"{name}_F:"] + full(G) + [f"s_mov_b32 {sNext}, -1", f"s_branch {name}_R"]
    a(f"s_mov_b32 {sNextS}, {sGs}"); a(f"s_mov_b32 {sNextL}, {sGl}")
    a(f"s_cmp_lg_u32 {sGs}, 0"); a("s_cbranch_scc1 K2_NOD0")
    T += diag(0); a(f"s_mov_b32 {sNextS}, 1")
    a("K2_NOD0:")
    a(f"s_mov_b32 {sN}, 1")
    a(f"s_mov_b32 {sBo}, {-16384}")
    a(f"s_lshl_b32 {sCnt}, {sJ}, 2"); a(f"s_add_u32 {sCnt}, {sCnt}, 5")
    a("s_nop 1")

    def qk(G, b):
        return [mfma(S(b) + 4*(2*u + a2), Kf(u, s), Q(2*G + a2, s), C(G, u, a2) if s == 0 else None) for u in range(2) for a2 in range(2) for s in range(4)]
    def pv(G, b):
        return [mfma(O(2*G + a2, dt), Vf(dt), P(b, a2)) for dt in range(8) for a2 in range(2)] + [mfma(Ls(2*G + a2), ONE, P(b, a2)) for a2 in range(2)]
    ex = lambda b, e: f"v_exp_f32 v{S(b).b+e}, v{S(b).b+e}"
    cv = lambda b, i: f"v_cvt_pk_bf16_f32 v{P(b, (i>>1)&1).b + 2*(i>>2) + (i&1)}, v{S(b).b+2*i}, v{S(b).b+2*i+1}"
    KPOS = [8, 8, 12, 14, 14, 16, 20, 22]
    VPOS = [22, 24, 28, 32, 34, 34, 36, 40]
    DPOS = [10, 18, 26, 30]
    def body(dual):
        Ga, Gb = (0, 1) if dual else (1, 1)
        mf = qk(Ga, 0) + pv(1, 1) + qk(Gb, 1) + pv(Ga, 0)
        sal = {}; ds = {}; va = {}
        add = lambda d, g, x: d.setdefault(g % 68, []).append(x)
        for hb in range(2):
            o = 34*hb
            for e in range(16): add(va, o + 9 + 2*e, ex(hb, e))
            for i in range(8): add(va, o + 12 + 4*i, cv(hb, i))
            off = 0 if dual else hb*16384
            if not dual or hb == 1:
                for i in range(8): add(ds, o + KPOS[i], f"ds_read_b128 {Kf(i>>2,i&3)(4)}, {vB} offset:{off + i*1024}")
            if not dual or hb == 0:
                for i in range(8): add(ds, o + VPOS[i], f"ds_read_b128 {Vf(i)(4)}, {vB} offset:{off + 8192 + i*1024}")
                add(sal, o + 3, f"s_waitcnt vmcnt({4*(RING-3)})")
                add(sal, o + 4, "s_barrier")
                add(sal, o + 2, f"s_cmp_le_u32 {sKg}, {sLast}")
                add(sal, o + 5, f"s_cselect_b32 {sT}, {sKg}, {OOB}")
                add(sal, o + 9, f"s_mov_b32 m0, {sKl}")
                for q in range(4): add(ds, o + DPOS[q], f"buffer_load_dwordx4 {vL16}, {srd(rWS)}, {sT} offen offset:{q*1024} lds")
                add(sal, o + 11, f"s_add_u32 {sKg}, {sKg}, 16384")
                add(sal, o + 13, f"s_add_u32 {sKl}, {sKl}, 16384")
                add(sal, o + 17, f"s_and_b32 {sKl}, {sKl}, {RING*16384 - 1}")
                nm = f"K2_M{'D' if dual else 'S'}{hb}"
                add(sal, o + 19, f"s_cmp_eq_u32 {sN}, {sNextS if dual else sNextL}")
                add(sal, o + 21, f"s_cbranch_scc1 {nm}\n{nm}_R:")
                add(sal, o + 23, f"s_add_u32 {sN}, {sN}, 1")
        add(sal, 0, f"s_add_u32 {sBo}, {sBo}, {16384 if dual else 32768}")
        add(sal, 1, f"s_and_b32 {sBo}, {sBo}, {RING*16384 - 1}")
        add(va, 7, f"v_add_u32 {vB}, {sBo}, {vL16}")
        if dual:
            add(sal, 49, "s_waitcnt lgkmcnt(5)"); add(sal, 65, "s_waitcnt lgkmcnt(0)")
        else:
            add(sal, 15, "s_waitcnt lgkmcnt(5)"); add(sal, 33, "s_waitcnt lgkmcnt(4)")
            add(sal, 49, "s_waitcnt lgkmcnt(5)"); add(sal, 65, "s_waitcnt lgkmcnt(3)")
        add(sal, 63, f"s_cmp_lg_u32 {sN}, {sCnt}")
        fill = {g: sal.get(g, []) + ds.get(g, []) + va.get(g, []) for g in range(68)}
        return "\n".join(weave(mf, fill)).split("\n")
    D = ["K2_DUAL:"] + fix_scc(body(True)) + ["s_cbranch_scc1 K2_DUAL"]
    X = []; a = X.append
    a(f"v_subrev_u32 {vB}, 16384, {vB}")
    a(f"s_sub_u32 {sBo}, {sBo}, 16384")
    a(f"s_sub_u32 s8, {sN}, 1")
    a(f"s_cmp_lg_u32 s8, {sGl}"); a("s_cbranch_scc1 K2_NOD1")
    X += diag(1); a(f"s_add_u32 {sNextL}, {sNextL}, 1")
    a("K2_NOD1:")
    a(f"s_lshl_b32 {sCnt}, {sJ}, 2"); a(f"s_sub_u32 {sCnt}, 65, {sCnt}")
    Sg = ["K2_SINGLE:"] + fix_scc(body(False)) + ["s_cbranch_scc1 K2_SINGLE"]
    E = []; a = E.append
    for i in range(4, 8): a(f"ds_read_b128 {Vf(i)(4)}, {vB} offset:{16384 + 8192 + i*1024}")
    a(ex(1, 13)); a(ex(1, 14)); a(ex(1, 15)); a("s_nop 0"); a(cv(1, 6)); a(cv(1, 7))
    a("s_waitcnt lgkmcnt(0)"); a("s_nop 0")
    E += pv(1, 1)
    a(f"s_lshl_b32 s8, {sJ}, 2"); a(f"s_add_u32 s8, s8, {sWave}"); a(f"s_mul_i32 s8, s8, {Z_RT}")
    a(f"s_lshl_b32 s9, {sH}, 14"); a("s_add_u32 s8, s8, s9"); a(f"s_add_u32 s8, s8, {WS_Z}")
    a("s_nop 3")
    for aa in range(4): a(f"v_mul_f32 v{vOmg+aa}, v{vOmg+aa}, v{Ls(aa).b}")
    for aa in range(4): a(f"v_rcp_f32 v{20+2*aa}, v{vOmg+aa}")
    a("s_nop 0")
    for aa in range(4): a(f"v_mov_b32 v{21+2*aa}, v{20+2*aa}")
    for s in range(4):
        for aa in range(4):
            r = O(aa, 2*s).b
            for q in range(4): a(f"v_pk_mul_f32 v[{r+2*q}:{r+2*q+1}], v[{r+2*q}:{r+2*q+1}], v[{20+2*aa}:{21+2*aa}]")
            for q in range(4): a(f"v_cvt_pk_bf16_f32 v{r+q}, v{r+2*q}, v{r+2*q+1}")
            a(f"buffer_store_dwordx4 v[{r}:{r+3}], {vL16}, {srd(rWS)}, s8 offen offset:{aa*1024}")
        a("s_add_u32 s8, s8, 4096")
    a("K2_END:")
    a("s_endpgm")
    stubs = stub("K2_MD0", 0, sNextS, sGs) + stub("K2_MS0", 1, sNextL, sGl) + stub("K2_MS1", 1, sNextL, sGl)
    def with_stub(lines, nm, code):
        o = []
        for l in lines:
            o.append(l)
            if l.strip() == f"s_cbranch_scc1 {nm}": o += ["s_cmp_eq_u32 s0, s0", "s_cbranch_scc0 x"] + code + ["s_mov_b32 s83, 0", "s_branch x"]
        return o
    traces = [pre + B + B + T + D + D + X + Sg + Sg + E,
              T + with_stub(D, "K2_MD0", diag(0)) + with_stub(D, "K2_MD0", full(0)) + X + with_stub(with_stub(Sg, "K2_MS0", diag(1)), "K2_MS1", full(1)) + with_stub(Sg, "K2_MS1", diag(1)) + Sg + E]
    return pre + B + T + D + X + Sg + E + stubs, traces

def fix_scc(lines):
    last = None
    for l in lines:
        t = l.strip()
        if t.startswith(("s_cselect", "s_cbranch_scc")):
            assert last is not None and last.startswith("s_cmp"), (last, t)
        elif t.startswith(("s_cmp", "s_add", "s_sub", "s_and", "s_xor", "s_or", "s_lshl", "s_lshr", "s_min", "s_max")):
            last = t
    assert last.startswith("s_cmp"), last
    return lines

def k3():
    L = prologue("K3"); a = L.append
    sGs, sGl = "s72", "s73"
    a(f"s_lshl_b32 {sGs}, {sJ}, 2"); a(f"s_add_u32 {sGs}, {sGs}, {sWave}")
    a(f"s_sub_u32 {sGl}, 63, {sGs}")
    a(f"s_lshl_b32 s9, {sH}, 18"); a(f"s_add_u32 s9, s9, {WS_QA}")
    a(f"s_lshl_b32 s10, {sGs}, 9"); a("s_add_u32 s10, s10, s9"); a(f"s_lshl_b32 s11, {sGl}, 9"); a("s_add_u32 s11, s11, s9")
    a(f"s_mul_i32 s8, {sWave}, 10240")
    for G in range(2):
        for c in range(2, 7):
            a(f"s_add_u32 m0, s8, {(G*5 + c - 2)*1024}"); a(f"s_add_u32 {sT}, {'s11' if G else 's10'}, {c*32768 - 512}")
            a(f"buffer_load_dwordx4 {vL16}, {srd(rWS)}, {sT} offen lds")
    a(f"v_and_b32 v6, 31, {vLane}")
    a(f"v_cmp_lt_u32 vcc, 31, {vLane}")
    a(f"v_mov_b32 v7, {sGs}"); a(f"v_mov_b32 v8, {sGl}")
    a("v_cndmask_b32 v7, v7, v8, vcc")
    a("v_lshl_add_u32 v5, v7, 5, v6")
    a("v_lshlrev_b32 v7, 4, v5")
    a(f"buffer_load_dwordx4 v[16:19], v7, {srd(rWS)}, s9 offen")
    a("s_add_u32 s9, s9, 32768")
    a(f"buffer_load_dwordx4 v[20:23], v7, {srd(rWS)}, s9 offen")
    a(f"v_lshrrev_b32 v8, 5, {vLane}"); a("v_mul_u32_u24 v8, 5120, v8"); a("v_lshl_add_u32 v8, v6, 4, v8"); a("v_add_u32 v8, s8, v8")
    a("s_waitcnt vmcnt(0)")
    Kr = lambda w: 32 + 8*w; Xr = lambda w: 96 + 4*w; Vr = lambda w: 128 + 8*w
    for w in range(8):
        o = (32 - 2*w)*16
        a(f"ds_read_b128 v[{Xr(w)}:{Xr(w)+3}], v8 offset:{o + 4096}")
        a(f"ds_read_b128 v[{Kr(w)}:{Kr(w)+3}], v8 offset:{o}")
        a(f"ds_read_b128 v[{Kr(w)+4}:{Kr(w)+7}], v8 offset:{o + 1024}")
        if w % 4 == 3: a("s_waitcnt lgkmcnt(0)")
    for w in range(8):
        o = (32 - 2*w)*16
        a(f"ds_read_b128 v[{Vr(w)}:{Vr(w)+3}], v8 offset:{o + 2048}")
        a(f"ds_read_b128 v[{Vr(w)+4}:{Vr(w)+7}], v8 offset:{o + 3072}")
        if w == 3: a("s_waitcnt lgkmcnt(0)")
    lg = 24
    for w in range(8): a(f"v_dot2_f32_bf16 v{lg+w}, v{Xr(0)}, v{Xr(w)+1}, 0")
    for i in range(8):
        for w in range(8): a(f"v_dot2_f32_bf16 v{lg+w}, v{16+i}, v{Kr(w)+i}, v{lg+w}")
    a(f"v_mov_b32 v9, {NEG:#x}")
    a("s_nop 2")
    for w in range(1, 8):
        a(f"v_cmp_gt_u32 vcc, {2*w}, v5"); a("s_nop 1"); a(f"v_cndmask_b32 v{lg+w}, v{lg+w}, v9, vcc")
    a(f"v_max3_f32 v10, v{lg}, v{lg+1}, v{lg+2}"); a(f"v_max3_f32 v10, v10, v{lg+3}, v{lg+4}"); a(f"v_max3_f32 v10, v10, v{lg+5}, v{lg+6}"); a(f"v_max_f32 v10, v10, v{lg+7}")
    a(f"s_mov_b32 s12, {f2u(math.log2(math.e) / math.sqrt(18.0)):#x}")
    for w in range(8): a(f"v_sub_f32 v{lg+w}, v{lg+w}, v10")
    for w in range(8): a(f"v_mul_f32 v{lg+w}, s12, v{lg+w}")
    for w in range(8): a(f"v_exp_f32 v{lg+w}, v{lg+w}")
    a(f"v_lshlrev_b32 v11, 16, v{Xr(0)+3}")
    a(f"v_mul_f32 v11, {f2u(-math.log2(math.e)):#x}, v11"); a("v_exp_f32 v11, v11")
    for w in range(8): a(f"v_cvt_pk_bf16_f32 v{Kr(w)}, v{lg+w}, 0")
    for w in range(8): a(f"v_lshlrev_b32 v{Kr(w)+1}, 16, v{Kr(w)}")
    a("v_add_f32 v11, 1.0, v11")
    a(f"v_add_f32 v10, v{Kr(0)+1}, v{Kr(1)+1}")
    for w in range(2, 8): a(f"v_add_f32 v10, v10, v{Kr(w)+1}")
    a("v_mul_f32 v10, v10, v11"); a("v_rcp_f32 v10, v10")
    a("s_waitcnt lgkmcnt(0)")
    ob = 192
    for w in range(8):
        for i in range(9):
            src = Vr(w) + i if i < 8 else Xr(w) + 2
            for q in range(2):
                a(f"v_dot2_f32_bf16 v{ob+2*i+q}, v{src}, v{Kr(w)+q}, {'0' if w == 0 else 'v%d' % (ob+2*i+q)}")
    a("s_nop 2")
    for i in range(18): a(f"v_mul_f32 v{ob+i}, v10, v{ob+i}")
    for i in range(9): a(f"v_cvt_pk_bf16_f32 v{ob+i}, v{ob+2*i}, v{ob+2*i+1}")
    a(f"s_mul_i32 s8, {sGs}, {Z_RT}"); a(f"s_add_u32 s8, s8, {WS_Z}")
    a(f"s_lshr_b32 s9, {sH}, 1"); a("s_add_u32 s9, s9, 128"); a("s_lshl_b32 s9, s9, 12"); a("s_add_u32 s9, s9, s8")
    a(f"s_and_b32 s10, {sH}, 1"); a("s_lshl_b32 s10, s10, 9"); a("s_add_u32 s9, s9, s10")
    a(f"v_lshlrev_b32 v7, 10, {vG}"); a(f"v_lshl_add_u32 v7, {vN}, 4, v7")
    a(f"buffer_store_dwordx4 v[{ob}:{ob+3}], v7, {srd(rWS)}, s9 offen")
    a(f"buffer_store_dwordx4 v[{ob+4}:{ob+7}], v7, {srd(rWS)}, s9 offen offset:256")
    a(f"s_lshr_b32 s9, {sH}, 4"); a("s_add_u32 s9, s9, 144"); a("s_lshl_b32 s9, s9, 12"); a("s_add_u32 s9, s9, s8")
    a(f"s_bfe_u32 s10, {sH}, {(2 << 16) | 2}"); a("s_lshl_b32 s10, s10, 8"); a("s_add_u32 s9, s9, s10")
    a(f"s_and_b32 s10, {sH}, 3"); a("s_lshl_b32 s10, s10, 2"); a("s_add_u32 s9, s9, s10")
    a(f"buffer_store_dword v{ob+8}, v7, {srd(rWS)}, s9 offen")
    a("K3_END:")
    a("s_endpgm")
    return L, [L]

def k4():
    L = prologue("K4"); a = L.append
    L += mk_srd(rO, pOUT, 2048 * 576 * 2)
    sRt, sCt, sZ, sWo, sZb, sWb, sPi = "s72", "s73", "s74", "s75", "s76", "s77", "s78"
    a(f"s_and_b32 {sRt}, {sSlot}, 3"); a(f"s_lshl_b32 s8, {sX}, 2"); a(f"s_add_u32 {sRt}, {sRt}, s8")
    a(f"s_lshr_b32 {sCt}, {sSlot}, 2")
    a(f"s_mul_i32 {sZb}, {sRt}, {Z_RT}"); a(f"s_add_u32 {sZb}, {sZb}, {WS_Z}")
    a(f"s_mul_i32 {sWb}, {sCt}, {WO_CT}"); a(f"s_add_u32 {sWb}, {sWb}, {WS_WO}")
    a(f"v_add_u32 v5, 4096, {vL16}"); a(f"v_add_u32 v6, 8192, {vL16}")
    vo = [vL16, "v5", "v6"]
    buf = lambda b: A(68*b)
    acc = lambda aa, i: V(32 + 4*(aa*6 + i))
    def nextpair():
        return [f"s_lshl_b32 s8, {sWave}, 4", f"s_add_u32 s8, s8, {sPi}", f"s_lshl_b32 s9, {sPi}, 2", f"s_add_u32 s9, s9, {sWave}",
                f"s_cmp_lt_u32 {sPi}, 16", "s_cselect_b32 s8, s8, s9", "s_lshl_b32 s9, s8, 13", f"s_add_u32 {sZ}, {sZb}, s9",
                "s_mul_i32 s9, s8, 9216", f"s_add_u32 {sWo}, {sWb}, s9", "s_cmp_gt_u32 s8, 72",
                f"s_cselect_b32 {sZ}, {OOB}, {sZ}", f"s_cselect_b32 {sWo}, {OOB}, {sWo}", f"s_add_u32 {sPi}, {sPi}, 1"]
    def loads(b):
        o = []
        order = [("w", 0), ("z", 0), ("z", 1), ("z", 2), ("z", 3), ("w", 1), ("w", 2), ("w", 3), ("w", 8), ("w", 4), ("z", 4), ("z", 5), ("z", 6), ("z", 7), ("w", 5), ("w", 6), ("w", 7)]
        for k, i in order:
            r = buf(b) + (4*i if k == "z" else 32 + 4*i)
            o.append(f"buffer_load_dwordx4 {r(4)}, {vo[i >> 2]}, {srd(rWS)}, {sZ if k == 'z' else sWo} offen offset:{(i & 3)*1024}")
        return o
    def mfs(b):
        M = []
        for kk in range(2):
            for i in range(5):
                for aa in range(4):
                    wf = buf(b) + 32 + 4*(4*kk + i if i < 4 else 8)
                    M.append(mfma(acc(aa, i if i < 4 else 4 + kk), wf, buf(b) + 4*(4*kk + aa)))
        return M
    a(f"s_mov_b32 {sPi}, 0")
    for b in range(2): L += nextpair() + loads(b)
    for r in range(32, 128): a(f"v_mov_b32 v{r}, 0")
    L += nextpair()
    pre = list(L)
    B = ["K4_LOOP:"]
    for b in range(3):
        B.append("s_waitcnt vmcnt(17)")
        fill = {}
        for q, l in enumerate(loads((b + 2) % 3)): fill[2*q] = [l]
        np_ = nextpair()
        for q in range(7): fill[33 + q] = np_[2*q:2*q+2]
        B += weave(mfs(b), fill)
    B += [f"s_cmp_lt_u32 {sPi}, 21", "s_cbranch_scc1 K4_LOOP"]
    E = []; a = E.append
    a(f"s_cmp_lg_u32 {sWave}, 0"); a("s_cbranch_scc1 K4_RED")
    a("s_waitcnt vmcnt(17)")
    E += mfs(0)
    a("K4_RED:")
    a("s_waitcnt vmcnt(0)")
    a(f"v_cmp_lt_u32 vcc, 31, {vLane}")
    a(f"s_mul_i32 s8, {sWave}, 20480"); a(f"v_add_u32 v5, s8, {vL16}")
    a(f"s_mul_i32 s8, {sWave}, 5120"); a(f"v_add_u32 v6, s8, {vL16}")
    a("s_nop 3")
    for aa in range(4):
        for r in range(4): a(f"v_cndmask_b32 v{acc(aa,4).b+r}, v{acc(aa,4).b+r}, v{acc(aa,5).b+r}, vcc")
    for aa in range(4):
        for i in range(5): a(f"ds_write_b128 v5, {acc(aa,i)(4)} offset:{(aa*5 + i)*1024}")
    a("s_waitcnt lgkmcnt(0)"); a("s_barrier")
    a("v_add_u32 v7, 40960, v6")
    for p in range(4):
        for i in range(5): a(f"ds_read_b128 v[{32 + 20*p + 4*i}:{35 + 20*p + 4*i}], {'v6' if p < 2 else 'v7'} offset:{(p & 1)*20480 + i*1024}")
        if p == 1: a("s_waitcnt lgkmcnt(0)")
    a(f"s_sub_u32 s8, 63, {sRt}"); a(f"s_cmp_lt_u32 {sWave}, 2"); a(f"s_cselect_b32 s8, {sRt}, s8"); a("s_lshl_b32 s8, s8, 5")
    a(f"s_and_b32 s9, {sWave}, 1"); a("s_lshl_b32 s9, s9, 4"); a("s_add_u32 s8, s8, s9"); a("s_mul_i32 s8, s8, 1152")
    a(f"s_mul_i32 s9, {sCt}, 144"); a("s_add_u32 s8, s8, s9")
    a(f"v_mul_u32_u24 v8, 1152, {vN}"); a(f"v_lshl_add_u32 v8, {vG}, 3, v8")
    a(f"v_mov_b32 v9, {OOB}"); a("v_cndmask_b32 v9, v8, v9, vcc")
    a("s_waitcnt lgkmcnt(0)")
    for p in range(1, 4):
        for r in range(20): a(f"v_add_f32 v{32+r}, v{32+r}, v{32 + 20*p + r}")
    for r in range(4): a(f"v_mov_b32 v{52+r}, v{48+r}")
    a("s_nop 1")
    for r in range(4): a(f"v_permlane32_swap_b32 v{52+r}, v{48+r}")
    a("s_nop 1")
    for r in range(4): a(f"v_add_f32 v{48+r}, v{48+r}, v{52+r}")
    for i in range(5):
        a(f"v_cvt_pk_bf16_f32 v{32+4*i}, v{32+4*i}, v{33+4*i}"); a(f"v_cvt_pk_bf16_f32 v{33+4*i}, v{34+4*i}, v{35+4*i}")
        a(f"buffer_store_dwordx2 v[{32+4*i}:{33+4*i}], {'v8' if i < 4 else 'v9'}, {srd(rO)}, s8 offen offset:{32*i}")
    a("K4_END:")
    a("s_endpgm")
    return pre + B + E, [pre + B + B + E]

def build(path):
    ks = [("k0_kernel", k0, 0), ("k1_kernel", k1, LDS_BYTES), ("k2_kernel", k2, LDS_BYTES), ("k3_kernel", k3, 40960), ("k4_kernel", k4, 81920)]
    out = ["; gated mix: local dilated attention + compressed-KV causal attention (generated by gen/gen1.py)"]
    for n, _, lds in ks: out.append(f"; @launch kernel={n} grid=(256,1,1) block=(256,1,1) lds={lds}")
    out.append(HEADER)
    bad = 0
    for n, f, _ in ks:
        code, traces = f()
        for t in traces:
            t = "\n".join(t).split("\n")
            for p in verify(t, n): print(p); bad += 1
        out += kernel_open(n) + code
    out.append('.section .rodata,"a"')
    for n, _, _ in ks: out += [".p2align 6", kernel_desc(n)]
    open(path, "w").write("\n".join(out) + "\n")
    print("hazard problems:", bad)

if __name__ == "__main__":
    build(sys.argv[1] if len(sys.argv) > 1 else "gated_mix__sliding_local_dilated__compressed_kv_cla__prompt.s")
```

```python
import re

def vr(b, n=1, p="v"):
    return f"{p}{b}" if n == 1 else f"{p}[{b}:{b+n-1}]"

class R:
    def __init__(s, p, b): s.p = p; s.b = b
    def __call__(s, n=1, o=0): return vr(s.b + o, n, s.p)
    def __add__(s, o): return R(s.p, s.b + o)
    def __repr__(s): return f"{s.p}{s.b}"

def V(b): return R("v", b)
def A(b): return R("a", b)

def mfma(d, a, b, c=None):
    cs = d(4) if c is None else (c if isinstance(c, str) else c(4))
    return f"v_mfma_f32_16x16x32_bf16 {d(4)}, {a(4)}, {b(4)}, {cs}"

_reg = re.compile(r"\b([vas])\[(\d+):(\d+)\]|\b([vas])(\d+)\b|\b(vcc|exec|m0|scc)\b")

def regs_of(op):
    out = []
    for m in _reg.finditer(op):
        if m.group(1): out += [(m.group(1), i) for i in range(int(m.group(2)), int(m.group(3)) + 1)]
        elif m.group(4): out.append((m.group(4), int(m.group(5))))
        else: out.append((m.group(6), 0))
    return out

TRANS = ("v_exp_f32", "v_log_f32", "v_rcp_f32", "v_rsq_f32", "v_sqrt_f32", "v_sin_f32", "v_cos_f32")

class I:
    def __init__(s, text):
        s.text = text
        t = text.split(";")[0].strip()
        s.skip = (not t) or t.endswith(":") or t.startswith(".")
        s.kind = None; s.rd = set(); s.wr = set(); s.states = 1
        if s.skip: return
        parts = t.split(None, 1)
        op = s.op = parts[0]
        ops = [o.strip() for o in parts[1].split(",")] if len(parts) > 1 else []
        s.ops = ops
        rs = [regs_of(o) for o in ops]
        allr = lambda l: set(r for x in l for r in x)
        if op.startswith("v_mfma"):
            s.kind = "mfma"; s.wr = set(rs[0]); s.ab = allr(rs[1:3]); s.c = set(rs[3]); s.rd = s.ab | s.c
        elif op.startswith("ds_read") or op.startswith("ds_bpermute") or op.startswith("ds_swizzle"):
            s.kind = "dsr"; s.wr = set(rs[0]); s.rd = allr(rs[1:])
        elif op.startswith("ds_"):
            s.kind = "dsw"; s.rd = allr(rs)
        elif op.startswith("buffer_load") or op.startswith("global_load"):
            if re.search(r"\blds\b", t): s.kind = "dma"; s.rd = allr(rs) | {("m0", 0)}
            else:
                s.kind = "vml"; s.wr = set(rs[0]); s.rd = allr(rs[1:])
                if "d16" in op: s.rd |= set()
        elif op.startswith("buffer_store") or op.startswith("buffer_atomic"):
            s.kind = "vms"; s.rd = allr(rs); s.data = set(rs[0])
            if op.startswith("buffer_atomic") and "sc0" in t: s.kind = "vml"; s.wr = set(rs[0])
        elif op.startswith("buffer_") : s.kind = "vmo"
        elif op == "s_waitcnt": s.kind = "wait"
        elif op == "s_nop": s.kind = "nop"; s.states = int(ops[0]) + 1
        elif op.startswith("s_load") or op in ("s_memtime", "s_memrealtime"):
            s.kind = "smem"; s.wr = set(rs[0]); s.rd = allr(rs[1:])
        elif op.startswith("s_"):
            s.kind = "salu"
            if op.startswith("s_cmp") or op.startswith("s_cbranch") or op in ("s_branch", "s_barrier", "s_endpgm", "s_sleep", "s_setprio", "s_setpc_b64", "s_bitcmp0_b32", "s_bitcmp1_b32"):
                s.rd = allr(rs)
            else:
                s.wr = set(rs[0]); s.rd = allr(rs[1:])
                if "saveexec" in op: s.wr.add(("exec", 0))
        elif op.startswith("v_"):
            s.kind = "valu"
            s.trans = any(op.startswith(x) for x in TRANS)
            s.wr = set(rs[0]); s.rd = allr(rs[1:])
            if op.startswith(("v_add_co", "v_sub_co", "v_addc_co")): s.wr |= set(rs[1]); s.rd = allr(rs[2:])
            if op.startswith(("v_fmac", "v_dot2c", "v_writelane")): s.rd |= set(rs[0])
            if op.startswith("v_permlane") and "swap" in op: s.wr |= set(rs[1]); s.rd |= set(rs[0])
            if op.startswith("v_cmpx"): s.wr.add(("exec", 0))
            s.dpp = ("row_" in t) or ("quad_perm" in t) or ("wave_" in t)
            if s.dpp: s.rd |= set(rs[0])
        else:
            raise ValueError("unknown instr: " + text)

def verify(lines, name="", lgkm0=None):
    ins = [I(l) for l in lines]
    ins = [i for i in ins if not i.skip]
    probs = []
    lq = []
    vq = []
    smem = set()
    def P(k, msg): probs.append(f"{name}[{k}] {ins[k].text.strip()}  :: {msg}")
    for k, i in enumerate(ins):
        touch = i.rd | i.wr
        if i.kind == "wait":
            m = re.search(r"lgkmcnt\((\d+)\)", i.text)
            if m:
                n = int(m.group(1))
                if n == 0: smem = set()
                elif smem: P(k, "counted lgkmcnt with SMEM outstanding")
                while len(lq) > n: lq.pop(0)
            m = re.search(r"vmcnt\((\d+)\)", i.text)
            if m:
                n = int(m.group(1))
                while len(vq) > n: vq.pop(0)
            continue
        for d in lq:
            if d & touch and not (i.kind == "dsr" and not (d & i.rd)): P(k, f"touches pending LDS dest {sorted(d & touch)[:2]}")
        for d in vq:
            if d & touch and not (i.kind == "vml" and not (d & i.rd)): P(k, f"touches pending VMEM dest {sorted(d & touch)[:2]}")
        if smem & touch: P(k, "touches pending SMEM dest")
        if i.kind in ("dsr", "dsw"):
            lq.append(set(i.wr))
            if len(lq) > 15 + 16: pass
        if i.kind in ("vml", "vms", "dma", "vmo"): vq.append(set(i.wr))
        if i.kind == "smem": smem |= i.wr
        dist = 0
        for j in range(k - 1, max(-1, k - 24), -1):
            p = ins[j]
            need = 0
            if p.kind == "mfma":
                if i.kind == "mfma":
                    if p.wr & i.ab: need = 8
                    elif (p.wr & i.c) and p.wr != i.c: need = 6
                    elif (p.wr & i.wr) and not (p.wr & i.c): need = 0
                elif i.kind in ("valu", "dsr", "dsw", "vml", "vms", "dma"):
                    if p.wr & touch: need = 8
                    elif i.kind == "valu" and (p.c & i.wr): need = 3
            elif p.kind == "valu":
                vw = set(r for r in p.wr if r[0] in "va" and len(r[0]) == 1)
                sw = p.wr - vw
                if i.kind == "mfma":
                    if vw & i.rd: need = 2
                    if ("exec", 0) in p.wr: need = max(need, 4)
                if i.kind == "valu":
                    if p.trans and not i.trans and (p.wr & i.rd): need = max(need, 1)
                    if i.op.startswith(("v_readfirstlane", "v_readlane")) and (vw & i.rd): need = max(need, 1)
                    if i.op.startswith("v_permlane") and (vw & i.rd): need = max(need, 2)
                    if i.dpp and (vw & i.rd): need = max(need, 2)
                    if sw & i.rd: need = max(need, 2)
                    if p.op.startswith("v_dot") and (p.wr & touch) and not (p.op == i.op and not (p.wr & set(r for o in i.ops[1:3] for r in regs_of(o)))): need = max(need, 3)
                if i.kind in ("vml", "vms", "dma") and (sw & i.rd): need = max(need, 5)
            elif p.kind == "salu":
                if ("m0", 0) in p.wr and i.kind == "dma": need = 1
            elif p.kind == "vms":
                if len(p.data) >= 3 and (p.data & i.wr): need = 2 if i.kind == "valu" else 1
            if need > dist: P(k, f"needs {need} wait states after [{p.text.strip()}], has {dist}")
            dist += p.states
            if dist >= 12: break
    return probs

HEADER = '''.amdgcn_target "amdgcn-amd-amdhsa--gfx950"
.text
'''
def kernel_open(name):
    return [f".globl {name}", ".p2align 8", f".type {name},@function", f"{name}:"]
def kernel_desc(name, nv=512, ao=256, ns=102):
    return f""".amdhsa_kernel {name}
  .amdhsa_next_free_vgpr {nv}
  .amdhsa_next_free_sgpr {ns}
  .amdhsa_accum_offset {ao}
  .amdhsa_group_segment_fixed_size 0
  .amdhsa_kernarg_size 104
  .amdhsa_user_sgpr_count 2
  .amdhsa_user_sgpr_kernarg_segment_ptr 1
  .amdhsa_system_sgpr_workgroup_id_x 1
.end_amdhsa_kernel
"""

def weave(mf, fill):
    out = []
    for i, m in enumerate(mf):
        out.append(m)
        out += fill.get(i, [])
    return out

def cost_of(text):
    op = text.split()[0]
    if op.startswith("ds_"): return "ds", 4
    if op.startswith(("buffer_", "global_")): return "vm", 8
    if op.startswith("v_"):
        return "va", (8 if op.startswith(TRANS) else 4)
    return "sa", 0

class Slot:
    def __init__(s, mf): s.mf = mf; s.sa = []; s.mem = []; s.va = []; s.used = 0; s.lock = False; s.vm = False
    def lines(s): return ([s.mf] if s.mf else []) + s.sa + s.mem + s.va

class Timeline:
    def __init__(s): s.sl = []
    def add(s, mfs):
        b = len(s.sl); s.sl += [Slot(m) for m in mfs]; return b
    def __len__(s): return len(s.sl)
    def fits(s, g, items):
        t = s.sl[g]
        if t.lock: return False
        used = t.used; nsa = len(t.sa); vm = t.vm; hasva = bool(t.va)
        for it in items:
            k, c = cost_of(it)
            if k == "sa": nsa += 1
            else: used += c
            if k == "vm": vm = True
        if used > 8: return False
        if vm and nsa: return False
        return nsa <= 3 - used // 4
    def force(s, g, items, lock=False):
        t = s.sl[g]
        for it in items:
            k, c = cost_of(it)
            (t.sa if k == "sa" else t.va if k == "va" else t.mem).append(it)
            t.used += c
            if k == "vm": t.vm = True
        t.lock |= lock
        return g
    def put(s, items, lo, hi=None, lock=False):
        if isinstance(items, str): items = [items]
        hi = len(s.sl) - 1 if hi is None else hi
        for g in range(lo, hi + 1):
            if s.fits(g, items) and not (lock and (s.sl[g].sa or s.sl[g].mem or s.sl[g].va)): return s.force(g, items, lock)
        raise RuntimeError(f"no room for {items} in [{lo},{hi}]")
    def seq(s, items, lo, hi=None, step=0):
        g = lo; prev = None
        rank = {"sa": 0, "ds": 1, "vm": 1, "va": 2}
        for it in items:
            first = it if isinstance(it, str) else it[0]
            last = it if isinstance(it, str) else it[-1]
            if prev is not None and rank[cost_of(first)[0]] < prev: g += 1
            g = s.put(it, g, hi); prev = rank[cost_of(last)[0]]
            if step: g += step; prev = None
        return g - step if step else g
    def lines(s):
        o = []
        for t in s.sl: o += t.lines()
        return o

def resolve_waits(lines):
    out = []; n = 0; last = {}
    for l in lines:
        op = l.split()[0] if l.split() else ""
        if op.startswith(("buffer_", "global_")):
            n += 1
            for tg in re.findall(r"@(\w+)", l): last[tg] = n
        m = re.match(r"s_waitcnt vmcnt\((@[^)]*)\)(.*)", l)
        if m:
            tags = [t.strip()[1:] for t in m.group(1).split(",")]
            k = n - max(last[t] for t in tags)
            l = f"s_waitcnt vmcnt({min(k, 63)}){m.group(2)}"
        out.append(l)
    return out

def check_scc(lines):
    last = None
    for l in lines:
        t = l.strip()
        if t.startswith(("s_cselect", "s_cbranch_scc")):
            assert last is not None and last.startswith(("s_cmp", "s_bitcmp")), (last, t)
        elif t.startswith(("s_cmp", "s_bitcmp", "s_add", "s_sub", "s_and", "s_xor", "s_or", "s_lshl", "s_lshr", "s_min", "s_max", "s_bfe", "s_not", "s_ashr")):
            last = t
    return lines
```

```python
import sys, math, struct, os
sys.path.insert(0, "gen")
from asmlib import *

NAME = "gated_mix__sliding_local_dilated__compressed_kv_cla__prompt_kernel"
def f2u(x): return struct.unpack("<I", struct.pack("<f", x))[0]
OPT = dict(kv.split("=") if "=" in kv else (kv, "1") for kv in os.environ.get("XP", "").split(",") if kv)
def opt(k, d): return int(OPT.get(k, d))
STAMPS = "--stamps" in sys.argv

HS = 65 * 16384
WS_WA = 0x2200000
WS_WO = 0x2500000
WO_CT = 73 * 9216
WS_QA = 0x2B00000
WS_Z  = 0x3400000
Z_RT = 146 * 4096
WS_FL = 0x4800000
WS_SIZE = 268435456
OOB = 0x7FFF0000
NEG = 0xF149F2CA
LDS_BYTES = 163840
CB = 65536
RING = 8
LOG2E = math.log2(math.e)

sWave, sH, sJ, sSlot, sX = "s3", "s4", "s5", "s6", "s7"
rC, rX, rWkv, rWq, rWS, rU1, rWOB, rG, rD, rO = 8, 12, 16, 20, 24, 28, 32, 36, 40, 44
def srd(r): return f"s[{r}:{r+3}]"
_s = [52]
def S_(n=1):
    if n == 2 and _s[0] & 1: _s[0] += 1
    r = _s[0]; _s[0] += n; assert _s[0] <= 96, "out of sgprs"; return f"s{r}" if n == 1 else r
sT, sT2, sGs, sGl = S_(), S_(), S_(), S_()
sCb, sCk, sCc, sCc2, sCl = S_(), S_(), S_(), S_(), S_()
sWb, sWk, sWc, sWl = S_(), S_(), S_(), S_()
sAb, sAc, sAl = S_(), S_(), S_()
sU1b, sU1d0, sU1d1, sU1d2, sU1s, sU1g = S_(), S_(), S_(), S_(), S_(), S_()
sU2b, sU2s = S_(), S_()
sKst, sVst, sFH, sSig, sScale, sPerm0, sPerm1 = S_(), S_(), S_(), S_(), S_(), S_(), S_()
sSpin = S_()
sTri = [S_(2) for _ in range(4)]
t0, t1, t2, t3 = "s48", "s49", "s50", "s51"
sKg, sKl, sLast, sN, sCnt, sBo, sDone = sCb, sCk, sCc, sCc2, sWb, sWk, sWc

vLane, vN, vG, vL16 = "v1", "v2", "v3", "v4"
vCe, vCo, vWe, vWo, vC0, vC1 = "v5", "v6", "v7", "v8", "v9", "v10"
vWp = ["v11", "v12", "v13", "v14"]
vOne = "v15"
vSig = "v0"
vStamp = "a255"
TMP = 16

def stamp(i):
    if not STAMPS: return []
    return [f"s_memrealtime s[96:97]", "s_memtime s[98:99]", "s_waitcnt lgkmcnt(0)", "v_accvgpr_write_b32 a254, v31", "v_accvgpr_read_b32 v31, a255", "s_nop 1",
            f"v_writelane_b32 v31, s96, {i}", f"v_writelane_b32 v31, s98, {16+i}", "s_nop 1", "v_accvgpr_write_b32 a255, v31", "v_accvgpr_read_b32 v31, a254", "s_nop 1"]
def stamp_out():
    if not STAMPS: return []
    return ["s_waitcnt vmcnt(0)"] + stamp(15) + ["s_mov_b32 exec_hi, 0", "s_lshl_b32 s96, s2, 2", f"s_add_u32 s96, s96, {sWave}", "s_lshl_b32 s96, s96, 7", "s_add_u32 s96, s96, 0xF000000",
            "v_accvgpr_read_b32 v31, a255", f"v_lshlrev_b32 v30, 2, {vLane}", f"buffer_store_dword v31, v30, {srd(rWS)}, s96 offen"]

STUBS = []
def check(name, load, reg, want, wait):
    STUBS.extend([f"{name}:", f"s_mov_b32 {sSpin}, 0", f"{name}_L:", "s_sleep 2", load.split(";")[0], f"s_add_u32 {sSpin}, {sSpin}, 1", "s_waitcnt vmcnt(0)",
                  f"v_cmp_gt_u32 vcc, {want}, {reg}", f"s_cmp_gt_u32 {sSpin}, 0x20000", f"s_cbranch_scc1 {name}_R", "s_nop 3", f"s_cbranch_vccnz {name}_L", f"s_branch {name}_R"])
    return [wait], [f"v_cmp_gt_u32 vcc, {want}, {reg}"], [f"s_cbranch_vccnz {name}\n{name}_R:"]

def put_check(tl, name, load, reg, want, tag, g_load, g_chk):
    tl.put(load + f" ;@{tag}", g_load)
    w, c, b = check(name, load, reg, want, f"s_waitcnt vmcnt(@{tag})")
    g = tl.put(w, g_chk); g = tl.put(c, g + 1); return tl.put(b, g + 5, lock=True)

def startup():
    L = []; a = L.append
    a("s_cmp_ge_u32 s2, 256"); a("s_cbranch_scc1 L_END")
    for r, slot in ((rC, 4), (rWkv, 6), (48, 7), (rWS, 12), (rX, 0), (rWq, 5), (rU1, 1), (50, 2), (rWOB, 8), (rG, 9), (rD, 11), (rO, 10)):
        a(f"s_load_dwordx2 s[{r}:{r+1}], s[0:1], {slot*8}")
    a("s_getpc_b64 s[96:97]")
    a(f"s_lshr_b32 {sSlot}, s2, 3")
    a(f"s_lshl_b32 s98, {sSlot}, 11")
    a("s_add_u32 s96, s96, s98"); a("s_addc_u32 s97, s97, 0")
    a("v_lshlrev_b32 v16, 3, v0"); a("v_mov_b32 v17, s97"); a("v_add_co_u32 v16, vcc, s96, v16"); a("s_nop 1"); a("v_addc_co_u32 v17, vcc, 0, v17, vcc")
    if opt("pf", 1): a("global_load_dwordx2 a[250:251], v[16:17], off")
    a("v_lshrrev_b32 v5, 6, v0")
    a(f"v_and_b32 {vLane}, 63, v0")
    a(f"v_readfirstlane_b32 {sWave}, v5")
    a(f"v_and_b32 {vN}, 15, v0")
    a(f"v_lshrrev_b32 {vG}, 4, {vLane}")
    a(f"v_lshlrev_b32 {vL16}, 4, {vLane}")
    a(f"s_and_b32 {sX}, s2, 7")
    a(f"s_and_b32 {sT2}, {sSlot}, 3")
    a(f"s_lshl_b32 {sH}, {sX}, 2"); a(f"s_add_u32 {sH}, {sH}, {sT2}")
    a(f"s_lshr_b32 {sJ}, {sSlot}, 2")
    a(f"s_lshl_b32 {sGs}, {sJ}, 2"); a(f"s_add_u32 {sGs}, {sGs}, {sWave}"); a(f"s_sub_u32 {sGl}, 63, {sGs}")
    a(f"v_lshrrev_b32 v16, 3, {vLane}"); a(f"v_and_b32 v17, 7, {vLane}")
    a(f"v_xor_b32 v18, v17, {vG}"); a("v_lshlrev_b32 v19, 10, v16")
    a(f"v_lshl_add_u32 {vCe}, v18, 4, v19"); a("v_xor_b32 v18, 4, v18"); a(f"v_lshl_add_u32 {vCo}, v18, 4, v19"); a(f"v_add_u32 {vCo}, {8192 - 1024}, {vCo}")
    a(f"v_and_b32 v18, 1, {vG}"); a("v_lshlrev_b32 v18, 1, v18"); a("v_xor_b32 v18, v17, v18"); a("v_lshlrev_b32 v19, 13, v16")
    a(f"v_lshl_add_u32 {vWe}, v18, 4, v19"); a("v_xor_b32 v18, 4, v18"); a(f"v_lshl_add_u32 {vWo}, v18, 4, v19"); a(f"v_add_u32 {vWo}, {65536 - 1024}, {vWo}")
    a(f"s_lshl_b32 {sT}, {sT2}, 1"); a(f"s_add_u32 {sT}, {sT}, {sJ}")
    if opt("rotx", 1): a(f"s_and_b32 {sT2}, {sX}, 1"); a(f"s_add_u32 {sT}, {sT}, {sT2}")
    a(f"s_mov_b32 {sAc}, {sT}")
    a(f"s_and_b32 {sT}, {sT}, {7 if opt('rot', 1) else 0}")
    a(f"s_lshl_b32 {sCk}, {sT}, 7"); a(f"s_lshl_b32 {sWk}, {sT}, 19")
    a(f"s_lshl_b32 {sCb}, {sGs}, 16")
    a(f"s_lshl_b32 {sCl}, {sWave}, 13"); a(f"s_add_u32 {sCl}, {sCl}, {CB}")
    a(f"s_and_b32 {sT2}, {sWave}, 1"); a(f"s_lshl_b32 {sWb}, {sH}, 8"); a(f"s_lshl_b32 {sT}, {sT2}, 7"); a(f"s_add_u32 {sWb}, {sWb}, {sT}")
    a(f"s_lshl_b32 {sWl}, {sWave}, 12")
    a(f"s_add_u32 {sCc}, {sCb}, {sCk}"); a(f"s_add_u32 {sWc}, {sWb}, {sWk}")
    for r, size in ((rC, 2048*512*2), (rWkv, 512*4096*2), (rWS, WS_SIZE), (rX, 2048*576*2), (rWq, 576*4096*2), (rU1, 576*1728*2), (rWOB, 4096*576*2), (rG, 1152), (rD, 256), (rO, 2048*576*2)):
        a(f"s_mov_b32 s{r+2}, {size}"); a(f"s_mov_b32 s{r+3}, 0x20000")
    a(f"s_cmp_lt_u32 {sWave}, 2")
    a("s_waitcnt lgkmcnt(0)")
    a(f"s_cselect_b32 s{rWkv}, s{rWkv}, s48"); a(f"s_cselect_b32 s{rWkv+1}, s{rWkv+1}, s49")
    return L

KS = 32 * 8192
def dma2(ve, vo, rs, lds_s, lds_imm, g_s, g_imm, tag):
    return ([f"s_add_u32 m0, {lds_s}, {lds_imm}", f"s_add_u32 {sT}, {g_s}, {g_imm}"],
            [f"buffer_load_dwordx4 {ve}, {srd(rs)}, {sT} offen lds ;@{tag}", f"buffer_load_dwordx4 {vo}, {srd(rs)}, {sT} offen offset:1024 lds ;@{tag}"])
def act_dma(st, half):
    lo = (st % 3) * 32768 + half * 4096
    if st < 8: d = [dma2(vCe, vCo, rC, sCl, lo + q*2048, sCc, half*32768 + q*16384, f"c{st}") for q in range(2)]
    else: d = [dma2(vCe, vCo, rX, sCl, lo + q*2048, sCc2 if half else sCc, q*16*1152, f"c{st}") for q in range(2)]
    pre = []
    if half == 0 and 0 < st < 8:
        pre = [[f"s_add_u32 {sCk}, {sCk}, 128", f"s_and_b32 {sCk}, {sCk}, 1023", f"s_add_u32 {sCc}, {sCb}, {sCk}"]]
    if half == 0 and st == 8:
        pre = [[f"s_cmp_ge_u32 {sAc}, 9", f"s_cselect_b32 {sCk}, 9, 0", f"s_sub_u32 {sAc}, {sAc}, {sCk}"]]
        if not opt("rot", 1): pre += [[f"s_mov_b32 {sAc}, 0"]]
        pre += [[f"s_lshl_b32 {sCk}, {sAc}, 7", f"s_mul_i32 {sCc}, {sGs}, {32*1152}", f"s_add_u32 {sCc}, {sCc}, {sCk}"],
                [f"s_mul_i32 {sCc2}, {sGl}, {32*1152}", f"s_add_u32 {sCc2}, {sCc2}, {sCk}"],
                [f"v_lshrrev_b32 v{TMP+15}, 3, {vLane}", f"v_lshl_add_u32 {vCe}, v{TMP+15}, 7, {vCe}"],
                [f"v_lshl_add_u32 {vCo}, v{TMP+15}, 7, {vCo}", f"v_add_u32 {vCo}, 1024, {vCo}"]]
    if half == 0 and st > 8:
        pre = [[f"s_cmp_eq_u32 {sCk}, 1024", f"s_cselect_b32 {sT2}, -1024, 64", f"s_cselect_b32 {sCb}, 0, 64"],
               [f"s_add_u32 {sT2}, {sT2}, {sCb}", f"s_add_u32 {sCk}, {sCk}, {sT2}", f"s_add_u32 {sCc}, {sCc}, {sT2}"], [f"s_add_u32 {sCc2}, {sCc2}, {sT2}"]]
    return pre, d
def wt_dma(t):
    lo = (t & 3) * 16384; pre = []
    if t < 16:
        if t and t % 2 == 0: pre = [[f"s_add_u32 {sWk}, {sWk}, {2*KS}", f"s_and_b32 {sWk}, {sWk}, {16*KS - 1}", f"s_add_u32 {sWc}, {sWb}, {sWk}"]]
        return pre, [dma2(vWe, vWo, rWkv, sWl, lo + q*2048, sWc, (t & 1)*KS + q*131072, f"w{t}") for q in range(2)]
    if t == 16:
        pre = [[f"s_lshr_b32 {sT2}, {sWave}, 1", f"s_lshl_b32 {sWk}, {sT2}, 17", f"s_add_u32 {sWb}, {sWb}, {sWk}"],
               [f"s_lshl_b32 {sT2}, {sT2}, 11", f"s_and_b32 {sWl}, {sWl}, 4096", f"s_add_u32 {sWl}, {sWl}, {sT2}"],
               [f"s_mov_b32 {sWk}, {sAc}"]]
    elif t % 2 == 0:
        pre = [[f"s_add_u32 {sWk}, {sWk}, 1", f"s_cmp_eq_u32 {sWk}, 9", f"s_cselect_b32 {sWk}, 0, {sWk}"]]
    if t % 2 == 0:
        pre += [[f"s_lshl_b32 {sWc}, {sWk}, 19", f"s_add_u32 {sWc}, {sWc}, {sWb}"], [f"s_lshl_b32 {sAc}, {sWk}, 13", f"s_add_u32 {sAc}, {sAc}, {sAb}"]]
    return pre, [dma2(vWe, vWo, rWq, sWl, lo, sWc, (t & 1)*KS, f"w{t}"),
                 ([f"s_add_u32 m0, {sAl}, {lo}", f"s_add_u32 {sT}, {sAc}, {(t & 1)*4096}"], [f"buffer_load_dwordx4 {vL16}, {srd(rWS)}, {sT} offen sc1 lds ;@w{t}"])]
def rec_dma(n):
    return [], [([f"s_add_u32 m0, {sKst}, {((n + 3) % RING)*16384}", f"s_add_u32 {sT}, {sVst}, {(n + 1)*16384}"],
                 [f"buffer_load_dwordx4 {vL16}, {srd(rWS)}, {sT} offen offset:{q*1024} sc1 lds ;@r{n+1}" for q in range(4)])]
def flat(pd):
    pre, d = pd; o = []
    for p in pre: o += p
    for s_, x in d: o += s_ + x
    return o
def put_dmas(tl, groups, lo, hi):
    n = sum(len(x) for _, d in groups for _, x in d)
    if not n: return lo
    step = (hi - lo) / n; k = 0; g = lo - 1
    for pre, d in groups:
        for p in pre: g = tl.put(p, g) + (0 if cost_of(p[-1])[0] == "sa" else 0)
        for s_, x in d:
            g = tl.put(s_, max(g, int(lo + k*step) - 2))
            for ins in x:
                g = tl.put(ins, max(g + 1, int(lo + k*step))); k += 1
            g += 1
    return g

aU = 192
vU1, vU1x, vU1s, vU2, vU2x, vU2s, vGo = "a220", "a221", "a222", "a223", "a224", "a225", "a226"
def unit_setup():
    L = []; a = L.append
    q = t0
    a(f"s_mov_b32 {sPerm0}, 0x05040100"); a(f"s_mov_b32 {sPerm1}, 0x07060302")
    a(f"v_mov_b32 v24, {OOB}")
    a(f"v_and_b32 v16, 1, {vG}"); a(f"v_lshrrev_b32 v17, 1, {vG}")
    a(f"v_cmp_gt_u32 vcc, 8, {vN}")
    a(f"s_lshr_b32 {t0}, {sWave}, 1"); a(f"s_and_b32 {t1}, {sWave}, 1"); a(f"s_and_b32 {sT}, s2, 3"); a(f"s_lshl_b32 {sT}, {sT}, 1"); a(f"s_add_u32 {t1}, {t1}, {sT}")
    a(f"s_lshr_b32 {sT}, s2, 2"); a(f"s_lshl_b32 {sT}, {sT}, 1"); a(f"s_add_u32 {sT}, {sT}, {t0}")
    def wo_params(kap, ct, kk, sb_rows, sb, ss, al, be, o_main, o_x, o_s):
        a(f"s_mul_i32 {sb}, {sb_rows}, 1152"); a(f"s_mul_i32 {sT2}, {ct}, 144"); a(f"s_add_u32 {sb}, {sb}, {sT2}")
        a(f"s_mul_i32 {ss}, {ct}, 73"); a(f"s_lshr_b32 {sT2}, {kap}, 1"); a(f"s_add_u32 {ss}, {ss}, {sT2}"); a(f"s_mul_i32 {ss}, {ss}, 9216")
        a(f"s_add_u32 {ss}, {ss}, {WS_WO}"); a(f"s_lshl_b32 {sT2}, {kk}, 12"); a(f"s_add_u32 {ss}, {ss}, {sT2}")
        a(f"v_mul_u32_u24 v18, {al}, v16"); a(f"v_mul_u32_u24 v19, {be}, v17"); a("v_add_u32 v18, v18, v19"); a("v_mul_u32_u24 v18, 1152, v18")
        a(f"v_lshl_add_u32 v19, {vN}, 3, v18"); a(f"v_accvgpr_write_b32 {o_main}, v19")
        a(f"v_lshl_add_u32 v19, {vN}, 1, v18"); a("v_add_u32 v19, 128, v19"); a("v_cndmask_b32 v19, v24, v19, vcc"); a(f"v_accvgpr_write_b32 {o_x}, v19")
        a(f"s_mul_i32 {sT2}, {kk}, {4096 - 128}"); a(f"s_sub_u32 {sT2}, 8192, {sT2}")
        a(f"v_add_u32 v19, {sT2}, {vL16}"); a("v_cndmask_b32 v19, v24, v19, vcc"); a(f"v_accvgpr_write_b32 {o_s}, v19")
    a(f"s_lshl_b32 {sU1b}, {sT}, 5")
    wo_params(sT, t1, t0, sU1b, sU2b, sU2s, 4, 8, vU2, vU2x, vU2s)
    a(f"v_accvgpr_write_b32 {vGo}, v24")
    a(f"s_mov_b32 {sU1g}, 0")
    a(f"s_cmp_lt_u32 {sGs}, 18"); a("s_cbranch_scc1 U_WA")
    a(f"s_mov_b32 s{rU1}, s50"); a(f"s_mov_b32 s{rU1+1}, s51"); a(f"s_mov_b32 s{rU1+2}, {576*576*2}")
    a(f"s_mul_i32 {t0}, {sH}, 14"); a(f"s_add_u32 {t0}, {t0}, {sGs}"); a(f"s_sub_u32 {t0}, {t0}, 18")
    a(f"s_and_b32 {t1}, {t0}, 7"); a(f"s_lshr_b32 {t0}, {t0}, 3")
    a(f"s_add_u32 {sT}, {t0}, 128"); a(f"s_and_b32 {t2}, {t0}, 1")
    a(f"s_cmp_lt_u32 {t0}, 16"); a("s_cbranch_scc0 U_X")
    a(f"s_mul_i32 {t3}, {t0}, 36")
    a(f"s_mov_b32 {sU1d0}, {4*1152}"); a(f"s_mov_b32 {sU1d1}, {8*1152}"); a(f"s_mov_b32 {sU1d2}, 1152")
    wo_params(sT, t1, t2, t3, sU1b, sU1s, 2, 18, vU1, vU1x, vU1s)
    a("s_branch U_DONE")
    a("U_X:")
    a(f"s_mul_i32 {t3}, {t2}, 288"); a(f"s_add_u32 {t3}, {t3}, 16")
    a(f"s_mov_b32 {sU1d0}, 1152"); a(f"s_mov_b32 {sU1d1}, {18*1152}"); a(f"s_mov_b32 {sU1d2}, {36*1152}")
    wo_params(sT, t1, t2, t3, sU1b, sU1s, 72, 144, vU1, vU1x, vU1s)
    a(f"s_cmp_lt_u32 {t0}, 18"); a(f"s_cselect_b32 {sU1b}, {sU1b}, {OOB}"); a(f"s_cselect_b32 {sU1s}, {sU1s}, {OOB}")
    a("s_branch U_DONE")
    a("U_WA:")
    a(f"s_mul_i32 {sU1b}, {sGs}, {32*3456}"); a(f"s_mul_i32 {sT2}, {sH}, 36"); a(f"s_add_u32 {sU1b}, {sU1b}, {sT2}")
    a(f"s_mov_b32 {sU1d0}, 3456"); a(f"s_mov_b32 {sU1d1}, {2*3456}"); a(f"s_mov_b32 {sU1d2}, {4*3456}")
    a(f"s_mul_i32 {sU1s}, {sH}, 18"); a(f"s_add_u32 {sU1s}, {sU1s}, {sGs}"); a(f"s_lshl_b32 {sU1s}, {sU1s}, 12"); a(f"s_add_u32 {sU1s}, {sU1s}, {WS_WA}")
    a(f"s_lshl_b32 {sU1g}, {sGs}, 6")
    a(f"v_lshrrev_b32 v18, 2, {vN}"); a(f"v_and_b32 v19, 3, {vN}")
    a("v_mul_u32_u24 v20, 1152, v18"); a("v_lshl_add_u32 v20, v19, 3, v20")
    a("v_add_u32 v21, 1, v19"); a("v_cmp_eq_u32 vcc, 2, v19"); a("s_nop 1"); a("v_cndmask_b32 v21, v21, 0, vcc")
    a("v_mul_u32_u24 v21, 1152, v21"); a("v_add_u32 v21, 32, v21")
    a("v_cmp_eq_u32 vcc, 3, v18"); a("s_nop 1"); a("v_cndmask_b32 v20, v20, v21, vcc")
    a(f"v_mul_u32_u24 v21, {8*3456}, {vG}"); a("v_add_u32 v20, v20, v21")
    a(f"v_cmp_eq_u32 vcc, 15, {vN}"); a(f"v_lshlrev_b32 v21, 4, {vG}"); a("s_nop 0"); a("v_cndmask_b32 v20, v20, v24, vcc"); a("v_cndmask_b32 v21, v24, v21, vcc")
    a(f"v_accvgpr_write_b32 {vU1}, v20"); a(f"v_accvgpr_write_b32 {vGo}, v21"); a(f"v_accvgpr_write_b32 {vU1x}, v24"); a(f"v_accvgpr_write_b32 {vU1s}, v24")
    a("U_DONE:")
    return L

def put_unit(tl, u, g_load, g_proc, step=3):
    rs = rU1 if u == 1 else rWOB
    sb, ss = (sU1b, sU1s) if u == 1 else (sU2b, sU2s)
    om, ox, os_ = (vU1, vU1x, vU1s) if u == 1 else (vU2, vU2x, vU2s)
    tag = f"u{u}"
    g = tl.seq([f"v_accvgpr_read_b32 v16, {om}", f"v_accvgpr_read_b32 v17, {ox}"] + ([f"v_accvgpr_read_b32 v18, {vGo}"] if u == 1 else []), g_load) + 1
    for jj in range(8):
        if u == 1:
            terms = [d for b, d in enumerate((sU1d0, sU1d1, sU1d2)) if jj >> b & 1]
            sal = [f"s_add_u32 {t0}, {sb if i == 0 else t0}, {d}" for i, d in enumerate(terms)] or [f"s_mov_b32 {t0}, {sb}"]
        else: sal = [f"s_add_u32 {t0}, {sb}, {((jj & 3) + 16*(jj >> 2))*1152}"]
        g = tl.put(sal, g)
        g = tl.put(f"buffer_load_dwordx2 a[{aU+2*jj}:{aU+2*jj+1}], v16, {srd(rs)}, {t0} offen ;@{tag}", g + 1)
        g = tl.put(f"buffer_load_ushort a{aU+16+jj}, v17, {srd(rs)}, {t0} offen ;@{tag}", g + step) + step - 1
    if u == 1: g = tl.put(f"buffer_load_dwordx4 a[{aU+24}:{aU+27}], v18, {srd(rG)}, {sU1g} offen ;@{tag}", g + 1)
    g = tl.put(f"s_waitcnt vmcnt(@{tag})", max(g + 1, g_proc))
    for hp in range(2):
        g = tl.seq([f"v_accvgpr_read_b32 v{16+jj}, a{aU+2*jj+hp}" for jj in range(8)], g + 1)
        g = tl.seq([f"v_perm_b32 v{24+4*e+q}, v{17+2*q}, v{16+2*q}, {sPerm1 if e else sPerm0}" for e in range(2) for q in range(4)], g + 2)
        if u == 1 and hp == 0:
            g = tl.seq([f"v_accvgpr_read_b32 v{16+q}, a{aU+24+q}" for q in range(4)] + [f"v_or_b32 v{24+q}, v{24+q}, v{16+q}" for q in range(4)], g)
        for e in range(2):
            g = tl.put(f"buffer_store_dwordx4 v[{24+4*e}:{27+4*e}], {vL16}, {srd(rWS)}, {ss} offen offset:{(2*hp+e)*1024} sc1 ;@{tag}s", g + 1 + e*step)
    g = tl.seq([f"v_accvgpr_read_b32 v{16+jj}, a{aU+16+jj}" for jj in range(8)], g + 1)
    g = tl.seq([f"v_lshl_or_b32 v{24+q}, v{17+2*q}, 16, v{16+2*q}" for q in range(4)] + [f"v_accvgpr_read_b32 v16, {os_}"], g + 2)
    g = tl.put(f"buffer_store_dwordx4 v[24:27], v16, {srd(rWS)}, {ss} offen sc1 ;@{tag}s", g + 1)
    return g + 2

def build():
    L = startup(); a = L.append
    L += stamp(0)
    L += flat(act_dma(0, 0)) + flat(wt_dma(0)) + flat(act_dma(0, 1))
    a(f"s_lshl_b32 {sFH}, {sH}, 10"); a(f"s_add_u32 {sFH}, {sFH}, {WS_FL}")
    a(f"s_cmp_eq_u32 {sGs}, 0"); a(f"s_cselect_b32 {t0}, {sFH}, {OOB}")
    for q in range(4): a(f"v_mov_b32 v{16+q}, 0")
    a(f"buffer_store_dwordx4 v[16:19], {vL16}, {srd(rWS)}, {t0} offen sc1 ;@zero")
    L += flat(wt_dma(1))
    a(f"s_add_u32 {sFH}, {sFH}, 512")
    a(f"s_cmp_eq_u32 {sWave}, 0"); a(f"s_cselect_b32 {sSig}, {sFH}, {OOB}")
    a(f"v_mov_b32 {vOne}, 1"); a(f"v_mov_b32 v16, {OOB}"); a(f"v_cmp_eq_u32 vcc, 0, {vLane}"); a("s_nop 1"); a(f"v_cndmask_b32 {vSig}, v16, 0, vcc")
    a(f"s_lshr_b32 {t0}, {sWave}, 1"); a(f"s_lshl_b32 {t0}, {t0}, 7"); a(f"s_and_b32 {t1}, {sWl}, 4096")
    a(f"v_lshrrev_b32 v16, 1, {vN}"); a(f"v_xor_b32 v16, v16, {vG}"); a(f"v_add_u32 v17, {t0}, {vN}"); a("v_lshlrev_b32 v17, 7, v17"); a(f"v_add_u32 v17, {CB}, v17")
    a(f"v_lshl_add_u32 {vC0}, v16, 4, v17"); a(f"v_xor_b32 {vC1}, 64, {vC0}")
    a(f"v_bfe_u32 v16, {vLane}, 2, 2"); a(f"v_lshl_add_u32 v17, {vG}, 3, v16"); a("v_lshlrev_b32 v17, 7, v17"); a(f"v_and_b32 v18, 3, {vLane}")
    a("v_lshl_add_u32 v17, v18, 3, v17"); a(f"v_add_u32 v17, {t1}, v17"); a("v_lshrrev_b32 v16, 1, v16"); a(f"v_and_b32 v18, 1, {vG}"); a("v_lshl_add_u32 v16, v18, 1, v16")
    for p in range(4): a(f"v_xor_b32 v18, {p}, v16"); a(f"v_lshl_add_u32 {vWp[p]}, v18, 5, v17")
    a(f"s_mul_i32 {sKst}, {sH}, {HS}"); a(f"s_lshl_b32 {sT}, {sJ}, 17"); a(f"s_add_u32 {sKst}, {sKst}, {sT}"); a(f"s_lshl_b32 {sT}, {t0}, 9"); a(f"s_add_u32 {sKst}, {sKst}, {sT}")
    a(f"s_add_u32 {sVst}, {sKst}, {t1}"); a(f"s_add_u32 {sVst}, {sVst}, {16384 + 8192}"); a(f"s_lshr_b32 {t1}, {t1}, 1"); a(f"s_add_u32 {sKst}, {sKst}, {t1}")
    a(f"s_lshl_b32 {sAl}, {sWave}, 10"); a(f"s_mul_i32 {sAb}, {sH}, 73728"); a(f"s_add_u32 {sAb}, {sAb}, {sAl}"); a(f"s_add_u32 {sAb}, {sAb}, {WS_WA}"); a(f"s_add_u32 {sAl}, {sAl}, 8192")
    a(f"s_mov_b32 {sScale}, {f2u(LOG2E / math.sqrt(128.0)):#x}")
    L += flat(act_dma(1, 0))
    L += unit_setup()

    VB = [V(32 + 4*i) for i in range(56)]
    accV = lambda rt, d: VB[((rt >> 1)*4 + d)*2 + (rt & 1)]
    def accK(rt, d):
        i = rt*4 + d
        return VB[32 + i] if i < 24 else A(4*(i - 24))
    fC = lambda b, i: A(64 + 64*b + 4*i)
    fW = lambda b, i: A(96 + 64*b + 4*i)
    set0 = [fW(0, 4+i) for i in range(4)] + [fW(1, 4+i) for i in range(4)] + [fC(b, i) for i in range(4) for b in range(2)]
    set1 = [fW(0, i) for i in range(4)] + [fW(1, i) for i in range(4)] + [fC(b, 4+i) for i in range(4) for b in range(2)]
    fX2 = lambda b, i: (set1 if b else set0)[i]
    fW2 = lambda b, i: (set1 if b else set0)[4 + i]
    def reads(t):
        b = t & 1; vc = vC1 if b else vC0; wi = (t & 3)*16384; R_ = []
        tr = lambda r, p, o: [f"ds_read_b64_tr_b16 {r(2)}, {vWp[p]} offset:{o}", f"ds_read_b64_tr_b16 {r(2,2)}, {vWp[p]} offset:{o + 512}"]
        if t < 16:
            for i in range(0, 8, 2): R_.append([f"ds_read_b128 {fC(b,i+q)(4)}, {vc} offset:{(i+q)*2048}" for q in range(2)])
            for i in (4, 5, 6, 7, 0, 1, 2, 3): R_.append(tr(fW(b, i), i & 3, wi + (i >> 2)*8192))
        else:
            for i in range(0, 4, 2): R_.append([f"ds_read_b128 {fX2(b,i+q)(4)}, {vc} offset:{(i+q)*2048}" for q in range(2)])
            for i in range(8): R_.append(tr(fW2(b, i), i & 3, wi + (i >> 2)*4096))
            for i in range(0, 4, 2): R_.append([f"ds_read_b128 {fW2(b,8+i+q)(4)}, {vL16} offset:{wi + 8192 + (i+q)*1024}" for q in range(2)])
        return R_
    mK = lambda t, rt, d: mfma(accK(rt, d), fW(t & 1, d), fC(t & 1, rt), "0" if t == 0 else None)
    mV = lambda t, rt, d: mfma(accV(rt, d), fC(t & 1, rt), fW(t & 1, 4 + d), "0" if t == 0 else None)

    a("s_waitcnt vmcnt(@c0,@w0,@zero)"); a("s_barrier")
    for r in reads(0): L += r
    a(f"s_lshl_b32 {t0}, {sH}, 2"); a(f"s_cmp_eq_u32 {sGs}, 0"); a(f"s_cselect_b32 {t0}, {t0}, {OOB}")
    a(f"buffer_store_dword {vOne}, {vSig}, {srd(rD)}, {t0} offen sc1")
    a("s_waitcnt lgkmcnt(0)")
    L += stamp(1)

    tl = Timeline(); base = {}
    for t in range(14):
        M = []
        for rt in range(8):
            for i in (range(8) if rt % 2 == 0 else range(7, -1, -1)): M.append(mK(t, rt, i) if i < 4 else mV(t, rt, i - 4))
        base[t] = tl.add(M)
    vord = [(2*n1 + u, d) for n1 in range(4) for d in range(4) for u in range(2)]
    base[14] = tl.add([mV(14, rt, d) for rt, d in vord] + [mV(15, rt, d) for rt, d in vord])
    base[15] = tl.add([mK(t, rt, d) for rt in range(8) for d in range(4) for t in (14, 15)])
    order2 = [(aa, i) for i in range(12) for aa in (range(4) if i % 2 == 0 else range(3, -1, -1))]
    spareA = [A(32 + 4*i) for i in range(8)] + [A(192 + 4*i) for i in range(14)]
    freeV = [VB[2*f + 1] for f in range(16)] + [VB[2*f] for f in range(10)]
    loc = dict(zip(order2, spareA + freeV)); assert len(loc) == 48
    MIG = opt("mig", 10)
    lateV = [VB[2*f] for f in range(10, 16)] + [VB[32 + i] for i in range(24)]
    migr = {}
    for k, key in enumerate(order2[:22]): migr[key] = (16 + MIG + k // 6, lateV[k])
    spareV = lateV[22:]
    def loc_at(key, t): return migr[key][1] if key in migr and t > migr[key][0] else loc[key]
    m2 = lambda t, aa, i: mfma(loc_at((aa, i), t), fW2(t & 1, i), fX2(t & 1, aa), "0" if t == 16 else None)
    for t in range(16, 32): base[t] = tl.add([m2(t, aa, i) for aa, i in order2])
    qord = [(aa, i) for aa in range(4) for i in range(8)]
    base[32] = tl.add([m2(32, *k) for k in qord[:24]] + [m2(33, *k) for k in qord[:24]])
    base[33] = tl.add([m2(t, *k) for k in qord[24:] for t in (32, 33)] + [m2(t, aa, 8 + T) for aa in range(4) for T in range(4) for t in (32, 33)])
    fin = {}
    for k, key in enumerate(qord[:24]): fin[key] = base[32] + 24 + k
    for k, key in enumerate(qord[24:]): fin[key] = base[33] + 2*k + 1
    for aa in range(4):
        for T in range(4): fin[(aa, 8 + T)] = base[33] + 16 + 2*(aa*4 + T) + 1
    acc2 = lambda aa, i: loc_at((aa, i), 99)

    Q = lambda aa, s: acc2(aa, 2*s)
    Cb = lambda G, u, a2: spareV[4*G + 2*u + a2]
    Sb = lambda b, ch: acc2(b, 2*ch + 1)
    Pb = lambda b, a2: acc2(2, 2*(2*b + a2) + 1)
    Ol = [acc2(aa, 8 + T) for aa in range(4) for T in range(4)]
    XV = [acc2(3, 2*s + 1) for s in range(4)]
    def O(aa, dt): return A(4*(aa*8 + dt)) if aa < 2 else Ol[(aa - 2)*8 + dt]
    Kf = lambda u, s: A(192 + 4*(u*4 + s))
    Vf = lambda dt: A(64 + 4*dt)
    Ls = lambda aa: A(224 + 4*aa)
    ONE = A(240)
    sreg = lambda b, e: Sb(b, e >> 2).b + (e & 3)
    vB, vNEG, vOmg = "v5", "v6", 8
    qk = lambda G, b: [mfma(Sb(b, 2*u + a2), Kf(u, s), Q(2*G + a2, s), Cb(G, u, a2) if s == 0 else None) for u in range(2) for a2 in range(2) for s in range(4)]
    def pv(G, b, c=None): return [mfma(O(2*G + a2, dt), Vf(dt), Pb(b, a2), c) for dt in range(8) for a2 in range(2)] + [mfma(Ls(2*G + a2), ONE, Pb(b, a2), c) for a2 in range(2)]
    ex = lambda b, e: f"v_exp_f32 v{sreg(b,e)}, v{sreg(b,e)}"
    cv = lambda b, i: f"v_cvt_pk_bf16_f32 v{Pb(b, (i>>1)&1).b + 2*(i>>2) + (i&1)}, v{sreg(b,2*i)}, v{sreg(b,2*i+1)}"
    bQs = tl.add(qk(0, 0)); bQl = tl.add(qk(1, 1))
    end = len(tl)

    extra_wait = {}
    KVSIG = opt("kvsig", 12); WASIG = opt("wasig", 8)
    extra_wait[WASIG] = "@u1s"; extra_wait[16 + KVSIG] = "@kv,@u2s"
    catch = {0: [act_dma(1, 1), wt_dma(2), wt_dma(3)], 1: [act_dma(2, 0), wt_dma(4), act_dma(2, 1)], 2: [wt_dma(5), act_dma(3, 0), wt_dma(6)], 3: [act_dma(3, 1), wt_dma(7), act_dma(4, 0)]}
    RPF = opt("rpf", 15)
    recs = {16 + RPF + i: i - 1 for i in range(18 - RPF)}
    for t in range(34):
        b = base[t]; n = (base[t+1] if t < 33 else bQs) - b
        tags = []
        if t < 33: tags += [f"@w{t+1}", f"@c{(t+1) >> 1}"]
        else: tags += ["@r0"]
        if t in extra_wait: tags.append(extra_wait[t])
        tl.force(b, [f"s_waitcnt vmcnt({','.join(tags)})"]); tl.force(b + 1, ["s_barrier"], lock=True)
        wpos = {14: 31, 32: 23}.get(t, n - 1)
        tl.force(b + wpos, ["s_waitcnt lgkmcnt(0)"])
        if t in (14, 32): tl.seq(reads(t + 1), b + 2, b + wpos - 7, step=1)
        if t in catch: grp = catch[t]
        else:
            grp = []
            if t + 4 < 34: grp.append(wt_dma(t + 4))
            st, hf = (t + 5) >> 1, 1 - (t & 1)
            if st < 17: grp.append(act_dma(st, hf))
            if t in recs:
                if recs[t] == -1:
                    grp.append(([[f"s_lshl_b32 {sKst}, {sWave}, 12", f"s_mul_i32 {sVst}, {sH}, {HS}", f"s_add_u32 {sVst}, {sVst}, {sKst}"]], []))
                grp.append(rec_dma(recs[t]))
        put_dmas(tl, grp, b + (16 if t in (14, 32) else 4), b + n - 2)
        if t == 15:
            g = tl.seq([f"s_lshr_b32 {t3}, {sWave}, 1", f"s_lshl_b32 {t3}, {t3}, 14", f"s_lshl_b32 {t2}, {sWave}, 13", f"s_sub_u32 {t3}, {t2}, {t3}", f"s_and_b32 {t2}, {sWave}, 1", f"s_lshl_b32 {t2}, {t2}, 12"], base[14] + 34)
            g = tl.seq([f"v_add_u32 {vC0}, {t3}, {vC0}", f"v_add_u32 {vC1}, {t3}, {vC1}"] + [f"v_subrev_u32 {p}, {t2}, {p}" for p in vWp], g + 1, b)
            R_ = reads(16); g = tl.seq(R_[:6], b + 2, step=2)
            for k, r in enumerate(R_[6:]): g = tl.put(r, max(g + 1, b + 8*((k//2 if k < 4 else k - 2) + 1)))
            assert g < b + n - 8
        elif t not in (14, 32, 33):
            g = tl.seq(reads(t + 1), b + 2, b + n - 9, step=2)
        if t % 2 == 0 and t < 32:
            d = -65536 if (t >> 1) % 3 == 2 else 32768
            tl.put([f"v_add_u32 {vC0}, {d}, {vC0}", f"v_add_u32 {vC1}, {d}, {vC1}"], b + (25 if t == 14 else n - 8), b + (33 if t == 14 else n - 1))

    g = put_unit(tl, 1, base[opt("u1", 2)] + 2, base[opt("u1p", 4)] + 20)
    assert g < base[WASIG - 1], (g, base)
    g = tl.seq([f"s_lshl_b32 {t0}, {sH}, 2", f"v_mov_b32 v30, {t0}"], g)
    g = put_check(tl, "CK_Z", f"buffer_load_dword v31, v30, {srd(rD)}, 0 offen sc1", "v31", 1, "ckz", g + 1, g + 40)
    assert g < base[WASIG], (g, base)
    tl.put(f"buffer_atomic_add {vOne}, {vSig}, {srd(rWS)}, {sSig} offen sc1", base[WASIG] + 2)
    g = put_unit(tl, 2, max(g + 1, base[opt("u2", 7)] + 2), base[opt("u2p", 9)] + 20)
    assert g < base[11] + 2, (g, base)
    g = tl.put("v_mov_b32 v29, 0", g)
    g = put_check(tl, "CK_WA", f"buffer_load_dword v30, v29, {srd(rWS)}, {sFH} offen sc1", "v30", 8, "ckwa", base[11] + 8, base[11] + 50)
    assert g < base[12] + 2, (g, base)

    def pack(d, s0, s1): return [f"v_cvt_pk_bf16_f32 v{d.b}, v{s0.b}, v{s0.b+1}", f"v_cvt_pk_bf16_f32 v{d.b+1}, v{s0.b+2}, v{s0.b+3}",
                                 f"v_cvt_pk_bf16_f32 v{d.b+2}, v{s1.b}, v{s1.b+1}", f"v_cvt_pk_bf16_f32 v{d.b+3}, v{s1.b+2}, v{s1.b+3}"]
    SST = opt("sst", 16); SS0 = opt("ss0", 9)
    g = 0; gs_ = base[14] + 44; first_use = {loc[k].p + str(loc[k].b): base[16] + i for i, k in enumerate(order2)}
    for key, (tm, blk) in migr.items(): first_use[blk.p + str(blk.b)] = base[tm]
    def store(blk, sbase, off, k, gmin):
        nonlocal gs_
        gg = tl.put(f"s_add_u32 {t1}, {sbase}, {off & ~4095}", max(gmin, gs_))
        gg = tl.put(f"buffer_store_dwordx4 {blk(4)}, {vL16}, {srd(rWS)}, {t1} offen offset:{off & 4095} sc1 ;@kv", gg + 1)
        assert gg + 1 < first_use.get(repr(blk), 1 << 30), ("store late", k, gg, first_use.get(repr(blk)))
        gs_ = gg + (SS0 if k < 10 else SST) - 1
        return gg
    packed = []
    for f in range(16):
        g = tl.seq(pack(VB[2*f], VB[2*f], VB[2*f+1]), max(g, base[14] + 33 + 2*f + 7))
        assert g < first_use.get(repr(VB[2*f+1]), 1 << 30)
        store(VB[2*f], sVst, (f >> 2)*16384 + (f & 3)*1024, f, g + 1)
    lastst = {}
    for f in range(16):
        rt, s1 = f >> 1, f & 1
        s0_, s1_ = accK(rt, 2*s1), accK(rt, 2*s1 + 1); ins = []
        gmin = max(g, base[15] + 4*f + 3 + 7)
        if s0_.p == "a":
            tb = TMP + 8*(f & 1)
            ins += [f"v_accvgpr_read_b32 v{tb+q}, a{s0_.b+q}" for q in range(8)]
            s0_, s1_ = V(tb), V(tb + 4); gmin = max(gmin, lastst.get(f - 2, 0) + 2, gs_ - 14)
        ins += [f"v_mul_f32 v{x.b+q}, {sScale}, v{x.b+q}" for x in (s0_, s1_) for q in range(4)]
        g = tl.seq(ins + pack(s0_, s0_, s1_), gmin)
        assert g < first_use.get(repr(s1_), 1 << 30)
        lastst[f] = store(s0_, sKst, (rt >> 1)*16384 + (rt & 1)*4096 + s1*1024, 16 + f, g + 1)
    assert lastst[15] < base[16 + KVSIG] - 20, (lastst[15], base)
    print("last kv store at P2 k-step", max(t for t in base if base[t] <= lastst[15]) - 16, file=sys.stderr)
    tl.put(f"buffer_atomic_add {vOne}, {vSig}, {srd(rWS)}, {sSig} offen offset:4 sc1", base[16 + KVSIG] + 2)
    g = tl.seq(["v_mov_b32 v29, 0", f"v_and_b32 v28, 31, {vLane}", "v_lshlrev_b32 v28, 2, v28"], lastst[15] + 3)
    g = put_check(tl, "CK_ZA", f"buffer_load_dword v30, v28, {srd(rD)}, 0 offen sc1", "v30", 1, "ckza", g + 1, g + 40)
    assert g < base[15 + RPF]
    g = put_check(tl, "CK_KV", f"buffer_load_dword v30, v29, {srd(rWS)}, {sFH} offen offset:4 sc1", "v30", 8, "ckkv", base[15 + RPF] + 4, base[15 + RPF] + 36)
    assert g < base[16 + RPF] + 2
    gmig = 0
    for key, (tm, blk) in migr.items():
        pos = base[tm] + order2.index(key)
        gg = tl.seq([f"v_accvgpr_read_b32 v{blk.b+q}, a{loc[key].b+q}" for q in range(4)], pos + 8)
        assert gg < base[tm + 1] + (order2.index(key) if tm < 31 else 0) - 2
        gmig = max(gmig, gg)
    lastmig = max(tm for tm, _ in migr.values())
    g = gmig + 1
    g = tl.seq([f"v_mov_b32 v16, 0x3f803f80"] + [f"v_accvgpr_write_b32 a{ONE.b+q}, v16" for q in range(4)] + [f"v_accvgpr_write_b32 a{Ls(2).b+q}, 0" for q in range(8)]
               + [f"v_mov_b32 v{Cb(G,u,a2).b+r}, 0" for G in range(2) for u in range(2) for a2 in range(2) for r in range(4)]
               + [f"v_lshlrev_b32 v16, 2, {vG}", f"v_sub_u32 v16, {vN}, v16"] + [f"v_cmp_gt_i32 s[{sTri[r]}:{sTri[r]+1}], {r}, v16" for r in range(4)]
               + [f"v_add_u32 v17, 48, {vN}", "v_lshlrev_b32 v17, 2, v17", f"v_lshlrev_b32 v18, 16, {vG}", f"v_lshl_add_u32 v18, {vN}, 4, v18", "v_add_u32 v19, 0x8000, v18",
                  f"v_mov_b32 v20, {OOB}", f"v_cmp_eq_u32 s[96:97], 3, {vG}"], g)
    g = tl.put("v_cndmask_b32 v19, v19, v20, s[96:97]", g + 2)
    g = tl.put(f"v_mov_b32 {vNEG}, {NEG:#x}", max(g, base[31]))
    def diag(G):
        o = []
        for r in range(4):
            for u in range(2): o.append(f"v_cndmask_b32 v{Cb(G,u,u).b+r}, v{Cb(G,u,u).b+r}, {vNEG}, s[{sTri[r]}:{sTri[r]+1}]")
            o.append(f"v_mov_b32 v{Cb(G,1,0).b+r}, {vNEG}")
        return o
    STUBS.extend(["D0:"] + diag(0) + ["s_branch D0_R"])
    g = tl.put([f"s_cmp_eq_u32 {sGs}, 0", "s_cbranch_scc1 D0\nD0_R:"], g + 1, lock=True)
    assert g < base[33]
    g = tl.seq([f"s_lshl_b32 {t1}, {sH}, 18", f"s_add_u32 {t1}, {t1}, {WS_QA}", f"s_lshl_b32 {t2}, {sGs}, 9", f"s_add_u32 {t2}, {t2}, {t1}", f"s_lshl_b32 {t3}, {sGl}, 9", f"s_add_u32 {t3}, {t3}, {t1}"], g + 1)
    g = 0
    for aa in range(4):
        for s in range(4): g = tl.seq(pack(Q(aa, s), acc2(aa, 2*s), acc2(aa, 2*s + 1)), max(g, fin[(aa, 2*s + 1)] + 7))
    assert g < bQs - 2
    tl.seq([f"ds_read_b128 {Kf(i>>2, i&3)(4)}, {vL16} offset:{2*16384 + i*1024}" for i in range(8)], base[33] + 2, bQs - 8)
    g = 0; tail = []
    for aa in range(4):
        ins = [f"ds_bpermute_b32 v{vOmg+aa}, v17, v{acc2(aa,8).b+3}"]
        for hf in range(2):
            d = acc2(aa, 8 + 2*hf)
            ins += pack(d, d, acc2(aa, 9 + 2*hf))
            ins.append(f"buffer_store_dwordx4 {d(4)}, v{18+hf}, {srd(rWS)}, {t2 if aa < 2 else t3} offen offset:{(aa & 1)*256} sc1 ;@qa")
        g = tl.seq(ins, max(g, fin[(aa, 11)] + 7))
    nrec = 18 - RPF - 1
    tl.force(bQl - 1, ["s_waitcnt vmcnt(@r1)"]); tl.force(bQl, ["s_barrier"])
    lines = tl.lines()
    L += lines
    L += stamp(2)
    for i in range(8): a(f"ds_read_b128 {Vf(i)(4)}, {vL16} offset:{3*16384 + 8192 + i*1024}")
    def maxsub(G, b):
        o = []; m = [TMP + 8 + 2*a2 for a2 in range(2)]
        for a2 in range(2):
            r = [sreg(b, 4*(2*u + a2) + q) for u in range(2) for q in range(4)]
            o += [f"v_max3_f32 v{m[a2]}, v{r[0]}, v{r[1]}, v{r[2]}", f"v_max3_f32 v{m[a2]+1}, v{r[3]}, v{r[4]}, v{r[5]}"]
        for a2 in range(2):
            r = [sreg(b, 4*(2*u + a2) + q) for u in range(2) for q in range(4)]
            o += [f"v_max3_f32 v{m[a2]}, v{m[a2]}, v{r[6]}, v{r[7]}", f"v_max_f32 v{m[a2]}, v{m[a2]}, v{m[a2]+1}"]
        for sw in ("v_permlane32_swap_b32", "v_permlane16_swap_b32"):
            o += [f"v_mov_b32 v{x+1}, v{x}" for x in m] + ["s_nop 1"] + [f"{sw} v{x+1}, v{x}" for x in m] + ["s_nop 0"] + [f"v_max_f32 v{x}, v{x}, v{x+1}" for x in m]
        o += [f"v_sub_f32 v{sreg(b,e)}, v{sreg(b,e)}, v{m[(e >> 2) & 1]}" for e in range(16)]
        c = [f"v_sub_f32 v{Cb(G,u,a2).b+r}, v{Cb(G,u,a2).b+r}, v{m[a2]}" for u in range(2) for a2 in range(2) for r in range(4)]
        return o, c
    rest = [x for n in range(nrec, RING - 1) for x in flat(rec_dma(n))]
    o, c = maxsub(0, 0)
    body = o + c
    for e in range(16):
        body.append(ex(0, e))
        if e >= 3 and e % 2 == 1: body.append(cv(0, (e - 3) // 2))
    o, c = maxsub(1, 1)
    body += o[:1] + [cv(0, 7)] + o[1:] + c
    body += [f"v_mov_b32 v{blk.b+q}, 0" for blk in Ol for q in range(4)]
    L += sprinkle(body, rest, 5)
    for i in range(8): a(f"ds_read_b128 {Kf(i>>2, i&3)(4)}, {vL16} offset:{3*16384 + i*1024}")
    a("s_waitcnt lgkmcnt(8)")
    tp = Timeline(); tp.add(pv(0, 0, "0"))
    items = []
    for e in range(13):
        items.append(ex(1, e))
        if e >= 3 and e % 4 == 3: items.append([cv(1, (e - 3) // 2), cv(1, (e - 3) // 2 + 1)])
    tp.seq(items, 0, step=1)
    tp.seq([f"s_add_u32 {sKg}, {sVst}, {RING*16384}", f"s_add_u32 {sKl}, {sKst}, {((RING - 1 + 3) % RING)*16384}",
            f"s_lshl_b32 {t0}, {sJ}, 16", f"s_sub_u32 {t0}, {64*16384}, {t0}", f"s_add_u32 {sLast}, {sVst}, {t0}",
            f"s_mov_b32 {sBo}, {3*16384}", f"s_mov_b32 {sN}, 1", f"s_mov_b32 {sCnt}, {sGs}", f"s_mov_b32 {sDone}, 0"], 0)
    tp.put(f"v_add_u32 {vB}, {3*16384}, {vL16}", 16)
    tp.put("s_waitcnt vmcnt(@qa) lgkmcnt(0)", 16)
    tp.force(17, ["s_barrier"])
    L += tp.lines()
    a(f"buffer_atomic_add {vOne}, {vSig}, {srd(rWS)}, {sSig} offen offset:8 sc1")
    L += stamp(3)
    a(f"s_cmp_eq_u32 {sGs}, 0"); a("s_cbranch_scc1 L_TRANS")
    a(f"s_cmp_eq_u32 {sGs}, 1"); a("s_cbranch_scc1 L_DX")
    pre = resolve_waits("\n".join(L).split("\n"))

    KPOS = [8, 8, 12, 14, 14, 16, 20, 22]; VPOS = [22, 24, 28, 32, 34, 34, 36, 40]; DPOS = [10, 18, 26, 30]
    def half(mode, hb):
        sal, ds, va = {}, {}, {}
        add = lambda d, g, x: d.setdefault(g, []).append(x)
        for e in range(16):
            p = 9 + 2*e
            add(va, p % 34, ex(hb if p < 34 else 1 - hb, e))
        for i in range(8):
            p = 12 + 4*i
            add(va, p % 34, cv(hb if p < 34 else 1 - hb, i))
        newrec = mode != "D" or hb == 0
        if mode == "S" or (mode == "D" and hb == 1):
            for i in range(8): add(ds, KPOS[i], f"ds_read_b128 {Kf(i>>2,i&3)(4)}, {vB} offset:{i*1024}")
        for i in range(8):
            if (VPOS[i] < 34 and newrec) or (VPOS[i] >= 34 and (mode != "D" or hb == 1)):
                add(ds, VPOS[i] % 34, f"ds_read_b128 {Vf(i)(4)}, {vB} offset:{8192 + i*1024}")
        if newrec:
            add(sal, 0, f"s_add_u32 {sBo}, {sBo}, 16384"); add(sal, 1, f"s_and_b32 {sBo}, {sBo}, {RING*16384 - 1}")
            add(va, 7, f"v_add_u32 {vB}, {sBo}, {vL16}")
            add(sal, 3, f"s_waitcnt vmcnt({0 if mode == 'F' else 4*(RING-3)})"); add(sal, 4, "s_barrier")
            if mode != "F":
                add(sal, 2, f"s_cmp_le_u32 {sKg}, {sLast}"); add(sal, 5, f"s_cselect_b32 {sT}, {sKg}, {OOB}"); add(sal, 9, f"s_mov_b32 m0, {sKl}")
                for q in range(4): add(ds, DPOS[q], f"buffer_load_dwordx4 {vL16}, {srd(rWS)}, {sT} offen offset:{q*1024} sc1 lds")
                add(sal, 11, f"s_add_u32 {sKg}, {sKg}, 16384"); add(sal, 13, f"s_add_u32 {sKl}, {sKl}, 16384"); add(sal, 17, f"s_and_b32 {sKl}, {sKl}, {RING*16384 - 1}")
                add(sal, 19, f"s_add_u32 {sN}, {sN}, 1")
        if mode == "S": add(sal, 15, "s_waitcnt lgkmcnt(5)"); add(sal, 31, "s_waitcnt lgkmcnt(3)")
        if mode == "F": add(sal, 15, "s_waitcnt lgkmcnt(0)")
        if mode == "D" and hb == 1: add(sal, 15, "s_waitcnt lgkmcnt(5)"); add(sal, 31, "s_waitcnt lgkmcnt(0)")
        if hb == 1: add(sal, 29, f"s_cmp_lt_u32 {sN}, {sCnt}")
        return sal, ds, va
    def emit(mf, f):
        sal, ds, va = f
        return weave(mf, {g: sal.get(g, []) + ds.get(g, []) + va.get(g, []) for g in range(len(mf))})
    D = ["L_DUAL:"] + emit(qk(0, 0) + pv(1, 1), half("D", 0)) + emit(qk(1, 1) + pv(0, 0), half("D", 1)) + ["s_cbranch_scc1 L_DUAL"]
    DX = [f"s_cmp_lg_u32 {sDone}, 0", "s_cbranch_scc1 L_TRANS", "L_DX:"] + diag(0) + [f"s_mov_b32 {sDone}, 1", "s_branch L_DUAL"]
    sZ = sAb
    def zbase(): return [f"s_mul_i32 {sZ}, {sGs}, {Z_RT}", f"s_lshl_b32 {t0}, {sH}, 14", f"s_add_u32 {sZ}, {sZ}, {t0}", f"s_add_u32 {sZ}, {sZ}, {WS_Z}"]
    tb = [V(TMP), V(TMP + 4), V(TMP + 8), V(TMP + 12)]
    def epilogue(G):
        o = []; sc = XV[0].b
        for a2 in range(2):
            aa = 2*G + a2
            o += [f"v_mul_f32 v{vOmg+aa}, {f2u(LOG2E):#x}, v{vOmg+aa}", f"v_accvgpr_read_b32 v{sc+2*a2}, a{Ls(aa).b}", f"v_exp_f32 v{vOmg+aa}, v{vOmg+aa}"]
        o += ["s_nop 0"]
        for a2 in range(2): o.append(f"v_fma_f32 v{sc+2*a2}, v{sc+2*a2}, v{vOmg+2*G+a2}, v{sc+2*a2}")
        for a2 in range(2): o.append(f"v_rcp_f32 v{sc+2*a2}, v{sc+2*a2}")
        o += ["s_nop 0"]
        for a2 in range(2): o.append(f"v_mov_b32 v{sc+2*a2+1}, v{sc+2*a2}")
        k = 0
        for s in range(4):
            o.append(f"s_add_u32 {t0}, {sZ}, {s*4096}")
            for a2 in range(2):
                aa = 2*G + a2; x0, x1 = O(aa, 2*s), O(aa, 2*s + 1)
                if x0.p == "a":
                    y0, y1 = tb[2*(k & 1)], tb[2*(k & 1) + 1]; k += 1
                    o += [f"v_accvgpr_read_b32 v{y.b+q}, a{x.b+q}" for x, y in ((x0, y0), (x1, y1)) for q in range(4)]
                    x0, x1 = y0, y1
                o += [f"v_pk_mul_f32 v[{x.b+q}:{x.b+q+1}], v[{x.b+q}:{x.b+q+1}], v[{sc+2*a2}:{sc+2*a2+1}]" for x in (x0, x1) for q in (0, 2)]
                o += pack(x0, x0, x1)
                o.append(f"buffer_store_dwordx4 {x0(4)}, {vL16}, {srd(rWS)}, {t0} offen offset:{aa*1024} sc1 ;@z")
        return o
    X = ["L_TRANS:"] + stamp(4) + zbase() + [f"s_mov_b32 {sCnt}, {sGl}", f"s_cmp_ge_u32 {sWave}, 2", "s_cbranch_scc1 L_NOSE", "s_nop 1"]
    SE = epilogue(0)
    X2 = ["L_NOSE:", f"s_cmp_ge_u32 {sN}, {sCnt}", "s_cbranch_scc1 L_FIN"]
    Sg = ["L_SINGLE:"] + emit(qk(1, 0) + pv(1, 1), half("S", 0)) + emit(qk(1, 1) + pv(1, 0), half("S", 1)) + ["s_cbranch_scc1 L_SINGLE"]
    check_scc(D); check_scc(Sg)

    E = ["L_FIN:"] + stamp(5) + diag(1); a = E.append
    vFl, vFa = XV[1].b, XV[1].b + 2
    a(f"v_and_b32 v{vFa}, 31, {vLane}"); a(f"v_lshlrev_b32 v{vFa}, 10, v{vFa}")
    a(f"s_mov_b32 {t3}, {WS_FL + 512}")
    sal, ds, va = half("F", 0)
    ldQ = f"buffer_load_dword v{vFl+1}, v{vFa}, {srd(rWS)}, {t3} offen offset:8 sc1"
    ds.setdefault(10, []).append(ldQ + " ;@fq")
    E += emit(qk(1, 0) + pv(1, 1), (sal, ds, va))
    xbar = lambda k: [f"s_cmp_lt_u32 {sWave}, {k}", f"s_cbranch_scc1 L_XB{k}", "s_barrier", f"L_XB{k}:"]
    for i in range(4, 8): a(f"ds_read_b128 {Vf(i)(4)}, {vB} offset:{8192 + i*1024}")
    a(ex(0, 13)); a(ex(0, 14)); a(ex(0, 15)); E += xbar(1); a(cv(0, 6)); a(cv(0, 7))
    for nm, ld, rg, want, tg in (("CK_QA", ldQ, f"v{vFl+1}", 8, "fq"),):
        w, c, b = check(nm, ld, rg, want, f"s_waitcnt vmcnt(@{tg})")
        E += w + c + ["s_nop 4"] + b
    a("s_waitcnt lgkmcnt(0)")
    sLa = sAl
    tp = Timeline(); tp.add(pv(1, 0))
    pre_ = [f"s_lshl_b32 {t1}, {sH}, 18", f"s_add_u32 {t1}, {t1}, {WS_QA}", f"s_lshl_b32 {t2}, {sGs}, 9", f"s_add_u32 {t2}, {t2}, {t1}", f"s_lshl_b32 {t3}, {sGl}, 9", f"s_add_u32 {t3}, {t3}, {t1}",
            f"s_lshl_b32 {sLa}, {sWave}, 13", f"s_add_u32 {sLa}, {sLa}, {131072}"]
    tp.seq(pre_, 0)
    E += tp.lines()
    a("s_mov_b32 exec_hi, 0xffff")
    for G in range(2):
        for c in range(2, 7):
            a(f"s_add_u32 m0, {sLa}, {(G*5 + c - 2)*768}"); a(f"s_add_u32 {sT}, {t3 if G else t2}, {c*32768 - 256}")
            a(f"buffer_load_dwordx4 {vL16}, {srd(rWS)}, {sT} offen sc1 lds ;@la")
    a("s_mov_b32 exec_hi, -1")
    vRow, vLa = XV[2].b, XV[2].b + 1
    qr = [Cb(0, 0, 0), Cb(0, 0, 1)]
    a(f"v_and_b32 v{vRow+2}, 31, {vLane}"); a(f"v_cmp_lt_u32 vcc, 31, {vLane}"); a(f"v_mov_b32 v{vRow}, {sGs}"); a(f"v_mov_b32 v{vRow+3}, {sGl}")
    a(f"v_cndmask_b32 v{vRow}, v{vRow}, v{vRow+3}, vcc"); a(f"v_lshl_add_u32 v{vRow}, v{vRow}, 5, v{vRow+2}"); a(f"v_lshlrev_b32 v{vRow+3}, 4, v{vRow}")
    a(f"buffer_load_dwordx4 {qr[0](4)}, v{vRow+3}, {srd(rWS)}, {t1} offen sc1 ;@la"); a(f"s_add_u32 {t1}, {t1}, 32768")
    a(f"buffer_load_dwordx4 {qr[1](4)}, v{vRow+3}, {srd(rWS)}, {t1} offen sc1 ;@la")
    a(f"v_lshrrev_b32 v{vLa}, 5, {vLane}"); a(f"v_mul_u32_u24 v{vLa}, 3840, v{vLa}"); a(f"v_lshl_add_u32 v{vLa}, v{vRow+2}, 4, v{vLa}"); a(f"v_add_u32 v{vLa}, {sLa}, v{vLa}")
    E += xbar(2)
    E += epilogue(1)
    E += xbar(3)
    E1 = [f"s_cmp_lt_u32 {sWave}, 2", "s_cbranch_scc1 L_NOSE2"]
    E2 = ["L_NOSE2:"] + stamp(6); a = E2.append
    a(f"v_mov_b32 v5, v{vRow}"); a(f"v_mov_b32 v6, v{vLa}")
    a(f"v_add_u32 v7, 4096, {vL16}"); a(f"v_add_u32 v8, 8192, {vL16}")
    sRt, sCt, sZb, sWob, sZp, sWp, sRot, sFz = sCb, sCk, sCc, sCc2, sWb, sWk, sWc, sAc
    a(f"s_and_b32 {sRot}, {sSlot}, 3"); a(f"s_lshl_b32 {sRt}, {sX}, 2"); a(f"s_add_u32 {sRt}, {sRt}, {sRot}"); a(f"s_lshr_b32 {sCt}, {sSlot}, 2")
    a(f"s_add_u32 {sRot}, {sRot}, {sCt}")
    if not opt("rot4", 1): a(f"s_mov_b32 {sRot}, 0")
    a(f"s_mul_i32 {sZb}, {sRt}, {Z_RT}"); a(f"s_add_u32 {sZb}, {sZb}, {WS_Z}"); a(f"s_mul_i32 {sWob}, {sCt}, {WO_CT}"); a(f"s_add_u32 {sWob}, {sWob}, {WS_WO}")
    a(f"s_lshl_b32 {sFz}, {sGs}, 10"); a(f"s_lshr_b32 {t0}, {sH}, 3"); a(f"s_lshl_b32 {t0}, {t0}, 7"); a(f"s_add_u32 {sFz}, {sFz}, {t0}"); a(f"s_add_u32 {sFz}, {sFz}, {WS_FL}")
    RW = opt("rw", 4)
    def pair_off(p, dst, basereg, mul):
        if p < 16: o = [f"s_add_u32 {t0}, {sRot}, {p}", f"s_and_b32 {t0}, {t0}, {RW-1}", f"s_lshl4_add_u32 {t0}, {sWave}, {t0}", f"s_add_u32 {t0}, {t0}, {p & ~(RW-1)}"]
        else: o = [f"s_add_u32 {t0}, {sWave}, {64 + 4*(p - 16)}"]
        o += [f"s_mul_i32 {t0}, {t0}, {mul}", f"s_add_u32 {dst}, {basereg}, {t0}"]
        if p == 18: o += [f"s_cmp_eq_u32 {sWave}, 0", f"s_cselect_b32 {dst}, {dst}, {OOB}"]
        return o
    vo = [vL16, "v7", "v8"]; NW = 7; NZ = 3
    wbuf = lambda p: A(36*(p % NW)); zbuf = lambda p: V(128 + 32*(p % NZ)); acc4 = lambda aa, i: V(32 + 4*(aa*6 + i))
    def wloads(p): return pair_off(p, sWp, sWob, 9216), [f"buffer_load_dwordx4 {(wbuf(p)+4*i)(4)}, {vo[i>>2]}, {srd(rWS)}, {sWp} offen offset:{(i&3)*1024} sc1 ;@W{p}" for i in range(9)]
    def zloads(p): return pair_off(p, sZp, sZb, 8192), [f"buffer_load_dwordx4 {(zbuf(p)+4*i)(4)}, {vo[i>>2]}, {srd(rWS)}, {sZp} offen offset:{(i&3)*1024} sc1 ;@Z{p}" for i in range(8)]
    s_, l_ = wloads(0); E2 += s_ + l_
    a("s_waitcnt vmcnt(9)")
    a(f"buffer_atomic_add {vOne}, {vSig}, {srd(rWS)}, {sFz} offen sc1")
    for q in range(8): a(f"v_mov_b32 v{16+q}, v{qr[q>>2].b + (q&3)}")
    LA = []; a = LA.append
    Kr = lambda w: 32 + 8*w; Xr = lambda w: 96 + 4*w; Vr = lambda w: 128 + 8*w
    for w in range(8):
        o = (16 - 2*w)*16
        a(f"ds_read_b128 v[{Xr(w)}:{Xr(w)+3}], v6 offset:{o + 4*768}"); a(f"ds_read_b128 v[{Kr(w)}:{Kr(w)+3}], v6 offset:{o}"); a(f"ds_read_b128 v[{Kr(w)+4}:{Kr(w)+7}], v6 offset:{o + 768}")
    a("s_waitcnt lgkmcnt(0)")
    for w in range(8):
        o = (16 - 2*w)*16
        a(f"ds_read_b128 v[{Vr(w)}:{Vr(w)+3}], v6 offset:{o + 2*768}"); a(f"ds_read_b128 v[{Vr(w)+4}:{Vr(w)+7}], v6 offset:{o + 3*768}")
    lg = 24
    a(f"v_and_b32 v9, 0xffff, v{Xr(0)+1}"); a(f"v_and_b32 v11, 0xffff0000, v{Xr(0)+1}")
    for w in range(8): a(f"v_dot2_f32_bf16 v{lg+w}, v{Xr(w)+2}, v{Xr(0)+3}, 0")
    for w in range(8): a(f"v_dot2_f32_bf16 v{lg+w}, v{Xr(w)}, v9, v{lg+w}")
    for i in range(8):
        for w in range(8): a(f"v_dot2_f32_bf16 v{lg+w}, v{16+i}, v{Kr(w)+i}, v{lg+w}")
    a(f"v_mov_b32 v9, {NEG:#x}"); a(f"v_mul_f32 v11, {f2u(-LOG2E):#x}, v11"); a("v_exp_f32 v11, v11")
    for w in range(1, 8, 2):
        a(f"v_cmp_gt_u32 vcc, {2*w}, v5")
        if w < 7: a(f"v_cmp_gt_u32 s[{sTri[0]}:{sTri[0]+1}], {2*w+2}, v5")
        else: a("s_nop 0")
        a("s_nop 0"); a(f"v_cndmask_b32 v{lg+w}, v{lg+w}, v9, vcc")
        if w < 7: a(f"v_cndmask_b32 v{lg+w+1}, v{lg+w+1}, v9, s[{sTri[0]}:{sTri[0]+1}]")
    a(f"v_max3_f32 v10, v{lg}, v{lg+1}, v{lg+2}"); a(f"v_max3_f32 v10, v10, v{lg+3}, v{lg+4}"); a(f"v_max3_f32 v10, v10, v{lg+5}, v{lg+6}"); a(f"v_max_f32 v10, v10, v{lg+7}")
    for w in range(8): a(f"v_sub_f32 v{lg+w}, v{lg+w}, v10")
    for w in range(8): a(f"v_mul_f32 v{lg+w}, {f2u(LOG2E / math.sqrt(18.0)):#x}, v{lg+w}")
    for w in range(8): a(f"v_exp_f32 v{lg+w}, v{lg+w}")
    for w in range(8): a(f"v_cvt_pk_bf16_f32 v{Kr(w)}, v{lg+w}, 0")
    for w in range(8): a(f"v_lshlrev_b32 v{Kr(w)+1}, 16, v{Kr(w)}")
    a(f"v_add_f32 v10, v{Kr(0)+1}, v{Kr(1)+1}")
    for w in range(2, 8): a(f"v_add_f32 v10, v10, v{Kr(w)+1}")
    a("v_fma_f32 v10, v10, v11, v10"); a("v_rcp_f32 v10, v10")
    a("s_waitcnt lgkmcnt(0)")
    ob = 192
    for w in range(8):
        cc = lambda r: "0" if w == 0 else f"v{r}"
        for i in range(8):
            for q in range(2): a(f"v_dot2_f32_bf16 v{ob+2*i+q}, v{Vr(w)+i}, v{Kr(w)+q}, {cc(ob+2*i+q)}")
        for q in range(2): a(f"v_dot2_f32_bf16 v{ob+16+q}, v{Xr(w)+2*q}, v{Kr(w)+1}, {cc(ob+16+q)}")
    a(f"v_lshlrev_b32 v9, 10, {vG}"); a(f"v_lshl_add_u32 v9, {vN}, 4, v9"); a("s_nop 0")
    for i in range(18): a(f"v_mul_f32 v{ob+i}, v10, v{ob+i}")
    for i in range(9): a(f"v_cvt_pk_bf16_f32 v{ob+i}, v{ob+2*i}, v{ob+2*i+1}")
    wl = []
    for p in range(1, NW):
        s_, l_ = wloads(p); wl += ["\n".join(s_ + l_[:1])] + l_[1:]
    E2 += sprinkle(LA, wl, len(LA) // (len(wl) + 1))
    a = E2.append
    a(f"s_mul_i32 {t1}, {sGs}, {Z_RT}"); a(f"s_add_u32 {t1}, {t1}, {WS_Z}")
    a(f"s_lshr_b32 {t2}, {sH}, 1"); a(f"s_add_u32 {t2}, {t2}, 128"); a(f"s_lshl_b32 {t2}, {t2}, 12"); a(f"s_add_u32 {t2}, {t2}, {t1}")
    a(f"s_and_b32 {t3}, {sH}, 1"); a(f"s_lshl_b32 {t3}, {t3}, 9"); a(f"s_add_u32 {t2}, {t2}, {t3}")
    a(f"buffer_store_dwordx4 v[{ob}:{ob+3}], v9, {srd(rWS)}, {t2} offen sc1"); a(f"buffer_store_dwordx4 v[{ob+4}:{ob+7}], v9, {srd(rWS)}, {t2} offen offset:256 sc1")
    a(f"s_lshr_b32 {t2}, {sH}, 4"); a(f"s_add_u32 {t2}, {t2}, 144"); a(f"s_lshl_b32 {t2}, {t2}, 12"); a(f"s_add_u32 {t2}, {t2}, {t1}")
    a(f"s_bfe_u32 {t3}, {sH}, {(2 << 16) | 2}"); a(f"s_lshl_b32 {t3}, {t3}, 8"); a(f"s_add_u32 {t2}, {t2}, {t3}")
    a(f"s_and_b32 {t3}, {sH}, 3"); a(f"s_lshl_b32 {t3}, {t3}, 2"); a(f"s_add_u32 {t2}, {t2}, {t3}")
    a(f"buffer_store_dword v{ob+8}, v9, {srd(rWS)}, {t2} offen sc1")
    a(f"s_lshl_b32 {t3}, {sRt}, 10"); a(f"s_add_u32 {t3}, {t3}, {WS_FL}"); a(f"s_lshl_b32 {t2}, {sWave}, 7")
    a(f"v_mov_b32 v10, {t2}"); a(f"v_and_b32 v11, 3, {vLane}"); a("v_lshlrev_b32 v11, 7, v11")
    ldB = f"buffer_load_dword v12, v10, {srd(rWS)}, {t3} offen sc1"
    a(ldB)
    E2 += stamp(7)
    w, c, b = check("CK_ZB", ldB, "v12", 8, "s_waitcnt vmcnt(0)")
    E2 += w + [f"buffer_atomic_add {vOne}, {vSig}, {srd(rWS)}, {sFz} offen offset:4 sc1"] + c + ["s_nop 4"] + b
    E2 += stamp(8)
    for p in range(NZ - 1):
        s_, l_ = zloads(p); E2 += s_ + l_
    def mfs4(p):
        return [mfma(acc4(aa, i if i < 4 else 4 + kk), wbuf(p) + 4*(4*kk + i if i < 4 else 8), zbuf(p) + 4*(4*kk + aa), "0" if p == 0 and (kk == 0 or i == 4) else None)
                for kk in range(2) for i in range(5) for aa in range(4)]
    wq = []
    for p in range(NW, 19):
        s_, l_ = wloads(p); wq += [(p, s_, l_[0])] + [(p, [], x) for x in l_[1:]]
    WR = opt("wr", 7)
    ldA = f"buffer_load_dword v12, v11, {srd(rWS)}, {t3} offen offset:4 sc1"
    for p in range(18):
        E2.append(f"s_waitcnt vmcnt(@Z{p},@W{p})")
        items = []
        if p == 14:
            w, c, b = check("CK_ZAA", ldA, "v12", 8, "s_waitcnt vmcnt(@fa)"); E2.extend(w + c + ["s_nop 4"] + b)
        if p == 13: items.append(([], ldA + " ;@fa"))
        if p + NZ - 1 < 19:
            s_, l_ = zloads(p + NZ - 1); items += [(s_, l_[0])] + [([], x) for x in l_[1:]]
        k = 0
        while wq and k < WR and wq[0][0] - NW < p:
            _, s_, x = wq.pop(0); items.append((s_, x)); k += 1
        tp = Timeline(); tp.add(mfs4(p)); g = 0
        for s_, x in items:
            if s_:
                for ch in range(0, len(s_), 2): g = tp.put(s_[ch:ch+2], g) + 1
            g = tp.put(x, g) + 2
        E2 += tp.lines()
    assert not wq
    a(f"s_cmp_lg_u32 {sWave}, 0"); a("s_cbranch_scc1 L_RED")
    a("s_waitcnt vmcnt(0)")
    E2 += mfs4(18)
    a("L_RED:")
    E2 += stamp(9)
    a(f"v_cmp_lt_u32 vcc, 31, {vLane}")
    a(f"s_mul_i32 {t0}, {sWave}, 20480"); a(f"v_add_u32 v5, {t0}, {vL16}"); a(f"s_mul_i32 {t0}, {sWave}, 5120"); a(f"v_add_u32 v6, {t0}, {vL16}")
    a("s_waitcnt vmcnt(0)"); a("s_barrier"); a("s_nop 1")
    for aa in range(4):
        for r in range(4): a(f"v_cndmask_b32 v{acc4(aa,4).b+r}, v{acc4(aa,4).b+r}, v{acc4(aa,5).b+r}, vcc")
    for aa in range(4):
        for i in range(5): a(f"ds_write_b128 v5, {acc4(aa,i)(4)} offset:{(aa*5 + i)*1024}")
    a("v_add_u32 v7, 40960, v6")
    a(f"s_sub_u32 {t0}, 63, {sRt}"); a(f"s_cmp_lt_u32 {sWave}, 2"); a(f"s_cselect_b32 {t0}, {sRt}, {t0}"); a(f"s_lshl_b32 {t0}, {t0}, 5")
    a(f"s_and_b32 {t1}, {sWave}, 1"); a(f"s_lshl_b32 {t1}, {t1}, 4"); a(f"s_add_u32 {t0}, {t0}, {t1}"); a(f"s_mul_i32 {t0}, {t0}, 1152")
    a(f"s_mul_i32 {t1}, {sCt}, 144"); a(f"s_add_u32 {t0}, {t0}, {t1}")
    a(f"v_mul_u32_u24 v10, 1152, {vN}"); a(f"v_lshl_add_u32 v8, {vG}, 5, v10"); a(f"v_lshl_add_u32 v10, {vG}, 3, v10")
    a(f"v_mov_b32 v9, {OOB}"); a("v_cndmask_b32 v9, v10, v9, vcc")
    a("s_waitcnt lgkmcnt(0)"); a("s_barrier")
    rd = lambda p: [f"ds_read_b128 v[{128 + 20*p + 4*i}:{131 + 20*p + 4*i}], {'v6' if p < 2 else 'v7'} offset:{(p & 1)*20480 + i*1024}" for i in range(5)]
    ad = lambda p: [f"v_pk_add_f32 v[{128+r}:{129+r}], v[{128+r}:{129+r}], v[{128+20*p+r}:{129+20*p+r}]" for r in range(0, 20, 2)]
    E2 += rd(0) + rd(1) + rd(2) + ["s_waitcnt lgkmcnt(5)"] + rd(3) + ad(1) + ["s_waitcnt lgkmcnt(5)"] + ad(2) + ["s_waitcnt lgkmcnt(0)"] + ad(3)
    for r in range(4): a(f"v_mov_b32 v{148+r}, v{144+r}")
    for r in range(4):
        a(f"v_cvt_pk_bf16_f32 v{32+2*r}, v{128+r}, v{132+r}"); a(f"v_cvt_pk_bf16_f32 v{33+2*r}, v{136+r}, v{140+r}")
    for r in range(4): a(f"v_permlane32_swap_b32 v{148+r}, v{144+r}")
    a(f"buffer_store_dwordx4 v[32:35], v8, {srd(rO)}, {t0} offen"); a(f"buffer_store_dwordx4 v[36:39], v8, {srd(rO)}, {t0} offen offset:16")
    for r in range(4): a(f"v_add_f32 v{144+r}, v{144+r}, v{148+r}")
    a("v_cvt_pk_bf16_f32 v40, v144, v145"); a("v_cvt_pk_bf16_f32 v41, v146, v147")
    a(f"buffer_store_dwordx2 v[40:41], v9, {srd(rO)}, {t0} offen offset:128")
    E2 += stamp_out()
    a("L_END:"); a("s_endpgm")
    sp = lambda x: "\n".join(x).split("\n")
    E = resolve_waits(sp(E)); E2 = resolve_waits(sp(E2))
    check_scc(pre); check_scc(E); check_scc(E2)
    code = pre + D + DX + X + SE + X2 + Sg + E + E1 + SE + E2 + STUBS
    traces = [pre + D + D + DX + D + X + SE + X2 + Sg + Sg + E + E1 + E2, pre + X + X2 + E + E1 + SE + E2, pre + DX + D + X + X2 + Sg + E]
    return code, traces

def sprinkle(main, extra, every):
    groups = []; cur = []
    for x in extra:
        cur.append(x)
        if x.split("\n")[-1].startswith("buffer_"): groups.append(cur); cur = []
    assert not cur
    out = []
    for i, l in enumerate(main):
        if groups and i % every == 0: out += groups.pop(0)
        out.append(l)
    for g in groups: out += g
    return out

if __name__ == "__main__":
    path = [x for x in sys.argv[1:] if not x.startswith("--")]
    path = path[0] if path else "gated_mix__sliding_local_dilated__compressed_kv_cla__prompt.s"
    code, traces = build()
    bad = sorted(set(p.split("] ", 1)[1] for t in traces for p in verify(t, "k")))
    for p in bad[:40]: print(p)
    out = ["; gated mix: local dilated attention + compressed-KV causal attention, one persistent launch (generated by gen/gen2.py)",
           f"; @launch grid=(256,1,1) block=(256,1,1) lds={LDS_BYTES}", HEADER] + kernel_open(NAME) + [l.split(" ;@")[0] for l in code]
    out += ['.section .rodata,"a"', ".p2align 6", kernel_desc(NAME)]
    open(path, "w").write("\n".join(out) + "\n")
    print("hazard problems:", len(bad), "lines:", len(code))
```

```python
import re

def vr(b, n=1, p="v"):
    return f"{p}{b}" if n == 1 else f"{p}[{b}:{b+n-1}]"

class R:
    def __init__(s, p, b): s.p = p; s.b = b
    def __call__(s, n=1, o=0): return vr(s.b + o, n, s.p)
    def __add__(s, o): return R(s.p, s.b + o)
    def __repr__(s): return f"{s.p}{s.b}"

def V(b): return R("v", b)
def A(b): return R("a", b)

def mfma(d, a, b, c=None):
    cs = d(4) if c is None else (c if isinstance(c, str) else c(4))
    return f"v_mfma_f32_16x16x32_bf16 {d(4)}, {a(4)}, {b(4)}, {cs}"

_reg = re.compile(r"\b([vas])\[(\d+):(\d+)\]|\b([vas])(\d+)\b|\b(vcc|exec|m0|scc)\b")

def regs_of(op):
    out = []
    for m in _reg.finditer(op):
        if m.group(1): out += [(m.group(1), i) for i in range(int(m.group(2)), int(m.group(3)) + 1)]
        elif m.group(4): out.append((m.group(4), int(m.group(5))))
        else: out.append((m.group(6), 0))
    return out

TRANS = ("v_exp_f32", "v_log_f32", "v_rcp_f32", "v_rsq_f32", "v_sqrt_f32", "v_sin_f32", "v_cos_f32")

class I:
    def __init__(s, text):
        s.text = text
        t = text.split(";")[0].strip()
        s.skip = (not t) or t.endswith(":") or t.startswith(".")
        s.kind = None; s.rd = set(); s.wr = set(); s.states = 1
        if s.skip: return
        parts = t.split(None, 1)
        op = s.op = parts[0]
        ops = [o.strip() for o in parts[1].split(",")] if len(parts) > 1 else []
        s.ops = ops
        rs = [regs_of(o) for o in ops]
        allr = lambda l: set(r for x in l for r in x)
        if op.startswith("v_mfma"):
            s.kind = "mfma"; s.wr = set(rs[0]); s.ab = allr(rs[1:3]); s.c = set(rs[3]); s.rd = s.ab | s.c
        elif op.startswith("ds_read") or op.startswith("ds_bpermute") or op.startswith("ds_swizzle"):
            s.kind = "dsr"; s.wr = set(rs[0]); s.rd = allr(rs[1:])
        elif op.startswith("ds_"):
            s.kind = "dsw"; s.rd = allr(rs)
        elif op.startswith("buffer_load") or op.startswith("global_load"):
            if re.search(r"\blds\b", t): s.kind = "dma"; s.rd = allr(rs) | {("m0", 0)}
            else:
                s.kind = "vml"; s.wr = set(rs[0]); s.rd = allr(rs[1:])
                if "d16" in op: s.rd |= set()
        elif op.startswith("buffer_store") or op.startswith("buffer_atomic"):
            s.kind = "vms"; s.rd = allr(rs); s.data = set(rs[0])
            if op.startswith("buffer_atomic") and "sc0" in t: s.kind = "vml"; s.wr = set(rs[0])
        elif op.startswith("buffer_") : s.kind = "vmo"
        elif op == "s_waitcnt": s.kind = "wait"
        elif op == "s_nop": s.kind = "nop"; s.states = int(ops[0]) + 1
        elif op.startswith("s_load") or op in ("s_memtime", "s_memrealtime"):
            s.kind = "smem"; s.wr = set(rs[0]); s.rd = allr(rs[1:])
        elif op.startswith("s_"):
            s.kind = "salu"
            if op.startswith("s_cmp") or op.startswith("s_cbranch") or op in ("s_branch", "s_barrier", "s_endpgm", "s_sleep", "s_setprio", "s_setpc_b64", "s_bitcmp0_b32", "s_bitcmp1_b32"):
                s.rd = allr(rs)
            else:
                s.wr = set(rs[0]); s.rd = allr(rs[1:])
                if "saveexec" in op: s.wr.add(("exec", 0))
        elif op.startswith("v_"):
            s.kind = "valu"
            s.trans = any(op.startswith(x) for x in TRANS)
            s.wr = set(rs[0]); s.rd = allr(rs[1:])
            if op.startswith(("v_add_co", "v_sub_co", "v_addc_co")): s.wr |= set(rs[1]); s.rd = allr(rs[2:])
            if op.startswith(("v_fmac", "v_dot2c", "v_writelane")): s.rd |= set(rs[0])
            if op.startswith("v_permlane") and "swap" in op: s.wr |= set(rs[1]); s.rd |= set(rs[0])
            if op.startswith("v_cmpx"): s.wr.add(("exec", 0))
            s.dpp = ("row_" in t) or ("quad_perm" in t) or ("wave_" in t)
            if s.dpp: s.rd |= set(rs[0])
        else:
            raise ValueError("unknown instr: " + text)

def verify(lines, name="", lgkm0=None):
    ins = [I(l) for l in lines]
    ins = [i for i in ins if not i.skip]
    probs = []
    lq = []
    vq = []
    smem = set()
    def P(k, msg): probs.append(f"{name}[{k}] {ins[k].text.strip()}  :: {msg}")
    for k, i in enumerate(ins):
        touch = i.rd | i.wr
        if i.kind == "wait":
            m = re.search(r"lgkmcnt\((\d+)\)", i.text)
            if m:
                n = int(m.group(1))
                if n == 0: smem = set()
                elif smem: P(k, "counted lgkmcnt with SMEM outstanding")
                while len(lq) > n: lq.pop(0)
            m = re.search(r"vmcnt\((\d+)\)", i.text)
            if m:
                n = int(m.group(1))
                while len(vq) > n: vq.pop(0)
            continue
        for d in lq:
            if d & touch and not (i.kind == "dsr" and not (d & i.rd)): P(k, f"touches pending LDS dest {sorted(d & touch)[:2]}")
        for d in vq:
            if d & touch and not (i.kind == "vml" and not (d & i.rd)): P(k, f"touches pending VMEM dest {sorted(d & touch)[:2]}")
        if smem & touch: P(k, "touches pending SMEM dest")
        if i.kind in ("dsr", "dsw"):
            lq.append(set(i.wr))
            if len(lq) > 15 + 16: pass
        if i.kind in ("vml", "vms", "dma", "vmo"): vq.append(set(i.wr))
        if i.kind == "smem": smem |= i.wr
        dist = 0
        for j in range(k - 1, max(-1, k - 24), -1):
            p = ins[j]
            need = 0
            if p.kind == "mfma":
                if i.kind == "mfma":
                    if p.wr & i.ab: need = 8
                    elif (p.wr & i.c) and p.wr != i.c: need = 6
                    elif (p.wr & i.wr) and not (p.wr & i.c): need = 0
                elif i.kind in ("valu", "dsr", "dsw", "vml", "vms", "dma"):
                    if p.wr & touch: need = 8
                    elif i.kind == "valu" and (p.c & i.wr): need = 3
            elif p.kind == "valu":
                vw = set(r for r in p.wr if r[0] in "va" and len(r[0]) == 1)
                sw = p.wr - vw
                if i.kind == "mfma":
                    if vw & i.rd: need = 2
                    if ("exec", 0) in p.wr: need = max(need, 4)
                if i.kind == "valu":
                    if p.trans and not i.trans and (p.wr & i.rd): need = max(need, 1)
                    if i.op.startswith(("v_readfirstlane", "v_readlane")) and (vw & i.rd): need = max(need, 1)
                    if i.op.startswith("v_permlane") and (vw & i.rd): need = max(need, 2)
                    if i.dpp and (vw & i.rd): need = max(need, 2)
                    if sw & i.rd: need = max(need, 2)
                    if p.op.startswith("v_dot") and (p.wr & touch) and not (p.op == i.op and not (p.wr & set(r for o in i.ops[1:3] for r in regs_of(o)))): need = max(need, 3)
                if i.kind in ("vml", "vms", "dma") and (sw & i.rd): need = max(need, 5)
            elif p.kind == "salu":
                if ("m0", 0) in p.wr and i.kind == "dma": need = 1
            elif p.kind == "vms":
                if len(p.data) >= 3 and (p.data & i.wr): need = 2 if i.kind == "valu" else 1
            if need > dist: P(k, f"needs {need} wait states after [{p.text.strip()}], has {dist}")
            dist += p.states
            if dist >= 12: break
    return probs

HEADER = '''.amdgcn_target "amdgcn-amd-amdhsa--gfx950"
.text
'''
def kernel_open(name):
    return [f".globl {name}", ".p2align 8", f".type {name},@function", f"{name}:"]
def kernel_desc(name, nv=512, ao=256, ns=102):
    return f""".amdhsa_kernel {name}
  .amdhsa_next_free_vgpr {nv}
  .amdhsa_next_free_sgpr {ns}
  .amdhsa_accum_offset {ao}
  .amdhsa_group_segment_fixed_size 0
  .amdhsa_kernarg_size 104
  .amdhsa_user_sgpr_count 2
  .amdhsa_user_sgpr_kernarg_segment_ptr 1
  .amdhsa_system_sgpr_workgroup_id_x 1
.end_amdhsa_kernel
"""

def weave(mf, fill):
    out = []
    for i, m in enumerate(mf):
        out.append(m)
        out += fill.get(i, [])
    return out

def cost_of(text):
    op = text.split()[0]
    if op.startswith("ds_"): return "ds", 4
    if op.startswith(("buffer_", "global_")): return "vm", 8
    if op.startswith("v_"):
        return "va", (8 if op.startswith(TRANS) else 4)
    return "sa", 0

class Slot:
    def __init__(s, mf): s.mf = mf; s.sa = []; s.mem = []; s.va = []; s.used = 0; s.lock = False; s.vm = False
    def lines(s): return ([s.mf] if s.mf else []) + s.sa + s.mem + s.va

class Timeline:
    def __init__(s): s.sl = []
    def add(s, mfs):
        b = len(s.sl); s.sl += [Slot(m) for m in mfs]; return b
    def __len__(s): return len(s.sl)
    def fits(s, g, items):
        t = s.sl[g]
        if t.lock: return False
        used = t.used; nsa = len(t.sa); vm = t.vm; hasva = bool(t.va)
        for it in items:
            k, c = cost_of(it)
            if k == "sa": nsa += 1
            else: used += c
            if k == "vm": vm = True
        if used > 8: return False
        if vm and nsa: return False
        return nsa <= 3 - used // 4
    def force(s, g, items, lock=False):
        t = s.sl[g]
        for it in items:
            k, c = cost_of(it)
            (t.sa if k == "sa" else t.va if k == "va" else t.mem).append(it)
            t.used += c
            if k == "vm": t.vm = True
        t.lock |= lock
        return g
    def put(s, items, lo, hi=None, lock=False):
        if isinstance(items, str): items = [items]
        hi = len(s.sl) - 1 if hi is None else hi
        for g in range(lo, hi + 1):
            if s.fits(g, items) and not (lock and (s.sl[g].sa or s.sl[g].mem or s.sl[g].va)): return s.force(g, items, lock)
        raise RuntimeError(f"no room for {items} in [{lo},{hi}]")
    def put_back(s, items, hi, lo):
        if isinstance(items, str): items = [items]
        for g in range(hi, lo - 1, -1):
            if s.fits(g, items): return s.force(g, items)
        raise RuntimeError(f"no room for {items} in [{lo},{hi}]")
    def seq(s, items, lo, hi=None, step=0):
        g = lo; prev = None
        rank = {"sa": 0, "ds": 1, "vm": 1, "va": 2}
        for it in items:
            first = it if isinstance(it, str) else it[0]
            last = it if isinstance(it, str) else it[-1]
            if prev is not None and rank[cost_of(first)[0]] < prev: g += 1
            g = s.put(it, g, hi); prev = rank[cost_of(last)[0]]
            if step: g += step; prev = None
        return g - step if step else g
    def lines(s):
        o = []
        for t in s.sl: o += t.lines()
        return o

def resolve_waits(lines):
    out = []; n = {"vm": 0, "lgkm": 0}; last = {}
    for l in lines:
        op = l.split()[0] if l.split() else ""
        cls = "vm" if op.startswith(("buffer_", "global_")) else "lgkm" if op.startswith("ds_") else None
        if cls:
            n[cls] += 1
            for tg in re.findall(r"@(\w+)", l): last[tg] = n[cls]
        if op == "s_waitcnt":
            def rep(m):
                tags = [t.strip()[1:] for t in m.group(2).split(",")]
                k = n[m.group(1)] - max(last[t] for t in tags)
                return f"{m.group(1)}cnt({min(k, 63 if m.group(1) == 'vm' else 15)})"
            l = re.sub(r"(vm|lgkm)cnt\((@[^)]*)\)", rep, l)
        out.append(l)
    return out

def check_scc(lines):
    last = None
    for l in lines:
        t = l.strip()
        if t.startswith(("s_cselect", "s_cbranch_scc")):
            assert last is not None and last.startswith(("s_cmp", "s_bitcmp")), (last, t)
        elif t.startswith(("s_cmp", "s_bitcmp", "s_add", "s_sub", "s_and", "s_xor", "s_or", "s_lshl", "s_lshr", "s_min", "s_max", "s_bfe", "s_not", "s_ashr")):
            last = t
    return lines
```

```python
import sys, math, struct, os
sys.path.insert(0, "gen")
from asmlib import *

NAME = "gated_mix__sliding_local_dilated__compressed_kv_cla__prompt_kernel"
def f2u(x): return struct.unpack("<I", struct.pack("<f", x))[0]
OPT = dict(kv.split("=") if "=" in kv else (kv, "1") for kv in os.environ.get("XP", "").split(",") if kv)
def opt(k, d): return int(OPT.get(k, d))
STAMPS = "--stamps" in sys.argv
def note(*a): print(*a, file=sys.stderr)

HS = 65 * 16384
WS_WA = 0x2200000
WS_WO = 0x2500000
WO_S = 21 * 16384
WS_QA = 0x2B00000
WS_Z  = 0x3400000
Z_Q = 37 * 2048; Z_G = 4 * Z_Q
WS_FL = 0x4800000
WS_PX = 0x4900000
PX_S = 28672
WS_SIZE = 268435456
OOB = 0x7FFF0000
NEG = 0xF149F2CA
LDS_BYTES = 163840
CB = 65536
RING = 8
LOG2E = math.log2(math.e)

sWave, sH, sJ, sSlot, sX = "s3", "s4", "s5", "s6", "s7"
rC, rX, rWkv, rWq, rWS, rU1, rWOB, rG, rD, rO, rWO = 8, 12, 16, 20, 24, 28, 32, 36, 40, 44, 48
def srd(r): return f"s[{r}:{r+3}]"
_s = [52]
def S_(n=1):
    if n == 2 and _s[0] & 1: _s[0] += 1
    r = _s[0]; _s[0] += n; assert _s[0] <= 96, "out of sgprs"; return f"s{r}" if n == 1 else r
t0, t1, t2, t3 = S_(), S_(), S_(), S_()
sTri = [S_(2) for _ in range(4)]
sT, sT2, sGs, sGl = S_(), S_(), S_(), S_()
sCb, sCb2, sCk, sCc, sCc2, sCl = S_(), S_(), S_(), S_(), S_(), S_()
sWb, sWk, sWc, sWl = S_(), S_(), S_(), S_()
sAb, sAc, sAl = S_(), S_(), S_()
sU1b, sU1s, sU1g, sSigA, sPerm0, sPerm1 = S_(), S_(), S_(), S_(), S_(), S_()
sKst, sVst, sFH, sSig, sScale, sSpin, sR2 = S_(), S_(), S_(), S_(), S_(), S_(), S_()
sR1 = sCb2
sKg, sKl, sLastP, sN, sCnt, sBo, sDone, sEv, sEvT, sWst = sCb, sCk, sCc, sCc2, sWb, sWk, sWc, sCb2, sCl, sWl
sRB, sRA, sStg = sU1b, sU1s, sU1g
sKq, sRb, sCt = sSigA, sPerm0, sPerm1
sZs, sZl = sAb, sAc

vLane, vN, vG, vL16 = "v1", "v2", "v3", "v4"
vCe, vCo, vWe, vWo, vC0, vC1 = "v5", "v6", "v7", "v8", "v9", "v10"
vWp = ["v11", "v12", "v13", "v14"]
vOne = vLane
vSig = "v0"
TMP = 16

def stamp(i):
    if not STAMPS: return []
    return ["s_memrealtime s[98:99]", "s_memtime s[100:101]", "s_waitcnt lgkmcnt(0)", f"v_writelane_b32 v15, s98, {i}", f"v_writelane_b32 v15, s100, {16+i}"]
def stamp_out(i):
    if not STAMPS: return []
    return ["s_waitcnt vmcnt(0)"] + stamp(i) + ["s_lshl_b32 s96, s2, 2", f"s_add_u32 s96, s96, {sWave}", "s_lshl_b32 s96, s96, 8", "s_add_u32 s96, s96, 0xF000000",
            f"v_lshlrev_b32 v30, 2, {vLane}", f"buffer_store_dword v15, v30, {srd(rWS)}, s96 offen"]

STUBS = []
def check(name, load, reg, want, wait):
    STUBS.extend([f"{name}:", f"s_mov_b32 {sSpin}, 0", f"{name}_L:", "s_sleep 1", load.split(";")[0], f"s_add_u32 {sSpin}, {sSpin}, 1", "s_waitcnt vmcnt(0)",
                  f"v_cmp_gt_u32 vcc, {want}, {reg}", f"s_cmp_gt_u32 {sSpin}, 0x20000", f"s_cbranch_scc1 {name}_R", "s_nop 3", f"s_cbranch_vccnz {name}_L", f"s_branch {name}_R"])
    return [wait], [f"v_cmp_gt_u32 vcc, {want}, {reg}"], [f"s_cbranch_vccnz {name}\n{name}_R:"]
def put_check(tl, name, load, reg, want, tag, g_load, g_chk):
    g = tl.put(load + f" ;@{tag}", g_load)
    w, c, b = check(name, load, reg, want, f"s_waitcnt vmcnt(@{tag})")
    g = tl.put(w, max(g + 1, g_chk)); g = tl.put(c, g + 1); return tl.put(b, g + 5, lock=True)
def line_check(name, load, reg, want, wait):
    w, c, b = check(name, load, reg, want, wait)
    return w + c + ["s_nop 4"] + b
def signal(sreg, off=0): return f"buffer_atomic_add {vOne}, {vSig}, {srd(rWS)}, {sreg} offen offset:{off} sc1"
def pack(d, s0, s1): return [f"v_cvt_pk_bf16_f32 v{d.b}, v{s0.b}, v{s0.b+1}", f"v_cvt_pk_bf16_f32 v{d.b+1}, v{s0.b+2}, v{s0.b+3}",
                             f"v_cvt_pk_bf16_f32 v{d.b+2}, v{s1.b}, v{s1.b+1}", f"v_cvt_pk_bf16_f32 v{d.b+3}, v{s1.b+2}, v{s1.b+3}"]
def sprinkle(main, extra, every, start=0):
    groups = []; cur = []
    for x in extra:
        cur.append(x)
        if x.split("\n")[-1].startswith("buffer_"): groups.append(cur); cur = []
    if cur: groups[-1] += cur
    out = []
    for i, l in enumerate(main):
        if groups and i >= start and (i - start) % every == 0: out += groups.pop(0)
        out.append(l)
    for g in groups: out += g
    return out

def startup():
    L = []; a = L.append
    if STAMPS: a("s_memrealtime s[100:101]")
    a("s_cmp_ge_u32 s2, 256"); a("s_cbranch_scc1 L_END")
    for r, slot in ((rC, 4), (rWkv, 6), (52, 7), (rWS, 12), (rX, 0), (rWq, 5), (rU1, 1), (rWO, 2), (rWOB, 8), (rG, 9), (rD, 11), (rO, 10)):
        a(f"s_load_dwordx2 s[{r}:{r+1}], s[0:1], {slot*8}")
    a("s_getpc_b64 s[96:97]")
    a(f"s_lshr_b32 {sSlot}, s2, 3"); a(f"s_lshl_b32 s98, {sSlot}, 11")
    a("s_add_u32 s96, s96, s98"); a("s_addc_u32 s97, s97, 0")
    a("v_lshlrev_b32 v16, 3, v0"); a("v_mov_b32 v17, s97"); a("v_add_co_u32 v16, vcc, s96, v16")
    a("v_lshrrev_b32 v5, 6, v0"); a(f"v_and_b32 {vLane}, 63, v0")
    a("v_addc_co_u32 v17, vcc, 0, v17, vcc")
    a(f"v_readfirstlane_b32 {sWave}, v5")
    a("global_load_dwordx2 a[252:253], v[16:17], off")
    a(f"v_and_b32 {vN}, 15, v0"); a(f"v_lshrrev_b32 {vG}, 4, {vLane}"); a(f"v_lshlrev_b32 {vL16}, 4, {vLane}")
    a(f"s_and_b32 {sX}, s2, 7"); a(f"s_and_b32 {sT2}, {sSlot}, 3"); a(f"s_lshl2_add_u32 {sH}, {sX}, {sT2}")
    a(f"s_lshr_b32 {sJ}, {sSlot}, 2"); a(f"s_lshl2_add_u32 {sGs}, {sJ}, {sWave}"); a(f"s_sub_u32 {sGl}, 63, {sGs}")
    a(f"v_lshrrev_b32 v16, 3, {vLane}"); a(f"v_and_b32 v17, 7, {vLane}")
    a(f"v_xor_b32 v18, v17, {vG}"); a("v_lshlrev_b32 v19, 10, v16")
    a(f"v_lshl_add_u32 {vCe}, v18, 4, v19"); a("v_xor_b32 v18, 4, v18"); a(f"v_lshl_add_u32 {vCo}, v18, 4, v19"); a(f"v_add_u32 {vCo}, {8192 - 1024}, {vCo}")
    a(f"v_and_b32 v18, 1, {vG}"); a("v_lshlrev_b32 v18, 1, v18"); a("v_xor_b32 v18, v17, v18"); a("v_lshlrev_b32 v19, 13, v16")
    a(f"v_lshl_add_u32 {vWe}, v18, 4, v19"); a("v_xor_b32 v18, 4, v18"); a(f"v_lshl_add_u32 {vWo}, v18, 4, v19"); a(f"v_add_u32 {vWo}, {65536 - 1024}, {vWo}")
    for dst, w in ((sR1, opt("w1", 2)), (sR2, opt("w2", 2))):
        a(f"s_add_u32 {dst}, {sT2}, {sJ}"); a(f"s_and_b32 {dst}, {dst}, {w - 1}")
        a(f"s_mul_i32 {sT}, {sX}, {w}"); a(f"s_and_b32 {sT}, {sT}, 7"); a(f"s_or_b32 {dst}, {dst}, {sT}")
    a(f"s_lshl_b32 {sCk}, {sR1}, 7"); a(f"s_lshl_b32 {sWk}, {sR1}, 19")
    a(f"s_lshr_b32 {t2}, {sWave}, 1"); a(f"s_and_b32 {t3}, {sWave}, 1")
    a(f"s_lshl3_add_u32 {sKst}, {t2}, {sJ}"); a(f"s_lshl_b32 {sT}, {t3}, 5"); a(f"s_add_u32 {sCb}, {sKst}, {sT}"); a(f"s_lshl_b32 {sCb}, {sCb}, 15")
    a(f"s_lshl_b32 {sCl}, {sWave}, 13"); a(f"s_add_u32 {sCl}, {sCl}, {CB}")
    a(f"s_lshl1_add_u32 {sWb}, {sH}, {t3}"); a(f"s_lshl_b32 {sWb}, {sWb}, 7"); a(f"s_lshl_b32 {sWl}, {sWave}, 12")
    a(f"s_add_u32 {sCc}, {sCb}, {sCk}"); a(f"s_add_u32 {sWc}, {sWb}, {sWk}")
    for r, size in ((rC, 2048*512*2), (rWkv, 512*4096*2)):
        a(f"s_mov_b32 s{r+2}, {size}"); a(f"s_mov_b32 s{r+3}, 0x20000")
    a(f"s_cmp_lt_u32 {sWave}, 2")
    a("s_waitcnt lgkmcnt(0)")
    a(f"s_cselect_b32 s{rWkv}, s{rWkv}, s52"); a(f"s_cselect_b32 s{rWkv+1}, s{rWkv+1}, s53")
    return L

KS = 32 * 8192
FL = [' sc1', '', ' nt']
P2ORD = list(range(8)); P2ORD.insert(opt("p2l", 8), 8)
def dma2(ve, vo, rs, lds_s, lds_imm, g_s, g_imm, tag):
    return ([f"s_add_u32 m0, {lds_s}, {lds_imm}", f"s_add_u32 {sT}, {g_s}, {g_imm}"],
            [f"buffer_load_dwordx4 {ve}, {srd(rs)}, {sT} offen lds ;@{tag}", f"buffer_load_dwordx4 {vo}, {srd(rs)}, {sT} offen offset:1024 lds ;@{tag}"])
def act_dma(st, half):
    lo = (st % 3) * 32768 + half * 4096
    if st < 8: d = [dma2(vCe, vCo, rC, sCl, lo + q*2048, sCc, half*16*32768 + q*16384, f"c{st}") for q in range(2)]
    else: d = [dma2(vCe, vCo, rX, sCl, lo + q*2048, sCc2 if half else sCc, q*16*1152, f"c{st}") for q in range(2)]
    pre = []
    if half == 0 and 0 < st < 8:
        pre = [[f"s_xor_b32 {sCc}, {sCk}, {st*128}", f"s_add_u32 {sCc}, {sCb}, {sCc}"]]
    if half == 0 and st == 8:
        pre = [[f"s_lshl_b32 {sCk}, {sR2}, 7", f"s_mul_i32 {sCb}, {sGs}, {32*1152}", f"s_mul_i32 {sCb2}, {sGl}, {32*1152}"],
               [f"v_lshrrev_b32 v{TMP+15}, 3, {vLane}", f"v_lshl_add_u32 {vCe}, v{TMP+15}, 7, {vCe}"],
               [f"v_lshl_add_u32 {vCo}, v{TMP+15}, 7, {vCo}", f"v_add_u32 {vCo}, 1024, {vCo}"]]
    if half == 0 and st >= 8:
        i = P2ORD[st - 8]
        pre += [[f"s_xor_b32 {sT2}, {sCk}, {i*128}" if i < 8 else f"s_mov_b32 {sT2}, 1024", f"s_add_u32 {sCc}, {sCb}, {sT2}", f"s_add_u32 {sCc2}, {sCb2}, {sT2}"]]
    return pre, d
def wt_dma(t):
    lo = (t & 3) * 16384; pre = []
    if t < 16:
        if t and t % 2 == 0: pre = [[f"s_xor_b32 {sWc}, {sWk}, {t*KS}", f"s_add_u32 {sWc}, {sWb}, {sWc}"]]
        return pre, [dma2(vWe, vWo, rWkv, sWl, lo + q*2048, sWc, (t & 1)*KS + q*131072, f"w{t}") for q in range(2)]
    if t == 16:
        pre = [[f"s_lshr_b32 {sT2}, {sWave}, 1", f"s_lshl_b32 {sWk}, {sT2}, 17", f"s_add_u32 {sWb}, {sWb}, {sWk}"],
               [f"s_lshl_b32 {sT2}, {sT2}, 11", f"s_and_b32 {sWl}, {sWl}, 4096", f"s_add_u32 {sWl}, {sWl}, {sT2}"]]
    if t % 2 == 0:
        i = P2ORD[(t - 16) >> 1]
        pre += [[f"s_xor_b32 {sWk}, {sR2}, {i}" if i < 8 else f"s_mov_b32 {sWk}, 8", f"s_lshl_b32 {sWc}, {sWk}, 19", f"s_add_u32 {sWc}, {sWc}, {sWb}"],
                [f"s_lshl_b32 {sAc}, {sWk}, 13", f"s_add_u32 {sAc}, {sAc}, {sAb}"]]
    return pre, [dma2(vWe, vWo, rWq, sWl, lo, sWc, (t & 1)*KS, f"w{t}"),
                 ([f"s_add_u32 m0, {sAl}, {lo}", f"s_add_u32 {sT}, {sAc}, {(t & 1)*4096}"], [f"buffer_load_dwordx4 {vL16}, {srd(rWS)}, {sT} offen sc1 lds ;@w{t}"])]
def rec_dma(n):
    return [], [([f"s_add_u32 m0, {sKl}, {((n + 3) % RING)*16384}", f"s_add_u32 {sT}, {sKg}, {(n + 1)*16384}"],
                 [f"buffer_load_dwordx4 {vL16}, {srd(rWS)}, {sT} offen offset:{q*1024} sc1 lds ;@r{n+1}" for q in range(4)])]
def ring_dma(tag):
    return ([[f"s_mov_b32 m0, {sKl}", f"s_mov_b32 {sT}, {sKg}", f"s_add_u32 {sKg}, {sKg}, 16384"]],
            [([f"s_add_u32 {sKl}, {sKl}, 16384", f"s_and_b32 {sKl}, {sKl}, {RING*16384 - 1}"],
              [f"buffer_load_dwordx4 {vL16}, {srd(rWS)}, {sT} offen offset:{q*1024} sc1 lds ;@{tag}" for q in range(4)])])
def flat(pd):
    pre, d = pd; o = []
    for p in pre: o += p
    for s_, x in d: o += s_ + x
    return o
def put_dmas(tl, groups, lo, hi):
    n = sum(len(x) for _, d in groups for _, x in d)
    if not n: return lo
    step = (hi - lo) / n; k = 0; g = lo - 1
    for pre, d in groups:
        for p in pre: g = tl.put(p, g)
        for s_, x in d:
            g = tl.put(s_, max(g, int(lo + k*step) - 2))
            for ins in x:
                g = tl.put(ins, max(g + 1, int(lo + k*step))); k += 1
            g += 1
    return g

def build():
    L = startup(); a = L.append
    if STAMPS: a("v_writelane_b32 v15, s100, 15")
    L += stamp(0)
    L += flat(act_dma(0, 0)) + flat(wt_dma(0)) + flat(act_dma(0, 1))
    for r, size in ((rWS, WS_SIZE), (rX, 2048*576*2), (rWq, 576*4096*2), (rU1, 576*1728*2), (rWOB, 4096*576*2), (rG, 1152), (rD, 256), (rO, 2048*576*2), (rWO, 576*576*2)):
        a(f"s_mov_b32 s{r+2}, {size}"); a(f"s_mov_b32 s{r+3}, 0x20000")
    a(f"s_lshl_b32 {sFH}, {sH}, 10"); a(f"s_add_u32 {sFH}, {sFH}, {WS_FL}")
    a(f"s_cmp_eq_u32 {sGs}, 0"); a(f"s_cselect_b32 {t0}, {sFH}, {OOB}")
    for q in range(4): a(f"v_mov_b32 v{16+q}, 0")
    a(f"buffer_store_dwordx4 v[16:19], {vL16}, {srd(rWS)}, {t0} offen sc1 ;@zero")
    a(f"s_add_u32 {sFH}, {sFH}, 512")
    a(f"s_cmp_eq_u32 {sWave}, 0"); a(f"s_cselect_b32 {sSig}, {sFH}, {OOB}")
    a(f"v_mov_b32 v24, {OOB}"); a(f"v_cmp_eq_u32 vcc, 1, {vLane}")
    a(f"s_lshl_b32 {t0}, {t2}, 7"); a(f"s_lshl_b32 {t1}, {t3}, 12")
    a(f"v_cndmask_b32 {vSig}, v24, 0, vcc")
    a(f"v_lshrrev_b32 v16, 1, {vN}"); a(f"v_xor_b32 v16, v16, {vG}"); a(f"v_add_u32 v17, {t0}, {vN}"); a("v_lshlrev_b32 v17, 7, v17"); a(f"v_add_u32 v17, {CB}, v17")
    a(f"v_lshl_add_u32 {vC0}, v16, 4, v17"); a(f"v_xor_b32 {vC1}, 64, {vC0}")
    a(f"v_bfe_u32 v16, {vLane}, 2, 2"); a(f"v_lshl_add_u32 v17, {vG}, 3, v16"); a("v_lshlrev_b32 v17, 7, v17"); a(f"v_and_b32 v18, 3, {vLane}")
    a("v_lshl_add_u32 v17, v18, 3, v17"); a(f"v_add_u32 v17, {t1}, v17"); a("v_lshrrev_b32 v16, 1, v16"); a(f"v_and_b32 v18, 1, {vG}"); a("v_lshl_add_u32 v16, v18, 1, v16")
    for p in range(4): a(f"v_xor_b32 v18, {p}, v16"); a(f"v_lshl_add_u32 {vWp[p]}, v18, 5, v17")
    a(f"s_lshl_b32 {sKst}, {sKst}, 14"); a(f"s_mul_i32 {sT}, {sH}, {HS}"); a(f"s_add_u32 {sKst}, {sKst}, {sT}")
    a(f"s_add_u32 {sVst}, {sKst}, {t1}"); a(f"s_add_u32 {sVst}, {sVst}, {16384 + 8192}"); a(f"s_lshr_b32 {t1}, {t1}, 1"); a(f"s_add_u32 {sKst}, {sKst}, {t1}")
    a(f"s_lshl_b32 {sAl}, {sWave}, 10"); a(f"s_mul_i32 {sAb}, {sH}, 73728"); a(f"s_add_u32 {sAb}, {sAb}, {sAl}"); a(f"s_add_u32 {sAb}, {sAb}, {WS_WA}"); a(f"s_add_u32 {sAl}, {sAl}, 8192")
    a(f"s_mov_b32 {sScale}, {f2u(LOG2E / math.sqrt(128.0)):#x}")
    a(f"s_mov_b32 {sPerm0}, 0x05040100"); a(f"s_mov_b32 {sPerm1}, 0x07060302")
    a(f"s_lshl2_add_u32 {t0}, {sX}, {sWave}")
    a(f"s_mul_i32 {sU1b}, {sSlot}, {32*3456}"); a(f"s_mul_i32 {sT2}, {t0}, 36"); a(f"s_add_u32 {sU1b}, {sU1b}, {sT2}")
    a(f"s_mul_i32 {sU1s}, {t0}, 18"); a(f"s_add_u32 {sU1s}, {sU1s}, {sSlot}"); a(f"s_lshl_b32 {sU1s}, {sU1s}, 12"); a(f"s_add_u32 {sU1s}, {sU1s}, {WS_WA}")
    a(f"s_lshl_b32 {sU1g}, {sSlot}, 6")
    a(f"s_lshl_b32 {sSigA}, {t0}, 10"); a(f"s_add_u32 {sSigA}, {sSigA}, {WS_FL + 512}")
    a(f"s_cmp_lt_u32 {sSlot}, 18"); a(f"s_cselect_b32 {sU1s}, {sU1s}, {OOB}"); a(f"s_cselect_b32 {sSigA}, {sSigA}, {OOB}")
    a(f"v_lshrrev_b32 v18, 2, {vN}"); a(f"v_and_b32 v19, 3, {vN}")
    a("v_mul_u32_u24 v20, 1152, v18"); a("v_cmp_eq_u32 vcc, 2, v19"); a("v_lshl_add_u32 v20, v19, 3, v20"); a("v_add_u32 v21, 1, v19")
    a("v_cndmask_b32 v21, v21, 0, vcc")
    a("v_cmp_eq_u32 vcc, 3, v18"); a("v_mul_u32_u24 v21, 1152, v21"); a("v_add_u32 v21, 32, v21"); a("v_cndmask_b32 v20, v20, v21, vcc")
    a(f"v_cmp_eq_u32 vcc, 15, {vN}"); a(f"v_mul_u32_u24 v21, {8*3456}, {vG}"); a("v_add_u32 v20, v20, v21")
    a(f"v_lshlrev_b32 v21, 4, {vG}"); a("v_cndmask_b32 v26, v20, v24, vcc"); a("v_cndmask_b32 v27, v24, v21, vcc")
    a(f"v_and_b32 v18, 7, {vLane}"); a(f"v_cmp_gt_u32 vcc, 48, {vLane}"); a("v_mul_u32_u24 v18, 3456, v18"); a(f"v_mul_u32_u24 v19, 1152, {vG}"); a(f"v_bfe_u32 v20, {vLane}, 3, 1")
    a("v_mul_u32_u24 v20, 140, v20"); a("v_add3_u32 v18, v18, v19, v20"); a("v_cndmask_b32 v28, v24, v18, vcc")
    L += flat(wt_dma(1)) + flat(act_dma(1, 0))

    VB = [V(32 + 4*i) for i in range(56)]
    accV = lambda rt, d: VB[((rt >> 1)*4 + d)*2 + (rt & 1)]
    def accK(rt, d):
        i = rt*4 + d
        return VB[32 + i] if i < 24 else A(4*(i - 24))
    fC = lambda b, i: A(64 + 64*b + 4*i)
    fW = lambda b, i: A(96 + 64*b + 4*i)
    set0 = [fW(0, 4+i) for i in range(4)] + [fW(1, 4+i) for i in range(4)] + [fC(b, i) for i in range(4) for b in range(2)]
    set1 = [fW(0, i) for i in range(4)] + [fW(1, i) for i in range(4)] + [fC(b, 4+i) for i in range(4) for b in range(2)]
    fX2 = lambda b, i: (set1 if b else set0)[i]
    fW2 = lambda b, i: (set1 if b else set0)[4 + i]
    def reads(t):
        b = t & 1; vc = vC1 if b else vC0; wi = (t & 3)*16384; R_ = []
        tr = lambda r, p, o: [f"ds_read_b64_tr_b16 {r(2)}, {vWp[p]} offset:{o}", f"ds_read_b64_tr_b16 {r(2,2)}, {vWp[p]} offset:{o + 512}"]
        if t < 16:
            for i in range(0, 8, 2): R_.append([f"ds_read_b128 {fC(b,i+q)(4)}, {vc} offset:{(i+q)*2048}" for q in range(2)])
            for i in (4, 5, 6, 7, 0, 1, 2, 3): R_.append(tr(fW(b, i), i & 3, wi + (i >> 2)*8192))
        else:
            for i in range(0, 4, 2): R_.append([f"ds_read_b128 {fX2(b,i+q)(4)}, {vc} offset:{(i+q)*2048}" for q in range(2)])
            for i in range(8): R_.append(tr(fW2(b, i), i & 3, wi + (i >> 2)*4096))
            for i in range(0, 4, 2): R_.append([f"ds_read_b128 {fW2(b,8+i+q)(4)}, {vL16} offset:{wi + 8192 + (i+q)*1024}" for q in range(2)])
        return R_
    mK = lambda t, rt, d: mfma(accK(rt, d), fW(t & 1, d), fC(t & 1, rt), "0" if t == 0 else None)
    mV = lambda t, rt, d: mfma(accV(rt, d), fC(t & 1, rt), fW(t & 1, 4 + d), "0" if t == 0 else None)

    a("s_waitcnt vmcnt(@c0,@w0,@zero)"); a("s_barrier")
    for r in reads(0): L += r
    a(f"s_lshl_b32 {t0}, {sH}, 2"); a(f"s_cmp_eq_u32 {sGs}, 0"); a(f"s_cselect_b32 {t0}, {t0}, {OOB}")
    a(f"buffer_store_dword {vOne}, {vSig}, {srd(rD)}, {t0} offen sc1")
    a("s_waitcnt lgkmcnt(0)")
    L += stamp(1)

    tl = Timeline(); base = {}
    for t in range(14):
        M = []
        for rt in range(8):
            for i in (range(8) if rt % 2 == 0 else range(7, -1, -1)): M.append(mK(t, rt, i) if i < 4 else mV(t, rt, i - 4))
        base[t] = tl.add(M)
    vord = [(2*n1 + u, d) for n1 in range(4) for d in range(4) for u in range(2)]
    base[14] = tl.add([mV(14, rt, d) for rt, d in vord] + [mV(15, rt, d) for rt, d in vord])
    base[15] = tl.add([mK(t, rt, d) for rt in range(8) for d in range(4) for t in (14, 15)])
    order2 = [(aa, i) for i in range(12) for aa in (range(4) if i % 2 == 0 else range(3, -1, -1))]
    qord = [(aa, i) for aa in range(4) for i in range(8)]
    sched2 = {t: [(t, k) for k in order2] for t in range(16, 32)}
    sched2[32] = [(32, k) for k in qord[:24]] + [(33, k) for k in qord[:24]]
    sched2[33] = [(t, k) for k in qord[24:] for t in (32, 33)] + [(t, (aa, 8 + T)) for aa in range(4) for T in range(4) for t in (32, 33)]
    for t in range(16, 34): base[t] = tl.add(["?"] * 48)
    fin = {k: base[t] + i for t in (32, 33) for i, (tt, k) in enumerate(sched2[t]) if tt == 33}
    bQs = tl.add(["?"] * 16); bQl = tl.add(["?"] * 16)
    kof = lambda g: max(t for t in base if base[t] <= g)

    KVSIG = opt("kvsig", 9); RPF = opt("rpf", 14)
    catch = {0: [act_dma(1, 1), wt_dma(2), wt_dma(3)], 1: [act_dma(2, 0), wt_dma(4), act_dma(2, 1)], 2: [wt_dma(5), act_dma(3, 0), wt_dma(6)], 3: [act_dma(3, 1), wt_dma(7), act_dma(4, 0)]}
    recs = {16 + RPF + i: i - 1 for i in range(18 - RPF)}
    STG = {29: range(0, 3), 30: range(3, 6)} if opt("stg2", 0) else {29: range(6)}
    for t in range(34):
        b = base[t]; n = (base[t+1] if t < 33 else bQs) - b
        tags = [f"@w{t+1}", f"@c{(t+1) >> 1}"] if t < 33 else ["@r0"]
        if t == 16 + KVSIG: tags.append("@kvA")
        tl.force(b, [f"s_waitcnt vmcnt({','.join(tags)})"]); tl.force(b + 1, ["s_barrier"], lock=True)
        wpos = {14: 31, 32: 23}.get(t, n - 1)
        tl.force(b + wpos, ["s_waitcnt lgkmcnt(0)"])
        if t in (14, 32): tl.seq(reads(t + 1), b + 2, b + wpos - 7, step=1)
        if t in catch: grp = catch[t]
        else:
            grp = []
            if t + 4 < 34: grp.append(wt_dma(t + 4))
            st, hf = (t + 5) >> 1, 1 - (t & 1)
            if st < 17: grp.append(act_dma(st, hf))
            if t in STG: grp.append(([], [([f"s_add_u32 m0, {sStg}, {i*1024}", f"s_add_u32 {sT}, {sRB if i < 5 else sRA}, {32*i if i < 5 else 0}"],
                                               [f"buffer_load_dwordx4 {'v24' if i < 5 else 'v25'}, {srd(rWOB if i < 5 else rWO)}, {sT} offen lds ;@stg"]) for i in STG[t]]))
            if t in recs:
                if recs[t] == -1: grp.append(([[f"s_lshl_b32 {sKl}, {sWave}, 12", f"s_mul_i32 {sKg}, {sH}, {HS}", f"s_add_u32 {sKg}, {sKg}, {sKl}"]], []))
                grp.append(rec_dma(recs[t]))
        put_dmas(tl, grp, b + (16 if t in (14, 32) else 4), b + n - 2)
        if t == 15:
            g = tl.seq([f"s_lshr_b32 {t3}, {sWave}, 1", f"s_lshl_b32 {t3}, {t3}, 14", f"s_lshl_b32 {t2}, {sWave}, 13", f"s_sub_u32 {t3}, {t2}, {t3}", f"s_and_b32 {t2}, {sWave}, 1", f"s_lshl_b32 {t2}, {t2}, 12"], base[14] + 26)
            g = tl.seq([f"v_add_u32 {vC0}, {t3}, {vC0}", f"v_add_u32 {vC1}, {t3}, {vC1}"] + [f"v_subrev_u32 {p}, {t2}, {p}" for p in vWp], g + 1, b)
            R_ = reads(16); g = tl.seq(R_[:6], b + 2, step=2)
            for k, r in enumerate(R_[6:]): g = tl.put(r, max(g + 1, b + 8*((k//2 if k < 4 else k - 2) + 1)))
            assert g < b + n - 8
        elif t not in (14, 32, 33):
            tl.seq(reads(t + 1), b + 2, b + n - 9, step=2)
        if t % 2 == 0 and t < 32:
            d = -65536 if (t >> 1) % 3 == 2 else 32768
            tl.put([f"v_add_u32 {vC0}, {d}, {vC0}", f"v_add_u32 {vC1}, {d}, {vC1}"], b + (25 if t == 14 else n - 8), b + (33 if t == 14 else n - 1))

    aU = 192; US = opt("ustep", 2)
    if opt("u1t", 1) >= 0:
        g = tl.seq([f"s_mul_i32 {t0}, {sSlot}, {32*3456}", f"s_mul_i32 {t1}, {sWave}, {8*3456}", f"s_add_u32 {t0}, {t0}, {t1}", f"s_mul_i32 {t1}, {sX}, 144", f"s_add_u32 {t0}, {t0}, {t1}"], base[opt("u1t", 1)] + 2)
        tl.put(f"buffer_load_dword a252, v28, {srd(rU1)}, {t0} offen", g + 1)
    g = base[opt("u1", 4)] + 2
    for jj in range(8):
        g = tl.put(f"s_add_u32 {t0}, {sU1b}, {jj*3456}", g)
        g = tl.put(f"buffer_load_dwordx2 a[{aU+2*jj}:{aU+2*jj+1}], v26, {srd(rU1)}, {t0} offen", g + 1) + US
    g = tl.put(f"buffer_load_dwordx4 a[{aU+16}:{aU+19}], v27, {srd(rG)}, {sU1g} offen ;@u1", g)
    g = tl.put("s_waitcnt vmcnt(@u1)", g + opt("u1w", 40))
    for hp in range(2):
        g = tl.seq([f"v_accvgpr_read_b32 v{16+jj}, a{aU+2*jj+hp}" for jj in range(8)], g + 1)
        g = tl.seq([f"v_perm_b32 v{24+4*e+q}, v{17+2*q}, v{16+2*q}, {sPerm1 if e else sPerm0}" for e in range(2) for q in range(4)], g + 2)
        if hp == 0: g = tl.seq([f"v_accvgpr_read_b32 v{16+q}, a{aU+16+q}" for q in range(4)] + [f"v_or_b32 v{24+q}, v{24+q}, v{16+q}" for q in range(4)], g)
        for e in range(2): g = tl.put(f"buffer_store_dwordx4 v[{24+4*e}:{27+4*e}], {vL16}, {srd(rWS)}, {sU1s} offen offset:{(2*hp+e)*1024}{FL[opt('fwa', 0)]}", g + 1 + e*US)
    g = tl.seq([f"s_lshl_b32 {t0}, {sX}, 4", f"v_and_b32 v22, 3, {vLane}", f"v_lshl_add_u32 v22, v22, 2, {t0}"], g + 1)
    g = put_check(tl, "CK_Z", f"buffer_load_dword v23, v22, {srd(rD)}, 0 offen sc1", "v23", 1, "ckz", g + 1, g + 50)
    g = tl.put(signal(sSigA), g + 1)
    note("WA signal at k-step", kof(g))
    g = tl.seq([f"s_mul_i32 {t0}, {sGs}, {18*8192}", f"s_lshl_b32 {t1}, {sH}, 8", f"s_add_u32 {t0}, {t0}, {t1}", f"s_lshl2_add_u32 {t1}, s2, {sWave}", f"s_mul_i32 {t1}, {t1}, 2304",
                f"v_lshrrev_b32 v16, 1, {vLane}", f"v_and_b32 v17, 1, {vLane}", "v_lshlrev_b32 v16, 13, v16", "v_lshl_add_u32 v16, v17, 7, v16", f"v_mov_b32 v17, {OOB}",
                f"v_cmp_gt_u32 s[96:97], 18, {vLane}", f"v_lshlrev_b32 v18, 7, {vLane}", "v_mov_b32 v29, 0"], g + 1)
    g = tl.seq(["v_cndmask_b32 v16, v17, v16, s[96:97]", "v_cndmask_b32 v18, v17, v18, s[96:97]"], g + 2)
    pft = [opt("pf0", 7), opt("pf1", 8), opt("pf2", 9)]
    g = tl.put(f"buffer_load_dword a253, v18, {srd(rX)}, {t1} offen", max(g + 1, base[pft[0]] + 2))
    g = tl.put(f"buffer_load_dword a252, v16, {srd(rWq)}, {t0} offen", max(g + 1, base[pft[1]] + 2))
    g = tl.put(f"s_add_u32 {t0}, {t0}, {9*8192}", g + 1)
    g = tl.put(f"buffer_load_dword a252, v16, {srd(rWq)}, {t0} offen", max(g + 1, base[pft[2]] + 2))
    if opt("pf3", 12) >= 0:
        g = tl.seq([f"s_lshr_b32 {t0}, s2, 1", f"s_lshl2_add_u32 {t0}, {t0}, {sWave}", f"s_mul_i32 {t0}, {t0}, {8*1152}", f"s_and_b32 {t1}, s2, 1", f"s_lshl_b32 {t1}, {t1}, 9", f"s_add_u32 {t0}, {t0}, {t1}",
                    f"s_lshl2_add_u32 {t1}, s2, {sWave}", f"s_mul_i32 {t1}, {t1}, 768",
                    f"v_cmp_gt_u32 s[96:97], 40, {vLane}", f"v_and_b32 v16, 7, {vLane}", "v_mul_u32_u24 v16, 1152, v16", f"v_lshrrev_b32 v19, 3, {vLane}", "v_lshl_add_u32 v16, v19, 7, v16",
                    "v_cndmask_b32 v16, v17, v16, s[96:97]", f"v_cmp_gt_u32 s[96:97], 6, {vLane}"], g + 1)
        g = tl.put("v_cndmask_b32 v18, v17, v18, s[96:97]", g + 2)
        g = tl.put(f"buffer_load_dword a252, v16, {srd(rWOB)}, {t0} offen", max(g + 1, base[opt("pf3", 12)] + 2))
        g = tl.put(f"buffer_load_dword a253, v18, {srd(rWO)}, {t1} offen", g + 1)
    assert g < base[14], (g, base)
    g = put_check(tl, "CK_WA", f"buffer_load_dword v30, v29, {srd(rWS)}, {sFH} offen sc1", "v30", 18, "ckwa", base[opt("cwa", 10)] + 40, base[11] + 50)
    assert g < base[12] + 2, (g, base)

    NA = opt("na", 2)
    vfr = [("V", f) for f in range(16)]; kfr = [("K", f) for f in range(16)]
    sord = vfr[:4*NA] + kfr[:4*NA] + vfr[4*NA:] + kfr[4*NA:]
    S1, S2, SW = opt("s1", 27), opt("s2", 27), opt("sw", 13)
    spos = {}; g = base[14] + 46
    for k, fr in enumerate(sord):
        off = (fr[1] >> 2)*262144 + ((fr[1] & 3)*1024 if fr[0] == "V" else ((fr[1] >> 1) & 1)*4096 + (fr[1] & 1)*1024)
        gg = tl.put(f"s_add_u32 {t1}, {sVst if fr[0] == 'V' else sKst}, {off & ~4095}", g)
        gg = tl.put(f"buffer_store_dwordx4 %{fr[0]}{fr[1]}%, {vL16}, {srd(rWS)}, {t1} offen offset:{off & 4095}{FL[opt('fkv', 0)]}", gg + 1)
        spos[fr] = gg; g = max(gg + 1, g + (S1 if gg < base[16 + SW] else S2))
    note("kv stores: part A ends at P2 k-step", kof(spos[sord[8*NA-1]]) - 16, ", last at", kof(spos[sord[-1]]) - 16)
    assert spos[sord[8*NA-1]] < base[16 + KVSIG] - 30 and spos[sord[-1]] < bQs
    where = {}; freeV = []
    g = 0
    for f in range(16):
        g = tl.seq(pack(VB[2*f], VB[2*f], VB[2*f+1]), max(g, base[14] + 33 + 2*f + 7))
        assert g < spos[("V", f)]
        where[("V", f)] = VB[2*f]; freeV.append((g, VB[2*f+1]))
    for f in range(12):
        x0, x1 = accK(f >> 1, 2*(f & 1)), accK(f >> 1, 2*(f & 1) + 1)
        g = tl.seq([f"v_mul_f32 v{x.b+q}, {sScale}, v{x.b+q}" for x in (x0, x1) for q in range(4)] + pack(x0, x0, x1), max(g, base[15] + 4*f + 10))
        assert g < spos[("K", f)], (f, g, spos)
        where[("K", f)] = x0; freeV.append((g, x1))
    freeA = []
    for f in range(12, 16):
        x0 = accK(f >> 1, 2*(f & 1)); y0, y1 = V(TMP), V(TMP + 4)
        g = tl.seq([f"v_accvgpr_read_b32 v{TMP+q}, a{x0.b+q}" for q in range(8)] + [f"v_mul_f32 v{TMP+q}, {sScale}, v{TMP+q}" for q in range(8)] + pack(y0, y0, y1)
                   + [f"v_accvgpr_write_b32 a{x0.b+q}, v{TMP+q}" for q in range(4)], g)
        assert g < spos[("K", f)]
        where[("K", f)] = x0; freeA.append((g, x0 + 4))
    gpk = g
    PARK = base[16 + opt("park", 11)]
    topark = [fr for fr in reversed(sord) if where[fr].p == "v" and spos[fr] > PARK]
    for fr in sord:
        if where[fr].p == "v" and fr not in topark: freeV.append((spos[fr] + 1, where[fr]))
    freeV.sort(key=lambda x: x[0])
    spareA = [A(32 + 4*i) for i in range(8)] + [A(192 + 4*i) for i in range(15)]
    loc = {}
    for i, key in enumerate(order2):
        if i < len(spareA): loc[key] = spareA[i]
        else:
            tf, blk = freeV.pop(0); assert tf < base[16] + i, ("no free block", i, tf - base[16]); loc[key] = blk
    migr = {}; g = gpk; pend = list(order2[:len(spareA)])
    while pend or topark:
        if topark and freeA:
            fr = topark.pop(0); ta, ab = freeA.pop(0); src = where[fr]
            g = tl.seq([f"v_accvgpr_write_b32 a{ab.b+q}, v{src.b+q}" for q in range(4)], max(g, ta))
            assert g < spos[fr]
            where[fr] = ab; freeV.append((g, src)); freeV.sort(key=lambda x: x[0])
            continue
        key = pend.pop(0); tf, blk = freeV.pop(0); i = order2.index(key)
        lo = max(g, tf + 1); tm = 16
        while base[tm] + i + 30 < lo: tm += 1
        assert tm < 31, "migration too late"
        g = tl.seq([f"v_accvgpr_read_b32 v{blk.b+q}, a{loc[key].b+q}" for q in range(4)], max(lo, base[tm] + i + 8))
        assert g < base[tm + 1] + i - 2, (key, tm, g)
        migr[key] = (tm, blk)
        if loc[key].b < 64: freeA.append((g, loc[key]))
    gmig = g
    note("migrations end at P2 k-step", kof(g) - 16)
    assert len(freeV) == 8
    spareV = [b_ for _, b_ in freeV]; gspare = max(t_ for t_, _ in freeV)
    for t_ in tl.sl: t_.mem = [re.sub(r"%([VK])(\d+)%", lambda m: where[(m.group(1), int(m.group(2)))](4), x) for x in t_.mem]
    loc_at = lambda key, t: migr[key][1] if key in migr and t > migr[key][0] else loc[key]
    for t in range(16, 34):
        for i, (tt, (aa, c)) in enumerate(sched2[t]): tl.sl[base[t] + i].mf = mfma(loc_at((aa, c), tt), fW2(tt & 1, c), fX2(tt & 1, aa), "0" if tt == 16 else None)
    acc2 = lambda aa, i: loc_at((aa, i), 99)

    Q = lambda aa, s: acc2(aa, 2*s)
    Cb = lambda G, u, a2: spareV[4*G + 2*u + a2]
    Sb = lambda b, ch: acc2(b, 2*ch + 1)
    Pb = lambda b, a2: acc2(2, 2*(2*b + a2) + 1)
    Ol = [acc2(aa, 8 + T) for aa in range(4) for T in range(4)]
    XV = [acc2(3, 2*s + 1) for s in range(4)]
    def O(aa, dt): return A(4*(aa*8 + dt)) if aa < 2 else Ol[(aa - 2)*8 + dt]
    Kf = lambda u, s: A(192 + 4*(u*4 + s))
    Vf = lambda dt: A(64 + 4*dt)
    Ls = lambda aa: A(224 + 4*aa)
    ONE = A(240)
    sreg = lambda b, e: Sb(b, e >> 2).b + (e & 3)
    vB, vNEG, vOmg = "v5", "v6", 8
    qk = lambda G, b: [mfma(Sb(b, 2*u + a2), Kf(u, s), Q(2*G + a2, s), Cb(G, u, a2) if s == 0 else None) for u in range(2) for a2 in range(2) for s in range(4)]
    def pv(G, b, c=None): return [mfma(O(2*G + a2, dt), Vf(dt), Pb(b, a2), c) for dt in range(8) for a2 in range(2)] + [mfma(Ls(2*G + a2), ONE, Pb(b, a2), c) for a2 in range(2)]
    ex = lambda b, e: f"v_exp_f32 v{sreg(b,e)}, v{sreg(b,e)}"
    cv = lambda b, i: f"v_cvt_pk_bf16_f32 v{Pb(b, (i>>1)&1).b + 2*(i>>2) + (i&1)}, v{sreg(b,2*i)}, v{sreg(b,2*i+1)}"
    for i, m in enumerate(qk(0, 0) + qk(1, 1)): tl.sl[bQs + i].mf = m

    tl.put(signal(sSig, 4), base[16 + KVSIG] + 2)
    g = tl.seq([f"v_and_b32 v28, 31, {vLane}", "v_lshlrev_b32 v28, 2, v28"], gpk + 1)
    g = put_check(tl, "CK_ZA", f"buffer_load_dword v30, v28, {srd(rD)}, 0 offen sc1", "v30", 1, "ckza", g + 1, g + 40)
    g = put_check(tl, "CK_KV", f"buffer_load_dword v30, v29, {srd(rWS)}, {sFH} offen offset:4 sc1", "v30", 8, "ckkv", max(g + 1, base[16 + opt("ckl", 11)] + 4), base[15 + RPF] + 34)
    assert g < base[16 + RPF] + 2
    m96 = "s[96:97]"
    sal = [f"s_lshr_b32 {sKq}, {sX}, 1", f"s_and_b32 {sRb}, {sX}, 1", f"s_and_b32 {t0}, {sSlot}, 7", f"s_lshl3_add_u32 {sRb}, {sRb}, {t0}", f"s_lshr_b32 {sCt}, {sSlot}, 3",
           f"s_lshl_b32 {sStg}, {sWave}, 13", f"s_add_u32 {sStg}, {sStg}, 131072",
           f"s_mul_i32 {t0}, s2, 5462", f"s_lshr_b32 {t0}, {t0}, 16", f"s_mul_i32 {t2}, {t0}, 12", f"s_sub_u32 {t2}, s2, {t2}", f"s_mul_i32 {t2}, {t2}, 3", f"s_add_u32 {t2}, {t2}, {sWave}",
           f"s_mul_i32 {t3}, {t0}, 13108", f"s_lshr_b32 {t3}, {t3}, 16", f"s_mul_i32 {sRA}, {t3}, 5", f"s_sub_u32 {t0}, {t0}, {sRA}"]
    g = tl.seq(sal, gmig + 1)
    val = [f"v_lshrrev_b32 v16, 1, {vLane}", f"v_and_b32 v17, 1, {vLane}", "v_mul_u32_u24 v18, 1152, v16", "v_lshl_add_u32 v18, v17, 4, v18", "v_mov_b32 v24, v18",
           "v_lshrrev_b32 v18, 4, v16", "v_bfe_u32 v19, v16, 2, 2", "v_and_b32 v16, 3, v16",
           "v_lshrrev_b32 v20, 1, v19", "v_mul_u32_u24 v20, 18, v20", "v_and_b32 v21, 1, v19", "v_lshl_add_u32 v20, v21, 1, v20", "v_lshl_add_u32 v20, v16, 2, v20", "v_add_u32 v20, v20, v18",
           f"v_mad_u32_u24 v20, {t0}, 36, v20",
           "v_lshlrev_b32 v21, 1, v18", "v_lshl_add_u32 v21, v19, 2, v21", "v_lshrrev_b32 v22, 1, v16", "v_add_u32 v21, v21, v22", "v_mul_u32_u24 v21, 18, v21",
           "v_and_b32 v22, 1, v16", "v_add3_u32 v21, v21, v22, 16", f"v_cmp_lt_u32 {m96}, 1, v19", "v_mov_b32 v22, 0x100000", "v_mul_u32_u24 v23, 1, v23"]
    g = tl.seq(val, g + 1)
    g = tl.seq([f"v_cndmask_b32 v21, v21, v22, {m96}", f"v_mov_b32 v22, {t0}", f"v_cmp_eq_u32 {m96}, 4, v22"], g + 1)
    g = tl.seq([f"v_cndmask_b32 v20, v20, v21, {m96}", "v_mul_u32_u24 v20, 1152, v20", "v_lshl_add_u32 v20, v17, 4, v20", "v_mov_b32 v25, v20",
                f"v_mov_b32 v16, {t2}", f"v_mov_b32 v17, {t3}", f"v_add_u32 v18, 32, v22"], g + 2)
    g = tl.seq([f"s_mul_i32 {sRA}, {t3}, {144*1152}", f"s_lshl_b32 {t2}, {t2}, 5", f"s_add_u32 {sRA}, {sRA}, {t2}",
                f"s_and_b32 {t0}, s2, 1", f"s_lshr_b32 {t2}, {sWave}, 1", f"s_lshl1_add_u32 {t0}, {t0}, {t2}", f"s_mul_i32 {t0}, {t0}, 9", f"s_and_b32 {t2}, {sWave}, 1", f"s_mul_i32 {t3}, {t2}, 5",
                f"s_add_u32 {t0}, {t0}, {t3}", f"s_lshr_b32 {t3}, s2, 1", f"s_mul_i32 {sRB}, {t3}, 1152", f"s_add_u32 {sRB}, {sRB}, {t0}", f"s_lshl_b32 {sRB}, {sRB}, 5"], g + 1)
    g = tl.seq([f"v_cmp_gt_u32 {m96}, 5, {vLane}", f"v_add_u32 v19, {t0}, {vLane}", f"v_lshrrev_b32 v20, 5, {t3}", f"v_and_b32 v21, 31, {t3}"], g + 1)
    g = tl.seq([f"v_cndmask_b32 v16, v16, v19, {m96}", f"v_cndmask_b32 v17, v17, v20, {m96}", f"v_cndmask_b32 v18, v18, v21, {m96}",
                "v_mul_u32_u24 v19, 7282, v16", "v_lshrrev_b32 v19, 16, v19", "v_mul_u32_u24 v20, 9, v19", "v_sub_u32 v16, v16, v20",
                "v_lshl_add_u32 v19, v19, 2, v17", f"v_mul_u32_u24 v19, {21*16}, v19",
                "v_lshrrev_b32 v20, 1, v16", "v_sub_u32 v20, v20, v17", "v_add_u32 v20, 3, v20", "v_and_b32 v20, 3, v20",
                f"v_cmp_eq_u32 {m96}, 8, v16", "v_and_b32 v16, 1, v16", "v_lshlrev_b32 v21, 1, v20", "v_mul_u32_u24 v22, 74, v20"], g + 1)
    g = tl.seq([f"v_cndmask_b32 v21, v21, 4, {m96}", f"v_cndmask_b32 v20, v20, 0, {m96}", "v_mad_u32_u24 v21, v18, 5, v21", "v_lshl_add_u32 v22, v18, 1, v22", f"v_cmp_gt_u32 {m96}, 2, v20", "v_add_u32 v22, 37, v22", "v_add_u32 v19, v19, v16"], g + 1)
    g = tl.seq([f"v_cndmask_b32 v21, v22, v21, {m96}", "v_add_lshl_u32 v19, v19, v21, 10", f"v_add_u32 v19, {WS_WO}, v19"], g + 1)
    g = tl.seq([[f"s_cmp_eq_u32 {t2}, 1", f"s_cselect_b32 s96, 16, 0"], [f"s_cmp_eq_u32 {sWave}, 3", f"s_cselect_b32 {t0}, 32, 0"], f"s_or_b32 s96, s96, {t0}", [f"s_cmp_ge_u32 s2, 240", f"s_cselect_b32 {t0}, 32, 0"],
                f"s_or_b32 s96, s96, {t0}", "s_mov_b32 s97, 0"], g + 1)
    g = tl.seq([f"v_mov_b32 v20, {OOB}", f"v_cndmask_b32 v26, v19, v20, {m96}", f"v_lshlrev_b32 v27, 3, {vLane}", f"v_add_u32 v27, {sStg}, v27"], g + 1)
    assert g < base[29], kof(g)
    g = tl.seq([f"v_mov_b32 v16, 0x3f803f80"] + [f"v_accvgpr_write_b32 a{ONE.b+q}, v16" for q in range(4)] + [f"v_accvgpr_write_b32 a{Ls(2).b+q}, 0" for q in range(8)]
               + [f"v_lshlrev_b32 v16, 2, {vG}", f"v_sub_u32 v16, {vN}, v16"] + [f"v_cmp_gt_i32 s[{sTri[r]}:{sTri[r]+1}], {r}, v16" for r in range(4)]
               + [f"v_cmp_eq_u32 {m96}, 3, {vG}", f"v_add_u32 v17, 48, {vN}", "v_lshlrev_b32 v17, 2, v17", f"v_lshlrev_b32 v18, 16, {vG}", f"v_lshl_add_u32 v18, {vN}, 4, v18", "v_add_u32 v19, 0x8000, v18",
                  f"v_cndmask_b32 v19, v19, v20, {m96}"], g + 1)
    g = tl.seq([f"v_mov_b32 v{Cb(G,u,a2).b+r}, 0" for G in range(2) for u in range(2) for a2 in range(2) for r in range(4)], max(g, gspare + 2))
    g = tl.put(f"v_mov_b32 {vNEG}, {NEG:#x}", max(g, base[30]))
    def diag(G):
        o = []
        for r in range(4):
            for u in range(2): o.append(f"v_cndmask_b32 v{Cb(G,u,u).b+r}, v{Cb(G,u,u).b+r}, {vNEG}, s[{sTri[r]}:{sTri[r]+1}]")
            o.append(f"v_mov_b32 v{Cb(G,1,0).b+r}, {vNEG}")
        return o
    STUBS.extend(["D0:"] + diag(0) + ["s_branch D0_R"])
    g = tl.put([f"s_cmp_eq_u32 {sGs}, 0", "s_cbranch_scc1 D0\nD0_R:"], g + 1, lock=True)
    g = tl.seq([f"s_lshl_b32 {t0}, {sH}, 18", f"s_add_u32 {t0}, {t0}, {WS_QA}", f"s_lshl_b32 {t2}, {sGs}, 9", f"s_add_u32 {t2}, {t2}, {t0}", f"s_lshl_b32 {t3}, {sGl}, 9", f"s_add_u32 {t3}, {t3}, {t0}"], g + 1)
    note("P3 constants end at P2 k-step", kof(g) - 16)
    assert g < base[33] + 16
    g = tl.put("s_waitcnt vmcnt(@stg)", base[16 + opt("stw", 15)] + 3)
    g = tl.seq([[f"ds_read_b64_tr_b16 a[{192+4*i+2*q}:{193+4*i+2*q}], v27 offset:{i*1024 + q*512} ;@tr" for q in range(2)] for i in range(6)], g)
    dst = [sRB, sRA, sCc, sCc2, sWb, sWk]
    g = tl.seq([f"v_readlane_b32 {dst[i]}, v26, {i}" for i in range(6)], g)
    assert g < base[17 + opt("stw", 15)] - 6
    g = base[17 + opt("stw", 15)] - 3
    for i in range(6): g = tl.put(f"buffer_store_dwordx4 a[{192+4*i}:{195+4*i}], {vL16}, {srd(rWS)}, {dst[i]} offen sc1 ;@wo", g + opt("wsp", 5))
    note("w_o stores end at P2 k-step", kof(g) - 16)
    gwo = g
    g = 0
    for aa in range(4):
        for s in range(4): g = tl.seq(pack(Q(aa, s), acc2(aa, 2*s), acc2(aa, 2*s + 1)), max(g, fin[(aa, 2*s + 1)] + 7))
    assert g < bQs - 2
    tl.seq([f"ds_read_b128 {Kf(i>>2, i&3)(4)}, {vL16} offset:{2*16384 + i*1024}" for i in range(8)], max(base[33] + 2, gwo + 2), bQs - 8)
    g = 0
    for aa in range(4):
        ins = [f"ds_bpermute_b32 v{vOmg+aa}, v17, v{acc2(aa,8).b+3}"]
        for hf in range(2):
            d = acc2(aa, 8 + 2*hf)
            ins += pack(d, d, acc2(aa, 9 + 2*hf))
            ins.append(f"buffer_store_dwordx4 {d(4)}, v{18+hf}, {srd(rWS)}, {t2 if aa < 2 else t3} offen offset:{(aa & 1)*256}{FL[opt('fqa', 0)]} ;@qa")
        g = tl.seq(ins, max(g, fin[(aa, 11)] + 7))
    nrec = 18 - RPF - 1
    tl.force(bQl - 1, ["s_waitcnt vmcnt(@r1)"]); tl.force(bQl, ["s_barrier"])
    if STAMPS and opt("kst", 1):
        for t in range(2, 34):
            tl.force(base[t] + 2, ["s_memtime s[100:101]" if opt("kst", 1) == 1 else "s_memrealtime s[100:101]"])
            tl.force(base[t] + {14: 32, 32: 24}.get(t, (base[t+1] if t < 33 else bQs) - base[t]), [f"v_writelane_b32 v15, s100, {30 + t}"])
    L += tl.lines()
    L += stamp(2)
    for i in range(8): a(f"ds_read_b128 {Vf(i)(4)}, {vL16} offset:{3*16384 + 8192 + i*1024}")
    def maxsub(G, b):
        o = []; m = [TMP + 8 + 2*a2 for a2 in range(2)]
        rr = [[sreg(b, 4*(2*u + a2) + q) for u in range(2) for q in range(4)] for a2 in range(2)]
        for a2, r in enumerate(rr): o += [f"v_max3_f32 v{m[a2]}, v{r[0]}, v{r[1]}, v{r[2]}", f"v_max3_f32 v{m[a2]+1}, v{r[3]}, v{r[4]}, v{r[5]}"]
        for a2, r in enumerate(rr): o += [f"v_max3_f32 v{m[a2]}, v{m[a2]}, v{r[6]}, v{r[7]}", f"v_max_f32 v{m[a2]}, v{m[a2]}, v{m[a2]+1}"]
        for sw in ("v_permlane32_swap_b32", "v_permlane16_swap_b32"):
            o += [f"v_mov_b32 v{x+1}, v{x}" for x in m] + ["s_nop 1"] + [f"{sw} v{x+1}, v{x}" for x in m] + ["s_nop 0"] + [f"v_max_f32 v{x}, v{x}, v{x+1}" for x in m]
        o += [f"v_sub_f32 v{sreg(b,e)}, v{sreg(b,e)}, v{m[(e >> 2) & 1]}" for e in range(16)]
        c = [f"v_sub_f32 v{Cb(G,u,a2).b+r}, v{Cb(G,u,a2).b+r}, v{m[a2]}" for u in range(2) for a2 in range(2) for r in range(4)]
        return o, c
    rest = [x for n in range(nrec, RING - 1) for x in flat(rec_dma(n))]
    o, c = maxsub(0, 0)
    body = o + c
    for e in range(16):
        body.append(ex(0, e))
        if e >= 3 and e % 2 == 1: body.append(cv(0, (e - 3) // 2))
    o, c = maxsub(1, 1)
    body += o[:1] + [cv(0, 7)] + o[1:] + c
    body += [f"v_mov_b32 v{blk.b+q}, 0" for blk in Ol for q in range(4)]
    L += sprinkle(body, rest, 9)
    for i in range(8): a(f"ds_read_b128 {Kf(i>>2, i&3)(4)}, {vL16} offset:{3*16384 + i*1024}")
    a("s_waitcnt lgkmcnt(8)")
    EVT = [opt("e0", 16), opt("e1", 20)]
    tp = Timeline(); tp.add(pv(0, 0, "0"))
    items = []
    for e in range(13):
        items.append(ex(1, e))
        if e >= 3 and e % 4 == 3: items.append([cv(1, (e - 3) // 2), cv(1, (e - 3) // 2 + 1)])
    tp.seq(items, 0, step=1)
    tp.seq([f"s_lshl_b32 {t0}, {sJ}, 16", f"s_sub_u32 {t0}, {65*16384}, {t0}", f"s_add_u32 {sLastP}, {sKg}, {t0}", f"s_add_u32 {sKg}, {sKg}, {RING*16384}",
            f"s_lshl2_add_u32 {sWst}, {sCt}, {sKq}", f"s_mul_i32 {sWst}, {sWst}, {WO_S}", f"s_add_u32 {sWst}, {sWst}, {sKl}", f"s_add_u32 {sWst}, {sWst}, {WS_WO}",
            f"s_add_u32 {sKl}, {sKl}, {((RING - 1 + 3) % RING)*16384}",
            f"s_mov_b32 {sBo}, {3*16384}", f"s_mov_b32 {sN}, 1", f"s_mov_b32 {sEvT}, {EVT[0]}", f"s_min_u32 {sCnt}, {sEvT}, {sGs}"], 0)
    tp.put(f"v_add_u32 {vB}, {3*16384}, {vL16}", 16)
    tp.put("s_waitcnt vmcnt(@qa,@kvB,@wo) lgkmcnt(0)", 16)
    tp.force(17, ["s_barrier"])
    L += tp.lines()
    a(signal(sSig, 8))
    L += stamp(3)
    a(f"s_cmp_lt_u32 {sGs}, 2"); a("s_cbranch_scc1 L_DN")
    if "kill" in OPT:
        ks = OPT["kill"].split("+"); L = "\n".join(L).split("\n")
        for i, l in enumerate(L):
            c = ("kv" if "@kv" in l else "qa" if "@qa" in l else "wo" if "@wo" in l else "stg" if "@stg" in l else "pf" if l.startswith(("buffer_load_dword a252", "buffer_load_dword a253")) else
                 "u1" if l.startswith("buffer_load_dwordx2 a[") else "u1s" if sU1s + " offen offset" in l else "rec" if "@r" in l else None)
            if l.startswith("buffer_") and c in ks: L[i] = re.sub(r"s\[\d+:\d+\]", srd(rO), l)
            if l == f"s_mov_b32 s{rO+2}, {2048*576*2}": L[i] = f"s_mov_b32 s{rO+2}, 0"
        L.insert(-2, f"s_mov_b32 s{rO+2}, {2048*576*2}")
    pre = resolve_waits("\n".join(L).split("\n"))

    KPOS = [8, 8, 12, 14, 14, 16, 20, 22]; VPOS = [22, 24, 28, 32, 34, 34, 36, 40]; DPOS = [10, 18, 26, 30]
    def half(mode, hb):
        sal, ds, va = {}, {}, {}
        add = lambda d, g, x: d.setdefault(g, []).append(x)
        for e in range(16): p = 9 + 2*e; add(va, p % 34, ex(hb if p < 34 else 1 - hb, e))
        for i in range(8): p = 12 + 4*i; add(va, p % 34, cv(hb if p < 34 else 1 - hb, i))
        newrec = mode != "D" or hb == 0
        if mode == "S" or (mode == "D" and hb == 1):
            for i in range(8): add(ds, KPOS[i], f"ds_read_b128 {Kf(i>>2,i&3)(4)}, {vB} offset:{i*1024}")
        for i in range(8):
            if (VPOS[i] < 34 and newrec) or (VPOS[i] >= 34 and (mode != "D" or hb == 1)):
                add(ds, VPOS[i] % 34, f"ds_read_b128 {Vf(i)(4)}, {vB} offset:{8192 + i*1024}")
        if newrec:
            add(sal, 0, f"s_add_u32 {sBo}, {sBo}, 16384"); add(sal, 1, f"s_and_b32 {sBo}, {sBo}, {RING*16384 - 1}")
            add(va, 7, f"v_add_u32 {vB}, {sBo}, {vL16}")
            add(sal, 3, f"s_waitcnt vmcnt({8 if mode == 'F' else 4*(RING-3)})"); add(sal, 4, "s_barrier")
            add(sal, 2, f"s_cmp_eq_u32 {sKg}, {sLastP}"); add(sal, 5, f"s_cselect_b32 {sT}, {sWst}, {sKg}"); add(sal, 9, f"s_mov_b32 m0, {sKl}")
            for q in range(4): add(ds, DPOS[q], f"buffer_load_dwordx4 {vL16}, {srd(rWS)}, {sT} offen offset:{q*1024} sc1 lds")
            add(sal, 11, f"s_add_u32 {sKg}, {sT}, 16384"); add(sal, 13, f"s_add_u32 {sKl}, {sKl}, 16384"); add(sal, 17, f"s_and_b32 {sKl}, {sKl}, {RING*16384 - 1}")
            add(sal, 19, f"s_add_u32 {sN}, {sN}, 1")
        if mode == "S": add(sal, 15, "s_waitcnt lgkmcnt(5)"); add(sal, 31, "s_waitcnt lgkmcnt(3)")
        if mode == "F": add(sal, 15, "s_waitcnt lgkmcnt(0)")
        if mode == "D" and hb == 1: add(sal, 15, "s_waitcnt lgkmcnt(5)"); add(sal, 31, "s_waitcnt lgkmcnt(0)")
        if hb == 1: add(sal, 29, f"s_cmp_lt_u32 {sN}, {sCnt}")
        return sal, ds, va
    def emit(mf, f):
        sal, ds, va = f
        return weave(mf, {g: sal.get(g, []) + ds.get(g, []) + va.get(g, []) for g in range(len(mf))})
    D = ["L_DUAL:"] + emit(qk(0, 0) + pv(1, 1), half("D", 0)) + emit(qk(1, 1) + pv(0, 0), half("D", 1)) + ["s_cbranch_scc1 L_DUAL"]
    Sg = ["L_SINGLE:"] + emit(qk(1, 0) + pv(1, 1), half("S", 0)) + emit(qk(1, 1) + pv(1, 0), half("S", 1)) + ["s_cbranch_scc1 L_SINGLE"]
    check_scc(D); check_scc(Sg)
    tb = [V(TMP), V(TMP + 4), V(TMP + 8), V(TMP + 12)]
    BIG = f2u(2.0 ** opt("big", 60))
    rdl = lambda G: [f"v_accvgpr_read_b32 v{XV[0].b+2*a2}, a{Ls(2*G+a2).b}" for a2 in range(2)]
    def slow(G, name):
        g_ = sGl if G else sGs; m = [16, 18]; o = [f"{name}:", f"v_add_u32 v20, 4096, {vL16}", f"s_mov_b32 {t2}, 0"]
        o += [f"v_mov_b32 v{x}, {vNEG}" for x in m]
        o += [f"{name}_P:", f"s_mov_b32 {t1}, 0", f"s_mul_i32 {t0}, {sH}, {HS}", f"{name}_T:", f"s_add_u32 {t3}, {t0}, {16384 + 8192}"]
        o += [f"buffer_load_dwordx4 {Kf(i>>2,i&3)(4)}, {'v20' if i > 3 else vL16}, {srd(rWS)}, {t0} offen offset:{(i&3)*1024} sc1" for i in range(8)]
        o += [f"buffer_load_dwordx4 {Vf(i)(4)}, {'v20' if i > 3 else vL16}, {srd(rWS)}, {t3} offen offset:{(i&3)*1024} sc1" for i in range(8)]
        o += ["s_waitcnt vmcnt(0)"] + [mfma(Sb(0, 2*u + a2), Kf(u, s_), Q(2*G + a2, s_), "0" if s_ == 0 else None) for u in range(2) for a2 in range(2) for s_ in range(4)]
        o += ["s_nop 7", f"s_cmp_lg_u32 {t1}, {g_}", f"s_cbranch_scc1 {name}_U"]
        for r in range(4):
            o += [f"v_cndmask_b32 v{Sb(0,3*u).b+r}, v{Sb(0,3*u).b+r}, {vNEG}, s[{sTri[r]}:{sTri[r]+1}]" for u in range(2)] + [f"v_mov_b32 v{Sb(0,2).b+r}, {vNEG}"]
        o += [f"{name}_U:", f"s_cmp_lg_u32 {t2}, 0", f"s_cbranch_scc1 {name}_A"]
        o += [f"v_max3_f32 v{m[(e>>2)&1]}, v{m[(e>>2)&1]}, v{sreg(0,e)}, v{sreg(0,e+1)}" for e in range(0, 16, 2)]
        o += [f"s_branch {name}_N", f"{name}_A:"]
        o += [f"v_sub_f32 v{sreg(0,e)}, v{sreg(0,e)}, v{m[(e>>2)&1]}" for e in range(16)] + [ex(0, e) for e in range(16)] + ["s_nop 0"] + [cv(0, i) for i in range(8)] + ["s_nop 1"] + pv(G, 0)
        o += [f"{name}_N:", f"s_add_u32 {t0}, {t0}, 16384", f"s_add_u32 {t1}, {t1}, 1", f"s_cmp_le_u32 {t1}, {g_}", f"s_cbranch_scc1 {name}_T",
              f"s_cmp_lg_u32 {t2}, 0", f"s_cbranch_scc1 {name}_E"]
        for sw in ("v_permlane32_swap_b32", "v_permlane16_swap_b32"):
            o += [f"v_mov_b32 v{x+1}, v{x}" for x in m] + ["s_nop 1"] + [f"{sw} v{x+1}, v{x}" for x in m] + ["s_nop 1"] + [f"v_max_f32 v{x}, v{x}, v{x+1}" for x in m]
        for blk in [O(2*G + a2, dt) for a2 in range(2) for dt in range(8)] + [Ls(2*G), Ls(2*G + 1)]:
            o += [(f"v_mov_b32 v{blk.b+q}, 0" if blk.p == "v" else f"v_accvgpr_write_b32 a{blk.b+q}, 0") for q in range(4)]
        o += [f"s_mov_b32 {t2}, 1", f"s_branch {name}_P", f"{name}_E:", "s_nop 7"] + rdl(G) + [f"s_branch {name}_R"]
        return o
    def epilogue(G, bad, ret=None):
        sc = XV[0].b
        o = rdl(G) + [f"v_cmp_nle_f32 vcc, v{sc}, v7", f"v_cmp_nle_f32 s[96:97], v{sc+2}, v7", "s_nop 3", "s_or_b64 vcc, vcc, s[96:97]", f"s_cbranch_vccnz {bad}"] + ([f"{ret}:"] if ret else [])
        for a2 in range(2): o.append(f"v_mul_f32 v{vOmg+2*G+a2}, {f2u(LOG2E):#x}, v{vOmg+2*G+a2}")
        for a2 in range(2): o.append(f"v_exp_f32 v{vOmg+2*G+a2}, v{vOmg+2*G+a2}")
        o += ["s_nop 0"]
        for a2 in range(2): o.append(f"v_fma_f32 v{sc+2*a2}, v{sc+2*a2}, v{vOmg+2*G+a2}, v{sc+2*a2}")
        for a2 in range(2): o.append(f"v_rcp_f32 v{sc+2*a2}, v{sc+2*a2}")
        o += [f"s_add_u32 {t0}, {sZl if G else sZs}, 4096"]
        for a2 in range(2): o.append(f"v_mov_b32 v{sc+2*a2+1}, v{sc+2*a2}")
        k = 0
        for s in range(4):
            for a2 in range(2):
                aa = 2*G + a2; x0, x1 = O(aa, 2*s), O(aa, 2*s + 1)
                if x0.p == "a":
                    y0, y1 = tb[2*(k & 1)], tb[2*(k & 1) + 1]; k += 1
                    o += [f"v_accvgpr_read_b32 v{y.b+q}, a{x.b+q}" for x, y in ((x0, y0), (x1, y1)) for q in range(4)]
                    x0, x1 = y0, y1
                o += [f"v_pk_mul_f32 v[{x.b+q}:{x.b+q+1}], v[{x.b+q}:{x.b+q+1}], v[{sc+2*a2}:{sc+2*a2+1}]" for x in (x0, x1) for q in (0, 2)]
                o += pack(x0, x0, x1)
                o.append(f"buffer_store_dwordx4 {x0(4)}, {vL16}, {srd(rWS)}, {t0 if s > 1 else (sZl if G else sZs)} offen offset:{(s & 1)*2048 + a2*1024} sc1")
        return o
    SE = epilogue(0, "L_SN") + [f"s_mov_b32 {sDone}, 1"]
    SE2 = epilogue(0, "SLOW0", "SLOW0_R")
    SL = [slow(0, "SLOW0"), slow(1, "SLOW1")]
    vF, vFa = f"v{XV[1].b}", f"v{XV[1].b+1}"
    ldW = f"buffer_load_dword {vF}, {vFa}, {srd(rWS)}, 0 offen sc1"
    def event(n):
        e0 = [f"s_cmp_lt_u32 {sN}, {sEvT}", f"s_cbranch_scc1 L_{n}N", f"s_cmp_lg_u32 {sEvT}, {EVT[0]}", f"s_cbranch_scc1 L_{n}C"]
        e1 = [f"v_and_b32 {vFa}, 31, {vLane}", f"v_lshlrev_b32 {vFa}, 10, {vFa}", f"v_add_u32 {vFa}, {WS_FL + 512 + 8}, {vFa}", ldW, f"s_mov_b32 {sEvT}, {EVT[1]}", f"s_branch L_{n}N"]
        w, c, b = check(f"CK_{n}", ldW, vF, 8, f"s_waitcnt vmcnt({4*(EVT[1] - EVT[0] - 1)})")
        e2 = [f"L_{n}C:"] + w + c + [f"s_mov_b32 {sEvT}, 64", "s_nop 3"] + b[0].split("\n")
        return e0, e1, e2
    ED, ES = event("D"), event("S")
    X1 = ["L_DN:", f"s_min_u32 {sCnt}, {sEvT}, {sGs}", f"s_cmp_lt_u32 {sN}, {sGs}", "s_cbranch_scc1 L_DUAL", f"s_cmp_gt_u32 {sN}, {sGs}", "s_cbranch_scc1 L_POST"]
    X2 = diag(0) + ["s_nop 0", "s_branch L_DUAL"]
    X4 = ["L_POST:"] + stamp(4) + [f"s_lshr_b32 {t0}, {sH}, 3", f"s_mul_i32 {t0}, {t0}, {Z_Q}", f"s_and_b32 {t1}, {sH}, 7", f"s_lshl_b32 {t1}, {t1}, 13", f"s_add_u32 {t0}, {t0}, {t1}", f"s_add_u32 {t0}, {t0}, {WS_Z}",
          f"s_mul_i32 {sZs}, {sGs}, {Z_G}", f"s_add_u32 {sZs}, {sZs}, {t0}", f"s_mul_i32 {sZl}, {sGl}, {Z_G}", f"s_add_u32 {sZl}, {sZl}, {t0}",
          f"s_mov_b32 {sDone}, 0", f"v_mov_b32 v7, {BIG:#x}", f"s_cmp_ge_u32 {sWave}, 2", "s_cbranch_scc1 L_SN"]
    X5 = [f"s_min_u32 {sCnt}, {sEvT}, {sGl}"]
    X6 = ["L_SN:", f"s_min_u32 {sCnt}, {sEvT}, {sGl}", f"s_cmp_lt_u32 {sN}, {sGl}", "s_cbranch_scc1 L_SINGLE"]

    E = stamp(5) + diag(1) + ["s_nop 1"]; a = E.append
    E += emit(qk(1, 0) + pv(1, 1), half("F", 0))
    xbar = lambda k: [f"s_cmp_lt_u32 {sWave}, {k}", f"s_cbranch_scc1 L_XB{k}", "s_barrier"] + flat(ring_dma("x")) + [f"L_XB{k}:"]
    for i in range(4, 8): a(f"ds_read_b128 {Vf(i)(4)}, {vB} offset:{8192 + i*1024}")
    a(ex(0, 13)); a(ex(0, 14)); a(ex(0, 15)); E += xbar(1); a(cv(0, 6)); a(cv(0, 7))
    E += [f"s_lshl_b32 {t1}, {sH}, 18", f"s_add_u32 {t1}, {t1}, {WS_QA}", f"s_lshl_b32 {t2}, {sGs}, 9", f"s_add_u32 {t2}, {t2}, {t1}", f"s_lshl_b32 {t3}, {sGl}, 9", f"s_add_u32 {t3}, {t3}, {t1}"]
    la = [([f"s_add_u32 m0, {sStg}, {(G*5 + c - 2)*768}", f"s_add_u32 {sT}, {t3 if G else t2}, {c*32768 - 256}"],
           ["s_mov_b32 exec_hi, 0xffff", f"buffer_load_dwordx4 {vL16}, {srd(rWS)}, {sT} offen sc1 lds", "s_mov_b32 exec_hi, -1"]) for G in range(2) for c in range(2, 7)]
    E += la[0][0] + la[0][1]
    a("s_waitcnt lgkmcnt(0)")
    E += weave(pv(1, 0), {g: la[1 + g//2][g & 1] for g in range(18)})
    vRow, vLa = XV[2].b, XV[2].b + 1
    qr = [Cb(0, 0, 0), Cb(0, 0, 1)]
    a(f"v_and_b32 v{vRow+2}, 31, {vLane}"); a(f"v_cmp_lt_u32 vcc, 31, {vLane}"); a(f"v_mov_b32 v{vRow}, {sGs}"); a(f"v_mov_b32 v{vRow+3}, {sGl}")
    a(f"v_cndmask_b32 v{vRow}, v{vRow}, v{vRow+3}, vcc"); a(f"v_lshl_add_u32 v{vRow}, v{vRow}, 5, v{vRow+2}"); a(f"v_lshlrev_b32 v{vRow+3}, 4, v{vRow}")
    a(f"buffer_load_dwordx4 {qr[0](4)}, v{vRow+3}, {srd(rWS)}, {t1} offen sc1"); a(f"s_add_u32 {t1}, {t1}, 32768")
    a(f"buffer_load_dwordx4 {qr[1](4)}, v{vRow+3}, {srd(rWS)}, {t1} offen sc1")
    a(f"v_lshrrev_b32 v{vLa}, 5, {vLane}"); a(f"v_mul_u32_u24 v{vLa}, 3840, v{vLa}"); a(f"v_lshl_add_u32 v{vLa}, v{vRow+2}, 4, v{vLa}"); a(f"v_add_u32 v{vLa}, {sStg}, v{vLa}")
    E += xbar(2) + epilogue(1, "SLOW1", "SLOW1_R") + xbar(3)
    E1 = [f"s_cmp_lg_u32 {sDone}, 0", "s_cbranch_scc1 L_NOSE2"]
    E2 = ["L_NOSE2:"] + stamp(6); a = E2.append
    sFz, sFc, sZb, sPx, sFp = sCnt, sBo, sDone, sEv, sEvT
    a(f"v_mov_b32 v5, v{vRow}"); a(f"v_mov_b32 v6, v{vLa}")
    a(f"s_lshl_b32 {sFz}, {sGs}, 10"); a(f"s_lshr_b32 {t0}, {sH}, 3"); a(f"s_lshl_b32 {t0}, {t0}, 7"); a(f"s_add_u32 {sFz}, {sFz}, {t0}"); a(f"s_add_u32 {sFz}, {sFz}, {WS_FL}")
    a("s_waitcnt vmcnt(8)")
    for q in range(8): a(f"v_mov_b32 v{16+q}, v{qr[q>>2].b + (q&3)}")
    a("s_barrier")
    Kr = lambda w: 32 + 8*w; Xr = lambda w: 96 + 4*w; Vr = lambda w: 128 + 8*w
    for w in range(8):
        o = (16 - 2*w)*16
        a(f"ds_read_b128 v[{Xr(w)}:{Xr(w)+3}], v6 offset:{o + 4*768}"); a(f"ds_read_b128 v[{Kr(w)}:{Kr(w)+3}], v6 offset:{o}"); a(f"ds_read_b128 v[{Kr(w)+4}:{Kr(w)+7}], v6 offset:{o + 768}")
    a("s_waitcnt lgkmcnt(0)")
    for w in range(8):
        o = (16 - 2*w)*16
        a(f"ds_read_b128 v[{Vr(w)}:{Vr(w)+3}], v6 offset:{o + 2*768}"); a(f"ds_read_b128 v[{Vr(w)+4}:{Vr(w)+7}], v6 offset:{o + 3*768}")
    lg = 24
    a(f"v_and_b32 v9, 0xffff, v{Xr(0)+1}"); a(f"v_and_b32 v11, 0xffff0000, v{Xr(0)+1}")
    for w in range(8): a(f"v_dot2_f32_bf16 v{lg+w}, v{Xr(w)+2}, v{Xr(0)+3}, 0")
    for w in range(8): a(f"v_dot2_f32_bf16 v{lg+w}, v{Xr(w)}, v9, v{lg+w}")
    for i in range(8):
        for w in range(8): a(f"v_dot2_f32_bf16 v{lg+w}, v{16+i}, v{Kr(w)+i}, v{lg+w}")
    a("s_waitcnt vmcnt(0)"); a(signal(sFz))
    LA = []; a = LA.append
    a(f"v_mov_b32 v9, {NEG:#x}"); a(f"v_mul_f32 v11, {f2u(-LOG2E):#x}, v11"); a("v_exp_f32 v11, v11")
    for w in range(1, 8, 2):
        a(f"v_cmp_gt_u32 vcc, {2*w}, v5")
        a(f"v_cmp_gt_u32 s[{sTri[0]}:{sTri[0]+1}], {2*w+2}, v5" if w < 7 else "s_nop 0")
        a("s_nop 0"); a(f"v_cndmask_b32 v{lg+w}, v{lg+w}, v9, vcc")
        if w < 7: a(f"v_cndmask_b32 v{lg+w+1}, v{lg+w+1}, v9, s[{sTri[0]}:{sTri[0]+1}]")
    a(f"v_max3_f32 v10, v{lg}, v{lg+1}, v{lg+2}"); a(f"v_max3_f32 v10, v10, v{lg+3}, v{lg+4}"); a(f"v_max3_f32 v10, v10, v{lg+5}, v{lg+6}"); a(f"v_max_f32 v10, v10, v{lg+7}")
    for w in range(8): a(f"v_sub_f32 v{lg+w}, v{lg+w}, v10")
    for w in range(8): a(f"v_mul_f32 v{lg+w}, {f2u(LOG2E / math.sqrt(18.0)):#x}, v{lg+w}")
    for w in range(8): a(f"v_exp_f32 v{lg+w}, v{lg+w}")
    for w in range(8): a(f"v_cvt_pk_bf16_f32 v{Kr(w)}, v{lg+w}, 0")
    for w in range(8): a(f"v_lshlrev_b32 v{Kr(w)+1}, 16, v{Kr(w)}")
    a(f"v_add_f32 v10, v{Kr(0)+1}, v{Kr(1)+1}")
    for w in range(2, 8): a(f"v_add_f32 v10, v10, v{Kr(w)+1}")
    a("v_fma_f32 v10, v10, v11, v10"); a("v_rcp_f32 v10, v10")
    a("s_waitcnt lgkmcnt(0)")
    ob = 192
    for w in range(8):
        cc = lambda r: "0" if w == 0 else f"v{r}"
        for i in range(8):
            for q in range(2): a(f"v_dot2_f32_bf16 v{ob+2*i+q}, v{Vr(w)+i}, v{Kr(w)+q}, {cc(ob+2*i+q)}")
        for q in range(2): a(f"v_dot2_f32_bf16 v{ob+16+q}, v{Xr(w)+2*q}, v{Kr(w)+1}, {cc(ob+16+q)}")
    a("v_lshrrev_b32 v9, 5, v5"); a(f"v_mul_u32_u24 v9, {Z_G}, v9"); a(f"v_and_b32 v11, 1, {vG}"); a("v_lshl_add_u32 v9, v11, 10, v9"); a(f"v_lshl_add_u32 v9, {vN}, 4, v9")
    for i in range(18): a(f"v_mul_f32 v{ob+i}, v10, v{ob+i}")
    for i in range(9): a(f"v_cvt_pk_bf16_f32 v{ob+i}, v{ob+2*i}, v{ob+2*i+1}")
    E2 += sprinkle(LA, flat(ring_dma("x")) + flat(ring_dma("x")), 12)
    a = E2.append
    a(f"s_lshr_b32 {t1}, {sH}, 3"); a(f"s_mul_i32 {t1}, {t1}, {Z_Q}"); a(f"s_add_u32 {t1}, {t1}, {WS_Z + 32*2048}")
    a(f"s_bfe_u32 {t2}, {sH}, {(2 << 16) | 1}"); a(f"s_lshl_b32 {t2}, {t2}, 11"); a(f"s_add_u32 {t2}, {t2}, {t1}")
    a(f"s_and_b32 {t3}, {sH}, 1"); a(f"s_lshl_b32 {t3}, {t3}, 9"); a(f"s_add_u32 {t2}, {t2}, {t3}")
    a(f"buffer_store_dwordx4 v[{ob}:{ob+3}], v9, {srd(rWS)}, {t2} offen sc1"); a(f"buffer_store_dwordx4 v[{ob+4}:{ob+7}], v9, {srd(rWS)}, {t2} offen offset:256 sc1")
    a(f"s_bfe_u32 {t3}, {sH}, {(1 << 16) | 2}"); a(f"s_lshl_b32 {t3}, {t3}, 8"); a(f"s_add_u32 {t2}, {t1}, {t3}")
    a(f"s_and_b32 {t3}, {sH}, 3"); a(f"s_lshl2_add_u32 {t2}, {t3}, {t2}"); a(f"s_add_u32 {t2}, {t2}, {4*2048}")
    a(f"buffer_store_dword v{ob+8}, v9, {srd(rWS)}, {t2} offen sc1")
    sGam, sO9 = sN, sLastP
    a(f"s_lshr_b32 {t0}, {sWave}, 1"); a(f"s_lshl1_add_u32 {t0}, {sRb}, {t0}")
    a(f"s_lshl3_add_u32 {sFc}, {t0}, {sKq}"); a(f"s_lshl_b32 {sFc}, {sFc}, 7"); a(f"s_add_u32 {sFc}, {sFc}, {WS_FL}")
    a("v_mov_b32 v10, 0")
    ldB = f"buffer_load_dword v12, v10, {srd(rWS)}, {sFc} offen sc1"
    a(ldB)
    a(f"s_sub_u32 {t1}, 63, {t0}"); a(f"s_bitcmp1_b32 {sWave}, 0"); a(f"s_cselect_b32 {sGam}, {t1}, {t0}")
    a(f"s_mul_i32 {sZb}, {sGam}, {Z_G}"); a(f"s_mul_i32 {t1}, {sKq}, {Z_Q}"); a(f"s_add_u32 {sZb}, {sZb}, {t1}"); a(f"s_add_u32 {sZb}, {sZb}, {WS_Z}")
    a(f"s_lshl2_add_u32 {t0}, {sRb}, {sCt}")
    a(f"s_lshl2_add_u32 {sPx}, {t0}, {sWave}"); a(f"s_mul_i32 {sPx}, {sPx}, {PX_S}"); a(f"s_add_u32 {sPx}, {sPx}, {WS_PX}")
    a(f"s_lshr_b32 {sFp}, {t0}, 1"); a(f"s_lshl_b32 {sFp}, {sFp}, 10"); a(f"s_and_b32 {t0}, {t0}, 1"); a(f"s_lshl_b32 {t0}, {t0}, 7"); a(f"s_add_u32 {sFp}, {sFp}, {t0}")
    a(f"s_lshl2_add_u32 {sFp}, {sWave}, {sFp}"); a(f"s_add_u32 {sFp}, {sFp}, {WS_FL + 640}")
    a(f"s_and_b32 {t0}, {sJ}, 1"); a(f"s_lshl_b32 {t0}, {t0}, 16"); a(f"v_add_u32 v7, {t0}, {vL16}"); a("v_xor_b32 v8, 0x10000, v7")
    a(f"v_cmp_gt_u32 vcc, 32, {vLane}"); a(f"v_mov_b32 v11, {OOB}"); a("s_nop 0"); a(f"v_cndmask_b32 v11, v11, {vL16}, vcc")
    E2 += stamp(7)
    w, c, b = check("CK_ZB", ldB, "v12", 8, "s_waitcnt vmcnt(0)")
    E2 += w + [signal(sFz, 4)] + c + ["s_nop 4"] + b
    E2 += stamp(8)
    Zf = lambda k, a2: A(4*(2*k + a2)) if k < 32 else V(32 + 4*(2*(k - 32) + a2))
    accA = lambda t, a2: V(72 + 4*(2*t + a2)); accB = lambda t, a2: V(112 + 4*(2*t + a2)); accC = lambda t, a2: V(128 + 4*(2*t + a2))
    NWB = 8; Wb = lambda f: V(144 + 4*(f % NWB)); IN = lambda i: V(176 + 4*i); SUM = lambda t, a2: V(212 + 4*(2*t + a2))
    def zload(i):
        k, a2 = i >> 1, i & 1
        return ([f"s_add_u32 {sT2}, {sZb}, {(i >> 2)*4096}"] if i % 4 == 0 else [],
                f"buffer_load_dwordx4 {Zf(k,a2)(4)}, {'v11' if k == 36 else vL16}, {srd(rWS)}, {sT2} offen offset:{(i & 3)*1024} sc1 ;@Z{k}")
    def wread(f):
        p = (3 + (f >> 4)) % 8
        return f"ds_read_b128 {Wb(f)(4)}, {'v8' if p >> 2 else 'v7'} offset:{(p & 3)*16384 + (f & 15)*1024} ;@f{f}"
    Z0 = opt("z0", 10); RA = 6
    for i in range(Z0): s_, l_ = zload(i); E2 += s_ + [l_]
    a("s_barrier")
    for f in range(RA): a(wread(f))
    a("s_waitcnt vmcnt(@Z0) lgkmcnt(@f1)")
    t4 = Timeline()
    t4.add([mfma(accA(t, a2), Wb(5*k + t), Zf(k, a2), "0" if k == 0 else None) for k in range(37) for t in range(5) for a2 in range(2)])
    bB = t4.add([mfma(accB(t, a2), Wb(185 + 2*k + t), Zf(k, a2), "0" if k == 0 else None) for k in range(37) for t in range(2) for a2 in range(2)])
    bC = t4.add([mfma(accC(t, a2), Wb(259 + 2*k + t), Zf(k, a2), "0" if k == 0 else None) for k in range(37) for t in range(2) for a2 in range(2)])
    barpos = {c: 32*c - 2*RA - 3 for c in range(2, 21, 2)}
    for c, p in barpos.items():
        if c >= 8: t4.force(p - 1, [f"s_waitcnt vmcnt(@W{min(c + 1, 20)})"])
        t4.force(p, ["s_barrier"], lock=True)
    ldA = f"buffer_load_dword v12, v10, {srd(rWS)}, {sFc} offen offset:4 sc1"
    gA = put_check(t4, "CK_ZAA", ldA, "v12", 8, "fa", 5*(64 - Z0) - 60, 5*(64 - Z0) - 14)
    g = 0
    for i in range(Z0, 74):
        s_, l_ = zload(i); lo = max(g + 1, 5*(i - Z0), gA + 1 if i >= 64 else 0)
        if s_: lo = t4.put(s_, max(g + 1, lo - 1)) + 1
        g = t4.put(l_, lo)
        assert g < 10*(i >> 1) - 20, (i, g)
    for c, chs in {2: [8], 4: [9], 6: [10, 11], 8: [12, 13], 10: [14, 15], 12: [16, 17], 14: [18, 19], 16: [20]}.items():
        g = put_dmas(t4, [ring_dma(f"W{x}") for x in chs], barpos[c] + 3, barpos[c] + 58)
        assert g <= barpos[c + 2], (c, g)
    def send(d): return [f"s_add_u32 {t0}, {sKq}, {d}", f"s_and_b32 {t0}, {t0}, 3", f"s_mul_i32 {t0}, {t0}, 6144"], [f"s_add_u32 {t0}, {t0}, {sPx}", f"s_add_u32 {t0}, {t0}, {(d - 1)*2048}"]
    st = lambda blk, sr, off, tag: f"buffer_store_dwordx4 {blk(4)}, {vL16}, {srd(rWS)}, {sr} offen offset:{off} sc1 ;@{tag}"
    ld = lambda blk, sr, off, tag: f"buffer_load_dwordx4 {blk(4)}, {vL16}, {srd(rWS)}, {sr} offen offset:{off} sc1 ;@{tag}"
    deferred = []
    g = bB + 6
    for d in (1, 2):
        g = t4.seq(list(send(d)), g)
        for a2 in range(2):
            g0 = g; g = t4.put(st(accA(2*d - 2, a2), t0, a2*1024, "p1"), g + 6) + 1; deferred.append((pack(accA(2*d - 2, a2), accA(2*d - 2, a2), accA(2*d - 1, a2)), bB + 7, g - 1))
    g = t4.seq([[f"s_sub_u32 {t0}, {sWave}, {sKq}", f"s_and_b32 {t0}, {t0}, 3", f"s_lshl_b32 {t1}, {t0}, 10"], [f"s_add_u32 {t1}, {t1}, {sPx}", f"s_add_u32 {t1}, {t1}, {24576 - 1024}", f"s_add_u32 {sO9}, {sPx}, 24576"],
                [f"s_cmp_eq_u32 {t0}, 0", f"s_cselect_b32 {t1}, {OOB}, {t1}", f"s_cselect_b32 {sO9}, {sO9}, {OOB}"]], g)
    g = t4.put(st(V(228), t1, 0, "p1"), g + 3); deferred.append((pack(V(228), accA(4, 0), accA(4, 1)), bB + 7, g))
    g = t4.put("s_waitcnt vmcnt(@p1)", g + opt("pw1", 60)); g = t4.put(signal(sFp), g + 1)
    assert g < bC
    g = t4.seq(list(send(3)), bC - 4)
    for a2 in range(2):
        g = t4.put(st(accB(0, a2), t0, a2*1024, "p2"), max(g + 5, bC + 13)); deferred.append((pack(accB(0, a2), accB(0, a2), accB(1, a2)), bC + 7, g))
    ld1 = f"buffer_load_dword v12, v10, {srd(rWS)}, {sFp} offen sc1"
    g = put_check(t4, "CK_P1", ld1, "v12", 4, "g1", g + 1, g + opt("pw2", 40))
    g = t4.put(signal(sFp, 16), g + 1)
    g = t4.seq([[f"s_mul_i32 {t0}, {sKq}, 6144", f"s_add_u32 {t0}, {t0}, {sPx}", f"s_add_u32 {t1}, {t0}, 4096"]], g + 1)
    for i in range(7): g = t4.put(ld(IN(i), t0 if i < 4 else sO9, (i if i < 4 else i - 4)*1024, "in1"), g + 2)
    gin = g
    ld2 = f"buffer_load_dword v12, v10, {srd(rWS)}, {sFp} offen offset:16 sc1"
    t4.put(ld2, max(gin + 1, len(t4) - opt("pw3", 24)))
    rpos = {f: -99 for f in range(RA)}; g = 0
    for f in range(RA, 333):
        c = (f >> 4) & ~1
        lo = max(g, 2*f - 2*RA - 2, 2*(f - NWB) + 1, barpos[c] + 1 if c >= 8 else 0)
        g = rpos[f] = t4.put(wread(f), lo, 2*f - 5)
    for f in range(2, 333, 2): t4.put_back(f"s_waitcnt lgkmcnt(@f{min(f + 1, 332)})", 2*f - 1, max(rpos[min(f + 1, 332)] + 1, 0))
    for k in range(1, 37): t4.put_back(f"s_waitcnt vmcnt(@Z{k})", 10*k - 1, 10*k - 8)
    g = 0
    for ins, lo, hi in deferred: g = t4.seq(ins, max(lo, g), hi - 1)
    def unpack(src, d0, d1, first):
        o = []
        for q in range(4):
            d = (d0 if q < 2 else d1).b + 2*(q & 1); x = 16 + 2*q
            if first: o += [f"v_lshlrev_b32 v{d}, 16, v{src.b+q}", f"v_and_b32 v{d+1}, 0xffff0000, v{src.b+q}"]
            else: o += [f"v_lshlrev_b32 v{x}, 16, v{src.b+q}", f"v_and_b32 v{x+1}, 0xffff0000, v{src.b+q}", f"v_add_f32 v{d}, v{d}, v{x}", f"v_add_f32 v{d+1}, v{d+1}, v{x+1}"]
        return o
    up = [x for a2 in range(2) for x in unpack(IN(a2), SUM(0, a2), SUM(1, a2), True)] + [x for a2 in range(2) for x in unpack(IN(2 + a2), SUM(0, a2), SUM(1, a2), False)]
    up += [x for i in range(3) for x in unpack(IN(4 + i), accA(4, 0), accA(4, 1), False)]
    g = t4.put("s_waitcnt vmcnt(@in1)", min(gin + opt("pw4", 30), len(t4) - 2)) ; g0 = g
    while up:
        try: g = t4.put(up[0], g); up.pop(0)
        except RuntimeError: break
    note("P4: inbox wait at", g0 - bC, "of", len(t4) - bC, "; unpack ops left over:", len(up))
    if STAMPS:
        for q, p in enumerate((180, bB, bC, bC + 100)): t4.sl[p].va = t4.sl[p].va + stamp(11 + q)
    E2 += t4.lines()
    E2 += stamp(9)
    E2 += line_check("CK_P2", ld2, "v12", 4, "s_waitcnt vmcnt(0)")
    for a2 in range(2): a(ld(IN(7 + a2), t1, a2*1024, "in2"))
    E2 += up
    a(f"s_mul_i32 {t0}, {sGam}, {32*1152}"); a(f"s_mul_i32 {t1}, {sCt}, 288"); a(f"s_add_u32 {t0}, {t0}, {t1}")
    a(f"s_add_u32 {t2}, {t0}, 256"); a(f"s_cmp_eq_u32 {sWave}, {sKq}"); a(f"s_cselect_b32 {t2}, {t2}, {OOB}"); a(f"s_add_u32 {t3}, {t2}, {16*1152}")
    a(f"s_lshl_b32 {t1}, {sKq}, 6"); a(f"s_add_u32 {t0}, {t0}, {t1}"); a(f"s_add_u32 {t1}, {t0}, {16*1152}")
    a(f"v_mul_u32_u24 v5, 1152, {vN}"); a(f"v_lshl_add_u32 v6, {vG}, 3, v5"); a(f"v_and_b32 v7, 1, {vG}"); a("v_lshl_add_u32 v5, v7, 5, v5"); a(f"v_lshrrev_b32 v7, 1, {vG}"); a("v_lshl_add_u32 v5, v7, 4, v5")
    E2 += pack(V(228), accA(4, 0), accA(4, 1))
    a(f"buffer_store_dwordx2 v[228:229], v6, {srd(rO)}, {t2} offen"); a(f"buffer_store_dwordx2 v[230:231], v6, {srd(rO)}, {t3} offen")
    for r in range(0, 16, 2): a(f"v_pk_add_f32 v[{212+r}:{213+r}], v[{212+r}:{213+r}], v[{128+r}:{129+r}]")
    a("s_waitcnt vmcnt(@in2)")
    for a2 in range(2):
        d = SUM(0, a2)
        E2 += unpack(IN(7 + a2), d, SUM(1, a2), False) + pack(d, d, SUM(1, a2)) + ["s_nop 1", f"v_permlane16_swap_b32 v{d.b}, v{d.b+2}", f"v_permlane16_swap_b32 v{d.b+1}, v{d.b+3}"]
        a(f"buffer_store_dwordx4 {d(4)}, v5, {srd(rO)}, {t1 if a2 else t0} offen")
    E2 += stamp_out(10)
    a("L_END:"); a("s_endpgm")
    sp = lambda x: "\n".join(x).split("\n")
    E = sp(E); E2 = resolve_waits(sp(E2))
    check_scc(pre); check_scc(E); check_scc(E2)
    code = pre + D + ED[0] + ED[1] + ED[2] + X1 + X2 + X4 + SE + X5 + Sg + ES[0] + ES[1] + ES[2] + X6 + E + E1 + SE2 + E2 + STUBS + SL[0] + SL[1]
    nr = EVT[1] - EVT[0] - 1
    traces = [pre + D + D + ED[0] + ED[1] + X1[:4] + D*nr + ED[0] + ED[2] + X1 + X2 + D + ED[0][:2] + X1 + X4 + SE + X5 + Sg + Sg + ES[0][:2] + X6 + E + E1 + E2,
              pre + X1 + X4 + SE + X5 + Sg + ES[0] + ES[1] + X6 + Sg*((nr + 1)//2) + ES[0] + ES[2] + X6 + Sg + ES[0][:2] + X6 + E + E1 + SE2 + E2,
              pre + X1 + X2 + D + ED[0][:2] + X1 + X4 + X6 + E + E1 + SE2 + E2]
    def splice(lines, nm, sl):
        i = lines.index(f"{nm}_R:"); iT, iA, iN, iE = (sl.index(f"{nm}_{c}:") for c in "TANE")
        return lines[:i] + sl[:iA] + sl[iN:iN+5] + sl[iT:iA] + sl[iN:iE] + sl[sl.index(f"{nm}_P:"):iA-9] + sl[iA:iN+5] + sl[iT:iA-9] + sl[iA:iN+7] + sl[iE:] + lines[i:]
    traces.append(X6 + splice(E, "SLOW1", SL[1]) + E1 + splice(SE2, "SLOW0", SL[0]) + E2)
    return code, traces

if __name__ == "__main__":
    path = [x for x in sys.argv[1:] if not x.startswith("--")]
    path = path[0] if path else "gated_mix__sliding_local_dilated__compressed_kv_cla__prompt.s"
    code, traces = build()
    bad = sorted(set(p.split("] ", 1)[1] for t in traces for p in verify(t, "k")))
    for p in bad[:40]: print(p)
    out = ["; gated mix: local dilated attention + compressed-KV causal attention, one persistent launch (generated by gen/gen3.py)",
           f"; @launch grid=(256,1,1) block=(256,1,1) lds={LDS_BYTES}", HEADER] + kernel_open(NAME) + [l.split(" ;@")[0] for l in code]
    out += ['.section .rodata,"a"', ".p2align 6", kernel_desc(NAME)]
    open(path, "w").write("\n".join(out) + "\n")
    print("hazard problems:", len(bad), "lines:", len(code))
```

```python
import re

def vr(b, n=1, p="v"):
    return f"{p}{b}" if n == 1 else f"{p}[{b}:{b+n-1}]"

class R:
    def __init__(s, p, b): s.p = p; s.b = b
    def __call__(s, n=1, o=0): return vr(s.b + o, n, s.p)
    def __add__(s, o): return R(s.p, s.b + o)
    def __repr__(s): return f"{s.p}{s.b}"

def V(b): return R("v", b)
def A(b): return R("a", b)

def mfma(d, a, b, c=None):
    cs = d(4) if c is None else (c if isinstance(c, str) else c(4))
    return f"v_mfma_f32_16x16x32_bf16 {d(4)}, {a(4)}, {b(4)}, {cs}"

_reg = re.compile(r"\b([vas])\[(\d+):(\d+)\]|\b([vas])(\d+)\b|\b(vcc|exec|m0|scc)\b")

def regs_of(op):
    out = []
    for m in _reg.finditer(op):
        if m.group(1): out += [(m.group(1), i) for i in range(int(m.group(2)), int(m.group(3)) + 1)]
        elif m.group(4): out.append((m.group(4), int(m.group(5))))
        else: out.append((m.group(6), 0))
    return out

TRANS = ("v_exp_f32", "v_log_f32", "v_rcp_f32", "v_rsq_f32", "v_sqrt_f32", "v_sin_f32", "v_cos_f32")

class I:
    def __init__(s, text):
        s.text = text
        t = text.split(";")[0].strip()
        s.skip = (not t) or t.endswith(":") or t.startswith(".")
        s.kind = None; s.rd = set(); s.wr = set(); s.states = 1
        if s.skip: return
        parts = t.split(None, 1)
        op = s.op = parts[0]
        ops = [o.strip() for o in parts[1].split(",")] if len(parts) > 1 else []
        s.ops = ops
        rs = [regs_of(o) for o in ops]
        allr = lambda l: set(r for x in l for r in x)
        if op.startswith("v_mfma"):
            s.kind = "mfma"; s.wr = set(rs[0]); s.ab = allr(rs[1:3]); s.c = set(rs[3]); s.rd = s.ab | s.c
        elif op.startswith("ds_read") or op.startswith("ds_bpermute") or op.startswith("ds_swizzle"):
            s.kind = "dsr"; s.wr = set(rs[0]); s.rd = allr(rs[1:])
        elif op.startswith("ds_"):
            s.kind = "dsw"; s.rd = allr(rs)
        elif op.startswith("buffer_load") or op.startswith("global_load"):
            if re.search(r"\blds\b", t): s.kind = "dma"; s.rd = allr(rs) | {("m0", 0)}
            else:
                s.kind = "vml"; s.wr = set(rs[0]); s.rd = allr(rs[1:])
                if "d16" in op: s.rd |= set()
        elif op.startswith("buffer_store") or op.startswith("buffer_atomic"):
            s.kind = "vms"; s.rd = allr(rs); s.data = set(rs[0])
            if op.startswith("buffer_atomic") and "sc0" in t: s.kind = "vml"; s.wr = set(rs[0])
        elif op.startswith("buffer_") : s.kind = "vmo"
        elif op == "s_waitcnt": s.kind = "wait"
        elif op == "s_nop": s.kind = "nop"; s.states = int(ops[0]) + 1
        elif op.startswith("s_load") or op in ("s_memtime", "s_memrealtime"):
            s.kind = "smem"; s.wr = set(rs[0]); s.rd = allr(rs[1:])
        elif op.startswith("s_"):
            s.kind = "salu"
            if op.startswith("s_cmp") or op.startswith("s_cbranch") or op in ("s_branch", "s_barrier", "s_endpgm", "s_sleep", "s_setprio", "s_setpc_b64", "s_bitcmp0_b32", "s_bitcmp1_b32"):
                s.rd = allr(rs)
            else:
                s.wr = set(rs[0]); s.rd = allr(rs[1:])
                if "saveexec" in op: s.wr.add(("exec", 0))
        elif op.startswith("v_"):
            s.kind = "valu"
            s.trans = any(op.startswith(x) for x in TRANS)
            s.wr = set(rs[0]); s.rd = allr(rs[1:])
            if op.startswith(("v_add_co", "v_sub_co", "v_addc_co")): s.wr |= set(rs[1]); s.rd = allr(rs[2:])
            if op.startswith(("v_fmac", "v_dot2c", "v_writelane")): s.rd |= set(rs[0])
            if op.startswith("v_permlane") and "swap" in op: s.wr |= set(rs[1]); s.rd |= set(rs[0])
            if op.startswith("v_cmpx"): s.wr.add(("exec", 0))
            s.dpp = ("row_" in t) or ("quad_perm" in t) or ("wave_" in t)
            if s.dpp: s.rd |= set(rs[0])
        else:
            raise ValueError("unknown instr: " + text)

def verify(lines, name="", lgkm0=None):
    ins = [I(l) for l in lines]
    ins = [i for i in ins if not i.skip]
    probs = []
    lq = []
    vq = []
    smem = set()
    def P(k, msg): probs.append(f"{name}[{k}] {ins[k].text.strip()}  :: {msg}")
    for k, i in enumerate(ins):
        touch = i.rd | i.wr
        if i.kind == "wait":
            m = re.search(r"lgkmcnt\((\d+)\)", i.text)
            if m:
                n = int(m.group(1))
                if n == 0: smem = set()
                elif smem: P(k, "counted lgkmcnt with SMEM outstanding")
                while len(lq) > n: lq.pop(0)
            m = re.search(r"vmcnt\((\d+)\)", i.text)
            if m:
                n = int(m.group(1))
                while len(vq) > n: vq.pop(0)
            continue
        for d in lq:
            if d & touch and not (i.kind == "dsr" and not (d & i.rd)): P(k, f"touches pending LDS dest {sorted(d & touch)[:2]}")
        for d in vq:
            if d & touch and not (i.kind == "vml" and not (d & i.rd)): P(k, f"touches pending VMEM dest {sorted(d & touch)[:2]}")
        if smem & touch: P(k, "touches pending SMEM dest")
        if i.kind in ("dsr", "dsw"):
            lq.append(set(i.wr))
            if len(lq) > 15 + 16: pass
        if i.kind in ("vml", "vms", "dma", "vmo"): vq.append(set(i.wr))
        if i.kind == "smem": smem |= i.wr
        dist = 0
        for j in range(k - 1, max(-1, k - 24), -1):
            p = ins[j]
            need = 0
            if p.kind == "mfma":
                if i.kind == "mfma":
                    if p.wr & i.ab: need = 8
                    elif (p.wr & i.c) and p.wr != i.c: need = 6
                    elif (p.wr & i.wr) and not (p.wr & i.c): need = 0
                elif i.kind in ("valu", "dsr", "dsw", "vml", "vms", "dma"):
                    if p.wr & touch: need = 8
                    elif i.kind == "valu" and (p.c & i.wr): need = 3
            elif p.kind == "valu":
                vw = set(r for r in p.wr if r[0] in "va" and len(r[0]) == 1)
                sw = p.wr - vw
                if i.kind == "mfma":
                    if vw & i.rd: need = 2
                    if ("exec", 0) in p.wr: need = max(need, 4)
                if i.kind == "valu":
                    if p.trans and not i.trans and (p.wr & i.rd): need = max(need, 1)
                    if i.op.startswith(("v_readfirstlane", "v_readlane")) and (vw & i.rd): need = max(need, 1)
                    if i.op.startswith("v_permlane") and (vw & i.rd): need = max(need, 2)
                    if i.dpp and (vw & i.rd): need = max(need, 2)
                    if sw & i.rd: need = max(need, 2)
                    if p.op.startswith("v_dot") and (p.wr & touch) and not (p.op == i.op and not (p.wr & set(r for o in i.ops[1:3] for r in regs_of(o)))): need = max(need, 3)
                if i.kind in ("vml", "vms", "dma") and (sw & i.rd): need = max(need, 5)
            elif p.kind == "salu":
                if ("m0", 0) in p.wr and i.kind == "dma": need = 1
            elif p.kind == "vms":
                if len(p.data) >= 3 and (p.data & i.wr): need = 2 if i.kind == "valu" else 1
            if need > dist: P(k, f"needs {need} wait states after [{p.text.strip()}], has {dist}")
            dist += p.states
            if dist >= 12: break
    return probs

HEADER = '''.amdgcn_target "amdgcn-amd-amdhsa--gfx950"
.text
'''
def kernel_open(name):
    return [f".globl {name}", ".p2align 8", f".type {name},@function", f"{name}:"]
def kernel_desc(name, nv=512, ao=256, ns=102):
    return f""".amdhsa_kernel {name}
  .amdhsa_next_free_vgpr {nv}
  .amdhsa_next_free_sgpr {ns}
  .amdhsa_accum_offset {ao}
  .amdhsa_group_segment_fixed_size 0
  .amdhsa_kernarg_size 104
  .amdhsa_user_sgpr_count 2
  .amdhsa_user_sgpr_kernarg_segment_ptr 1
  .amdhsa_system_sgpr_workgroup_id_x 1
.end_amdhsa_kernel
"""

def weave(mf, fill):
    out = []
    for i, m in enumerate(mf):
        out.append(m)
        out += fill.get(i, [])
    return out

def cost_of(text):
    op = text.split()[0]
    if op.startswith("ds_"): return "ds", 4
    if op.startswith(("buffer_", "global_")): return "vm", 8
    if op.startswith("v_"):
        return "va", (8 if op.startswith(TRANS) else 4)
    return "sa", 0

class Slot:
    def __init__(s, mf): s.mf = mf; s.sa = []; s.mem = []; s.va = []; s.used = 0; s.lock = False; s.vm = False
    def lines(s): return ([s.mf] if s.mf else []) + s.sa + s.mem + s.va

class Timeline:
    def __init__(s): s.sl = []
    def add(s, mfs):
        b = len(s.sl); s.sl += [Slot(m) for m in mfs]; return b
    def __len__(s): return len(s.sl)
    def fits(s, g, items):
        t = s.sl[g]
        if t.lock: return False
        used = t.used; nsa = len(t.sa); vm = t.vm; hasva = bool(t.va)
        for it in items:
            k, c = cost_of(it)
            if k == "sa": nsa += 1
            else: used += c
            if k == "vm": vm = True
        if used > 8: return False
        if vm and nsa: return False
        return nsa <= 3 - used // 4
    def force(s, g, items, lock=False):
        t = s.sl[g]
        for it in items:
            k, c = cost_of(it)
            (t.sa if k == "sa" else t.va if k == "va" else t.mem).append(it)
            t.used += c
            if k == "vm": t.vm = True
        t.lock |= lock
        return g
    def put(s, items, lo, hi=None, lock=False):
        if isinstance(items, str): items = [items]
        hi = len(s.sl) - 1 if hi is None else hi
        for g in range(lo, hi + 1):
            if s.fits(g, items) and not (lock and (s.sl[g].sa or s.sl[g].mem or s.sl[g].va)): return s.force(g, items, lock)
        raise RuntimeError(f"no room for {items} in [{lo},{hi}]")
    def put_back(s, items, hi, lo):
        if isinstance(items, str): items = [items]
        for g in range(hi, lo - 1, -1):
            if len(items) == 1 and items[0].startswith("s_waitcnt"):
                kind = items[0].split()[1][:4]
                for k, x in enumerate(s.sl[g].sa):
                    if x.startswith("s_waitcnt") and kind not in x:
                        s.sl[g].sa[k] = x + " " + items[0].split()[1]; return g
            if s.fits(g, items): return s.force(g, items)
        raise RuntimeError(f"no room for {items} in [{lo},{hi}]")
    def seq(s, items, lo, hi=None, step=0):
        g = lo; prev = None
        rank = {"sa": 0, "ds": 1, "vm": 1, "va": 2}
        for it in items:
            first = it if isinstance(it, str) else it[0]
            last = it if isinstance(it, str) else it[-1]
            if prev is not None and rank[cost_of(first)[0]] < prev: g += 1
            g = s.put(it, g, hi); prev = rank[cost_of(last)[0]]
            if step: g += step; prev = None
        return g - step if step else g
    def lines(s):
        o = []
        for t in s.sl: o += t.lines()
        return o

def resolve_waits(lines):
    out = []; n = {"vm": 0, "lgkm": 0}; last = {}
    for l in lines:
        op = l.split()[0] if l.split() else ""
        cls = "vm" if op.startswith(("buffer_", "global_")) else "lgkm" if op.startswith("ds_") else None
        if cls:
            n[cls] += 1
            for tg in re.findall(r"@(\w+)", l): last[tg] = n[cls]
        if op == "s_waitcnt":
            def rep(m):
                tags = [t.strip()[1:] for t in m.group(2).split(",")]
                k = n[m.group(1)] - max(last[t] for t in tags)
                return f"{m.group(1)}cnt({min(k, 63 if m.group(1) == 'vm' else 15)})"
            l = re.sub(r"(vm|lgkm)cnt\((@[^)]*)\)", rep, l)
        out.append(l)
    return out

def check_scc(lines):
    last = None
    for l in lines:
        t = l.strip()
        if t.startswith(("s_cselect", "s_cbranch_scc")):
            assert last is not None and last.startswith(("s_cmp", "s_bitcmp")), (last, t)
        elif t.startswith(("s_cmp", "s_bitcmp", "s_add", "s_sub", "s_and", "s_xor", "s_or", "s_lshl", "s_lshr", "s_min", "s_max", "s_bfe", "s_not", "s_ashr")):
            last = t
    return lines
```

```python
import sys, math, struct, os
sys.path.insert(0, "gen")
from asmlib import *

NAME = "gated_mix__sliding_local_dilated__compressed_kv_cla__prompt_kernel"
def f2u(x): return struct.unpack("<I", struct.pack("<f", x))[0]
OPT = dict(kv.split("=") if "=" in kv else (kv, "1") for kv in os.environ.get("XP", "").split(",") if kv)
def opt(k, d): return int(OPT.get(k, d))
STAMPS = "--stamps" in sys.argv
def note(*a): print(*a, file=sys.stderr)

BS = opt('bs', 16384)
RS = 2 * BS
WS_Z  = 64 << 20
Z_Q = 11 * BS; Z_G = 2 * Z_Q
WS_WO = 128 << 20
WO_S = 43 * BS
WS_WA = 144 << 20
WA_S = 9 * BS
WS_QA = 152 << 20
WS_FL = 160 << 20
WS_PX = 161 << 20
PX_S = 28672
SC = opt("sc", 0)
WS_SIZE = 268435456
OOB = 0x7FFF0000
NEG = 0xF149F2CA
LDS_BYTES = 163840
CB = 65536
RING = 8
LOG2E = math.log2(math.e)

sWave, sH, sJ, sSlot, sX = "s3", "s4", "s5", "s6", "s7"
rC, rX, rWkv, rWq, rWS, rU1, rWOB, rG, rD, rO, rWO = 8, 12, 16, 20, 24, 28, 32, 36, 40, 44, 48
def srd(r): return f"s[{r}:{r+3}]"
_s = [52]
def S_(n=1):
    if n == 2 and _s[0] & 1: _s[0] += 1
    r = _s[0]; _s[0] += n; assert _s[0] <= 96, "out of sgprs"; return f"s{r}" if n == 1 else r
t0, t1, t2, t3 = S_(), S_(), S_(), S_()
sTri = [S_(2) for _ in range(4)]
sT, sT2, sGs, sGl = S_(), S_(), S_(), S_()
sCb, sCb2, sCk, sCc, sCc2, sCl = S_(), S_(), S_(), S_(), S_(), S_()
sWb, sWk, sWc, sWl = S_(), S_(), S_(), S_()
sAb, sAc, sAl = S_(), S_(), S_()
sU1b, sU1s, sU1g, sSigA, sPerm0, sPerm1 = S_(), S_(), S_(), S_(), S_(), S_()
sKst, sVst, sFH, sSig, sScale, sSpin, sR2, sSide, sHb = S_(), S_(), S_(), S_(), S_(), S_(), S_(), S_(), S_()
sR1 = sCb2
sKg, sKl, sLastP, sN, sCnt, sBo, sDone, sEv, sEvT, sWst = sCb, sCk, sCc, sCc2, sWb, sWk, sWc, sCb2, sCl, sWl
sRB, sRA, sStg = sU1b, sU1s, sU1g
sKq, sRb, sCt = sSigA, sPerm0, sPerm1
sZs, sZl = sAb, sAc

vLane, vN, vG, vL16 = "v1", "v2", "v3", "v4"
vCe, vCo, vWe, vWo, vC0, vC1 = "v5", "v6", "v7", "v8", "v9", "v10"
vWp = ["v11", "v12", "v13", "v14"]
vOne = vLane
vSig = "v0"
TMP = 16

def stamp(i):
    if not STAMPS: return []
    return ["s_memrealtime s[98:99]", "s_memtime s[100:101]", "s_waitcnt lgkmcnt(0)", f"v_writelane_b32 v15, s98, {i}", f"v_writelane_b32 v15, s100, {16+i}"]
def stamp_out(i):
    if not STAMPS: return []
    return ["s_waitcnt vmcnt(0)"] + stamp(i) + ["s_lshl_b32 s96, s2, 2", f"s_add_u32 s96, s96, {sWave}", "s_lshl_b32 s96, s96, 8", "s_add_u32 s96, s96, 0xF000000",
            f"v_lshlrev_b32 v30, 2, {vLane}", f"buffer_store_dword v15, v30, {srd(rWS)}, s96 offen"]

STUBS = []
def check(name, load, reg, want, wait):
    STUBS.extend([f"{name}:", f"s_mov_b32 {sSpin}, 0", f"{name}_L:", "s_sleep 1", load.split(";")[0], f"s_add_u32 {sSpin}, {sSpin}, 1", "s_waitcnt vmcnt(0)",
                  f"v_cmp_gt_u32 vcc, {want}, {reg}", f"s_cmp_gt_u32 {sSpin}, 0x20000", f"s_cbranch_scc1 {name}_R", "s_nop 3", f"s_cbranch_vccnz {name}_L", f"s_branch {name}_R"])
    return [wait], [f"v_cmp_gt_u32 vcc, {want}, {reg}"], [f"s_cbranch_vccnz {name}\n{name}_R:"]
def put_check(tl, name, load, reg, want, tag, g_load, g_chk):
    g = tl.put(load + f" ;@{tag}", g_load)
    w, c, b = check(name, load, reg, want, f"s_waitcnt vmcnt(@{tag})")
    g = tl.put(w, max(g + 1, g_chk)); g = tl.put(c, g + 1); return tl.put(b, g + 5, lock=True)
def line_check(name, load, reg, want, wait):
    w, c, b = check(name, load, reg, want, wait)
    return w + c + ["s_nop 4"] + b
def signal(sreg, off=0): return f"buffer_atomic_add {vOne}, {vSig}, {srd(rWS)}, {sreg} offen offset:{off} sc1"
def pack(d, s0, s1): return [f"v_cvt_pk_bf16_f32 v{d.b}, v{s0.b}, v{s0.b+1}", f"v_cvt_pk_bf16_f32 v{d.b+1}, v{s0.b+2}, v{s0.b+3}",
                             f"v_cvt_pk_bf16_f32 v{d.b+2}, v{s1.b}, v{s1.b+1}", f"v_cvt_pk_bf16_f32 v{d.b+3}, v{s1.b+2}, v{s1.b+3}"]
def sprinkle(main, extra, every, start=0):
    groups = []; cur = []
    for x in extra:
        cur.append(x)
        if x.split("\n")[-1].startswith("buffer_"): groups.append(cur); cur = []
    if cur: groups[-1] += cur
    out = []
    for i, l in enumerate(main):
        if groups and i >= start and (i - start) % every == 0: out += groups.pop(0)
        out.append(l)
    for g in groups: out += g
    return out

def startup():
    L = []; a = L.append
    if STAMPS: a("s_memrealtime s[100:101]")
    a("s_cmp_ge_u32 s2, 256"); a("s_cbranch_scc1 L_END")
    for r, slot in ((rC, 4), (rWkv, 6), (52, 7), (rWS, 12), (rX, 0), (rWq, 5), (rU1, 1), (rWO, 2), (rWOB, 8), (rG, 9), (rD, 11), (rO, 10)):
        a(f"s_load_dwordx2 s[{r}:{r+1}], s[0:1], {slot*8}")
    a("s_getpc_b64 s[96:97]")
    a(f"s_lshr_b32 {sSlot}, s2, 3"); a(f"s_lshl_b32 s98, {sSlot}, 11")
    a("s_add_u32 s96, s96, s98"); a("s_addc_u32 s97, s97, 0")
    a("v_lshlrev_b32 v16, 3, v0"); a("v_mov_b32 v17, s97"); a("v_add_co_u32 v16, vcc, s96, v16")
    a("v_lshrrev_b32 v5, 6, v0"); a(f"v_and_b32 {vLane}, 63, v0")
    a("v_addc_co_u32 v17, vcc, 0, v17, vcc")
    a(f"v_readfirstlane_b32 {sWave}, v5")
    a("global_load_dwordx2 a[252:253], v[16:17], off")
    a(f"v_and_b32 {vN}, 15, v0"); a(f"v_lshrrev_b32 {vG}, 4, {vLane}"); a(f"v_lshlrev_b32 {vL16}, 4, {vLane}")
    a(f"s_and_b32 {sX}, s2, 7"); a(f"s_and_b32 {sT2}, {sSlot}, 3"); a(f"s_lshl2_add_u32 {sH}, {sX}, {sT2}")
    a(f"s_lshr_b32 {sJ}, {sSlot}, 2"); a(f"s_lshl2_add_u32 {sGs}, {sJ}, {sWave}"); a(f"s_sub_u32 {sGl}, 63, {sGs}")
    a(f"v_lshrrev_b32 v16, 3, {vLane}"); a(f"v_and_b32 v17, 7, {vLane}")
    a(f"v_xor_b32 v18, v17, {vG}"); a("v_lshlrev_b32 v19, 10, v16")
    a(f"v_lshl_add_u32 {vCe}, v18, 4, v19"); a("v_xor_b32 v18, 4, v18"); a(f"v_lshl_add_u32 {vCo}, v18, 4, v19"); a(f"v_add_u32 {vCo}, {8192 - 1024}, {vCo}")
    a(f"v_and_b32 v18, 1, {vG}"); a("v_lshlrev_b32 v18, 1, v18"); a("v_xor_b32 v18, v17, v18"); a("v_lshlrev_b32 v19, 13, v16")
    a(f"v_lshl_add_u32 {vWe}, v18, 4, v19"); a("v_xor_b32 v18, 4, v18"); a(f"v_lshl_add_u32 {vWo}, v18, 4, v19"); a(f"v_add_u32 {vWo}, {65536 - 1024}, {vWo}")
    for dst, w in ((sR1, opt("w1", 2)), (sR2, opt("w2", 2))):
        a(f"s_add_u32 {dst}, {sT2}, {sJ}"); a(f"s_and_b32 {dst}, {dst}, {w - 1}")
        a(f"s_mul_i32 {sT}, {sX}, {w}"); a(f"s_and_b32 {sT}, {sT}, 7"); a(f"s_or_b32 {dst}, {dst}, {sT}")
    a(f"s_lshl_b32 {sCk}, {sR1}, 7"); a(f"s_lshl_b32 {sWk}, {sR1}, 19")
    a(f"s_lshr_b32 {t2}, {sWave}, 1"); a(f"s_and_b32 {t3}, {sWave}, 1")
    a(f"s_lshl3_add_u32 {sKst}, {t2}, {sJ}"); a(f"s_lshl_b32 {sT}, {t3}, 5"); a(f"s_add_u32 {sCb}, {sKst}, {sT}"); a(f"s_lshl_b32 {sCb}, {sCb}, 15")
    a(f"s_lshl_b32 {sCl}, {sWave}, 13"); a(f"s_add_u32 {sCl}, {sCl}, {CB}")
    a(f"s_lshl1_add_u32 {sWb}, {sH}, {t3}"); a(f"s_lshl_b32 {sWb}, {sWb}, 7"); a(f"s_lshl_b32 {sWl}, {sWave}, 12")
    a(f"s_add_u32 {sCc}, {sCb}, {sCk}"); a(f"s_add_u32 {sWc}, {sWb}, {sWk}")
    for r, size in ((rC, 2048*512*2), (rWkv, 512*4096*2)):
        a(f"s_mov_b32 s{r+2}, {size}"); a(f"s_mov_b32 s{r+3}, 0x20000")
    a(f"s_cmp_lt_u32 {sWave}, 2")
    a("s_waitcnt lgkmcnt(0)")
    a(f"s_cselect_b32 s{rWkv}, s{rWkv}, s52"); a(f"s_cselect_b32 s{rWkv+1}, s{rWkv+1}, s53")
    return L

KS = 32 * 8192
FL = [' sc1', '', ' nt']
OF = FL[opt('fo', 1)]
P2ORD = list(range(8)); P2ORD.insert(opt("p2l", 8), 8)
def dma2(ve, vo, rs, lds_s, lds_imm, g_s, g_imm, tag):
    return ([f"s_add_u32 m0, {lds_s}, {lds_imm}", f"s_add_u32 {sT}, {g_s}, {g_imm}"],
            [f"buffer_load_dwordx4 {ve}, {srd(rs)}, {sT} offen lds ;@{tag}", f"buffer_load_dwordx4 {vo}, {srd(rs)}, {sT} offen offset:1024 lds ;@{tag}"])
def act_dma(st, half):
    lo = (st % 3) * 32768 + half * 4096
    if st < 8: d = [dma2(vCe, vCo, rC, sCl, lo + q*2048, sCc, half*16*32768 + q*16384, f"c{st}") for q in range(2)]
    else: d = [dma2(vCe, vCo, rX, sCl, lo + q*2048, sCc2 if half else sCc, q*16*1152, f"c{st}") for q in range(2)]
    pre = []
    if half == 0 and 0 < st < 8:
        pre = [[f"s_xor_b32 {sCc}, {sCk}, {st*128}", f"s_add_u32 {sCc}, {sCb}, {sCc}"]]
    if half == 0 and st == 8:
        pre = [[f"s_lshl_b32 {sCk}, {sR2}, 7", f"s_mul_i32 {sCb}, {sGs}, {32*1152}", f"s_mul_i32 {sCb2}, {sGl}, {32*1152}"],
               [f"v_lshrrev_b32 v{TMP+15}, 3, {vLane}", f"v_lshl_add_u32 {vCe}, v{TMP+15}, 7, {vCe}"],
               [f"v_lshl_add_u32 {vCo}, v{TMP+15}, 7, {vCo}", f"v_add_u32 {vCo}, 1024, {vCo}"]]
    if half == 0 and st >= 8:
        i = P2ORD[st - 8]
        pre += [[f"s_xor_b32 {sT2}, {sCk}, {i*128}" if i < 8 else f"s_mov_b32 {sT2}, 1024", f"s_add_u32 {sCc}, {sCb}, {sT2}", f"s_add_u32 {sCc2}, {sCb2}, {sT2}"]]
    return pre, d
def wt_dma(t):
    lo = (t & 3) * 16384; pre = []
    if t < 16:
        if t and t % 2 == 0: pre = [[f"s_xor_b32 {sWc}, {sWk}, {t*KS}", f"s_add_u32 {sWc}, {sWb}, {sWc}"]]
        return pre, [dma2(vWe, vWo, rWkv, sWl, lo + q*2048, sWc, (t & 1)*KS + q*131072, f"w{t}") for q in range(2)]
    if t == 16:
        pre = [[f"s_lshr_b32 {sT2}, {sWave}, 1", f"s_lshl_b32 {sWk}, {sT2}, 17", f"s_add_u32 {sWb}, {sWb}, {sWk}"],
               [f"s_lshl_b32 {sT2}, {sT2}, 11", f"s_and_b32 {sWl}, {sWl}, 4096", f"s_add_u32 {sWl}, {sWl}, {sT2}"]]
    if t % 2 == 0:
        i = P2ORD[(t - 16) >> 1]
        pre += [[f"s_xor_b32 {sWk}, {sR2}, {i}" if i < 8 else f"s_mov_b32 {sWk}, 8", f"s_lshl_b32 {sWc}, {sWk}, 19", f"s_add_u32 {sWc}, {sWc}, {sWb}"],
                [f"s_mul_i32 {sAc}, {sWk}, {BS}", f"s_add_u32 {sAc}, {sAc}, {sAb}"]]
    return pre, [dma2(vWe, vWo, rWq, sWl, lo, sWc, (t & 1)*KS, f"w{t}"),
                 ([f"s_add_u32 m0, {sAl}, {lo}", f"s_add_u32 {sT}, {sAc}, {(t & 1)*4096}"], [f"buffer_load_dwordx4 {vL16}, {srd(rWS)}, {sT} offen sc1 lds ;@w{t}"])]
def rec_dma(n):
    return [], [([f"s_add_u32 m0, {sKl}, {((n + 3) % RING)*16384}"] + ([f"s_add_u32 {sT}, {sKg}, {(n + 1)*RS}"] if n >= 0 else [f"s_cmp_lt_u32 {sWave}, 2", f"s_cselect_b32 {sT}, {sKg}, {OOB}"]),
                 [f"buffer_load_dwordx4 {vL16}, {srd(rWS)}, {sT} offen offset:{q*1024} sc1 lds ;@r{n+1}" for q in range(4)])]
def ring_dma(tag, last=False):
    return ([[f"s_mov_b32 m0, {sKl}", f"s_mov_b32 {sT}, {sKg}", f"s_add_u32 {sKg}, {sKg}, {RS}"]],
            [([f"s_cmp_lt_u32 {sWave}, 3", f"s_cselect_b32 {sKg}, {sT}, {OOB}"] if last else [f"s_add_u32 {sKl}, {sKl}, 16384", f"s_and_b32 {sKl}, {sKl}, {RING*16384 - 1}"],
              [f"buffer_load_dwordx4 {vL16}, {srd(rWS)}, {sKg if last and q else sT} offen offset:{q*1024} sc1 lds ;@{tag}" for q in range(4)])])
def zgrp(dst, gam, add): return [f"s_lshr_b32 {dst}, {gam}, 2", f"s_lshl_b32 {dst}, {dst}, 22", f"s_add_u32 {dst}, {dst}, {add}", f"s_and_b32 {sT2}, {gam}, 3", f"s_mul_i32 {sT2}, {sT2}, {Z_G}", f"s_add_u32 {dst}, {dst}, {sT2}"]
def zq(dst): return [f"s_bfe_u32 {dst}, {sH}, {(1 << 16) | 3}", f"s_mul_i32 {dst}, {dst}, {Z_Q}", f"s_add_u32 {dst}, {dst}, {sSide}", f"s_add_u32 {dst}, {dst}, {WS_Z}"]
def flat(pd):
    pre, d = pd; o = []
    for p in pre: o += p
    for s_, x in d: o += s_ + x
    return o
def put_dmas(tl, groups, lo, hi):
    n = sum(len(x) for _, d in groups for _, x in d)
    if not n: return lo
    step = (hi - lo) / n; k = 0; g = lo - 1
    for pre, d in groups:
        for p in pre: g = tl.put(p, g)
        for s_, x in d:
            g = tl.put(s_, max(g, int(lo + k*step) - 2))
            for ins in x:
                g = tl.put(ins, max(g + 1, int(lo + k*step))); k += 1
            g += 1
    return g

def build():
    L = startup(); a = L.append
    if STAMPS: a("v_writelane_b32 v15, s100, 15")
    L += stamp(0)
    L += flat(act_dma(0, 0)) + flat(wt_dma(0)) + flat(act_dma(0, 1))
    for r, size in ((rWS, WS_SIZE), (rX, 2048*576*2), (rWq, 576*4096*2), (rU1, 576*1728*2), (rWOB, 4096*576*2), (rG, 1152), (rD, 256), (rO, 2048*576*2), (rWO, 576*576*2)):
        a(f"s_mov_b32 s{r+2}, {size}"); a(f"s_mov_b32 s{r+3}, 0x20000")
    a(f"s_lshl_b32 {sFH}, {sH}, 10"); a(f"s_add_u32 {sFH}, {sFH}, {WS_FL}")
    a(f"s_lshr_b32 {sSide}, {sH}, 4"); a(f"s_xor_b32 {sSide}, {sSide}, {SC}"); a(f"s_lshl_b32 {sSide}, {sSide}, 13")
    a(f"s_and_b32 {sHb}, {sH}, 15"); a(f"s_lshl_b32 {sHb}, {sHb}, 22"); a(f"s_add_u32 {sHb}, {sHb}, {sSide}")
    a(f"s_cmp_eq_u32 {sGs}, 0"); a(f"s_cselect_b32 {t0}, {sFH}, {OOB}")
    a(f"s_lshl_b32 {t1}, {sJ}, 10"); a(f"s_add_u32 {t1}, {t1}, {sHb}"); a(f"s_add_u32 {t1}, {t1}, {64*RS}"); a(f"s_cmp_eq_u32 {sWave}, 1"); a(f"s_cselect_b32 {t0}, {t1}, {t0}")
    a(f"s_bfe_u32 {t1}, s2, {(1 << 16) | 1}"); a(f"s_xor_b32 {t1}, {t1}, {SC}"); a(f"s_lshl3_add_u32 {t1}, {t1}, {t3}"); a(f"s_lshl_b32 {t1}, {t1}, 10")
    a(f"s_and_b32 {sT}, s2, 1"); a(f"s_mul_i32 {sT}, {sT}, {Z_Q}"); a(f"s_add_u32 {t1}, {t1}, {sT}"); a(f"s_add_u32 {t1}, {t1}, {WS_Z + 9*BS}")
    a(f"s_lshr_b32 {sAc}, s2, 2"); L.extend(zgrp(sT, sAc, t1)); a(f"s_cmp_ge_u32 {sWave}, {2 if opt('zx', 1) else 4}"); a(f"s_cselect_b32 {t0}, {sT}, {t0}")
    for q in range(4): a(f"v_mov_b32 v{16+q}, 0")
    a(f"buffer_store_dwordx4 v[16:19], {vL16}, {srd(rWS)}, {t0} offen sc1 ;@zero")
    a(f"s_add_u32 {sFH}, {sFH}, 512")
    a(f"s_cmp_eq_u32 {sWave}, 0"); a(f"s_cselect_b32 {sSig}, {sFH}, {OOB}")
    a(f"v_mov_b32 v24, {OOB}"); a(f"v_cmp_eq_u32 vcc, 1, {vLane}")
    a(f"s_lshl_b32 {t0}, {t2}, 7"); a(f"s_lshl_b32 {t1}, {t3}, 12")
    a(f"v_cndmask_b32 {vSig}, v24, 0, vcc")
    a(f"v_lshrrev_b32 v16, 1, {vN}"); a(f"v_xor_b32 v16, v16, {vG}"); a(f"v_add_u32 v17, {t0}, {vN}"); a("v_lshlrev_b32 v17, 7, v17"); a(f"v_add_u32 v17, {CB}, v17")
    a(f"v_lshl_add_u32 {vC0}, v16, 4, v17"); a(f"v_xor_b32 {vC1}, 64, {vC0}")
    a(f"v_bfe_u32 v16, {vLane}, 2, 2"); a(f"v_lshl_add_u32 v17, {vG}, 3, v16"); a("v_lshlrev_b32 v17, 7, v17"); a(f"v_and_b32 v18, 3, {vLane}")
    a("v_lshl_add_u32 v17, v18, 3, v17"); a(f"v_add_u32 v17, {t1}, v17"); a("v_lshrrev_b32 v16, 1, v16"); a(f"v_and_b32 v18, 1, {vG}"); a("v_lshl_add_u32 v16, v18, 1, v16")
    for p in range(4): a(f"v_xor_b32 v18, {p}, v16"); a(f"v_lshl_add_u32 {vWp[p]}, v18, 5, v17")
    a(f"s_mul_i32 {sKst}, {sKst}, {RS}"); a(f"s_add_u32 {sKst}, {sKst}, {sHb}")
    a(f"s_add_u32 {sVst}, {sKst}, {t1}"); a(f"s_add_u32 {sVst}, {sVst}, {RS + BS}"); a(f"s_lshr_b32 {t1}, {t1}, 1"); a(f"s_add_u32 {sKst}, {sKst}, {t1}")
    a(f"s_lshl_b32 {sAl}, {sWave}, 10"); a(f"s_bfe_u32 {sT}, {sH}, {(1 << 16) | 3}"); a(f"s_lshl_b32 {sT}, {sT}, 22"); a(f"s_add_u32 {sT}, {sT}, {sSide}"); a(f"s_add_u32 {sT}, {sT}, {WS_WA}")
    a(f"s_and_b32 {sAb}, {sH}, 7"); a(f"s_mul_i32 {sAb}, {sAb}, {WA_S}"); a(f"s_add_u32 {sAb}, {sAb}, {sAl}"); a(f"s_add_u32 {sAb}, {sAb}, {sT}"); a(f"s_add_u32 {sAl}, {sAl}, 8192")
    a(f"s_mov_b32 {sScale}, {f2u(LOG2E / math.sqrt(128.0)):#x}")
    a(f"s_mov_b32 {sPerm0}, 0x05040100"); a(f"s_mov_b32 {sPerm1}, 0x07060302")
    a(f"s_lshl2_add_u32 {t0}, {sX}, {sWave}")
    a(f"s_mul_i32 {sU1b}, {sSlot}, {32*3456}"); a(f"s_mul_i32 {sT2}, {t0}, 36"); a(f"s_add_u32 {sU1b}, {sU1b}, {sT2}")
    a(f"s_and_b32 {sU1s}, {t0}, 7"); a(f"s_mul_i32 {sU1s}, {sU1s}, {WA_S}"); a(f"s_add_u32 {sU1s}, {sU1s}, {sT}")
    a(f"s_lshr_b32 {sT}, {sSlot}, 1"); a(f"s_and_b32 {sT2}, {sSlot}, 1"); a(f"s_mul_i32 {sT}, {sT}, {BS // 4096}"); a(f"s_add_u32 {sT}, {sT}, {sT2}"); a(f"s_lshl_b32 {sT}, {sT}, 12"); a(f"s_add_u32 {sU1s}, {sU1s}, {sT}")
    a(f"s_lshl_b32 {sU1g}, {sSlot}, 6")
    a(f"s_lshl_b32 {sSigA}, {t0}, 10"); a(f"s_add_u32 {sSigA}, {sSigA}, {WS_FL + 512}")
    a(f"s_cmp_lt_u32 {sSlot}, 18"); a(f"s_cselect_b32 {sU1s}, {sU1s}, {OOB}"); a(f"s_cselect_b32 {sSigA}, {sSigA}, {OOB}")
    a(f"v_lshrrev_b32 v18, 2, {vN}"); a(f"v_and_b32 v19, 3, {vN}")
    a("v_mul_u32_u24 v20, 1152, v18"); a("v_cmp_eq_u32 vcc, 2, v19"); a("v_lshl_add_u32 v20, v19, 3, v20"); a("v_add_u32 v21, 1, v19")
    a("v_cndmask_b32 v21, v21, 0, vcc")
    a("v_cmp_eq_u32 vcc, 3, v18"); a("v_mul_u32_u24 v21, 1152, v21"); a("v_add_u32 v21, 32, v21"); a("v_cndmask_b32 v20, v20, v21, vcc")
    a(f"v_cmp_eq_u32 vcc, 15, {vN}"); a(f"v_mul_u32_u24 v21, {8*3456}, {vG}"); a("v_add_u32 v20, v20, v21")
    a(f"v_lshlrev_b32 v21, 4, {vG}"); a("v_cndmask_b32 v26, v20, v24, vcc"); a("v_cndmask_b32 v27, v24, v21, vcc")
    a(f"v_and_b32 v18, 7, {vLane}"); a(f"v_cmp_gt_u32 vcc, 48, {vLane}"); a("v_mul_u32_u24 v18, 3456, v18"); a(f"v_mul_u32_u24 v19, 1152, {vG}"); a(f"v_bfe_u32 v20, {vLane}, 3, 1")
    a("v_mul_u32_u24 v20, 140, v20"); a("v_add3_u32 v18, v18, v19, v20"); a("v_cndmask_b32 v28, v24, v18, vcc")
    L += flat(wt_dma(1)) + flat(act_dma(1, 0))

    VB = [V(32 + 4*i) for i in range(56)]
    accV = lambda rt, d: VB[((rt >> 1)*4 + d)*2 + (rt & 1)]
    def accK(rt, d):
        i = rt*4 + d
        return VB[32 + i] if i < 24 else A(4*(i - 24))
    fC = lambda b, i: A(64 + 64*b + 4*i)
    fW = lambda b, i: A(96 + 64*b + 4*i)
    set0 = [fW(0, 4+i) for i in range(4)] + [fW(1, 4+i) for i in range(4)] + [fC(b, i) for i in range(4) for b in range(2)]
    set1 = [fW(0, i) for i in range(4)] + [fW(1, i) for i in range(4)] + [fC(b, 4+i) for i in range(4) for b in range(2)]
    fX2 = lambda b, i: (set1 if b else set0)[i]
    fW2 = lambda b, i: (set1 if b else set0)[4 + i]
    def reads(t):
        b = t & 1; vc = vC1 if b else vC0; wi = (t & 3)*16384; R_ = []
        tr = lambda r, p, o: [f"ds_read_b64_tr_b16 {r(2)}, {vWp[p]} offset:{o}", f"ds_read_b64_tr_b16 {r(2,2)}, {vWp[p]} offset:{o + 512}"]
        if t < 16:
            for i in range(0, 8, 2): R_.append([f"ds_read_b128 {fC(b,i+q)(4)}, {vc} offset:{(i+q)*2048}" for q in range(2)])
            for i in (4, 5, 6, 7, 0, 1, 2, 3): R_.append(tr(fW(b, i), i & 3, wi + (i >> 2)*8192))
        else:
            for i in range(0, 4, 2): R_.append([f"ds_read_b128 {fX2(b,i+q)(4)}, {vc} offset:{(i+q)*2048}" for q in range(2)])
            for i in range(8): R_.append(tr(fW2(b, i), i & 3, wi + (i >> 2)*4096))
            for i in range(0, 4, 2): R_.append([f"ds_read_b128 {fW2(b,8+i+q)(4)}, {vL16} offset:{wi + 8192 + (i+q)*1024}" for q in range(2)])
        return R_
    mK = lambda t, rt, d: mfma(accK(rt, d), fW(t & 1, d), fC(t & 1, rt), "0" if t == 0 else None)
    mV = lambda t, rt, d: mfma(accV(rt, d), fC(t & 1, rt), fW(t & 1, 4 + d), "0" if t == 0 else None)

    a("s_waitcnt vmcnt(@c0,@w0,@zero)"); a("s_barrier")
    for r in reads(0): L += r
    a(f"s_lshl_b32 {t0}, {sH}, 2"); a(f"s_cmp_eq_u32 {sGs}, 0"); a(f"s_cselect_b32 {t0}, {t0}, {OOB}")
    a(f"buffer_store_dword {vOne}, {vSig}, {srd(rD)}, {t0} offen sc1")
    a("s_waitcnt lgkmcnt(0)")
    L += stamp(1)

    tl = Timeline(); base = {}
    for t in range(14):
        M = []
        for rt in range(8):
            for i in (range(8) if rt % 2 == 0 else range(7, -1, -1)): M.append(mK(t, rt, i) if i < 4 else mV(t, rt, i - 4))
        base[t] = tl.add(M)
    vord = [(2*n1 + u, d) for n1 in range(4) for d in range(4) for u in range(2)]
    base[14] = tl.add([mV(14, rt, d) for rt, d in vord] + [mV(15, rt, d) for rt, d in vord])
    base[15] = tl.add([mK(t, rt, d) for rt in range(8) for d in range(4) for t in (14, 15)])
    order2 = [(aa, i) for i in range(12) for aa in (range(4) if i % 2 == 0 else range(3, -1, -1))]
    qord = [(aa, i) for aa in range(4) for i in range(8)]
    sched2 = {t: [(t, k) for k in order2] for t in range(16, 32)}
    sched2[32] = [(32, k) for k in qord[:24]] + [(33, k) for k in qord[:24]]
    sched2[33] = [(t, k) for k in qord[24:] for t in (32, 33)] + [(t, (aa, 8 + T)) for aa in range(4) for T in range(4) for t in (32, 33)]
    for t in range(16, 34): base[t] = tl.add(["?"] * 48)
    fin = {k: base[t] + i for t in (32, 33) for i, (tt, k) in enumerate(sched2[t]) if tt == 33}
    bQs = tl.add(["?"] * 16); bQl = tl.add(["?"] * 16)
    kof = lambda g: max(t for t in base if base[t] <= g)

    KVSIG = opt("kvsig", 9); RPF = opt("rpf", 14)
    catch = {0: [act_dma(1, 1), wt_dma(2), wt_dma(3)], 1: [act_dma(2, 0), wt_dma(4), act_dma(2, 1)], 2: [wt_dma(5), act_dma(3, 0), wt_dma(6)], 3: [act_dma(3, 1), wt_dma(7), act_dma(4, 0)]}
    recs = {16 + RPF + i: i - 1 for i in range(18 - RPF)}
    STG = {29: range(0, 3), 30: range(3, 6)} if opt("stg2", 0) else {29: range(6)}
    for t in range(34):
        b = base[t]; n = (base[t+1] if t < 33 else bQs) - b
        tags = [f"@w{t+1}", f"@c{(t+1) >> 1}"] if t < 33 else ["@r0"]
        if t == 16 + KVSIG: tags.append("@kvA")
        tl.force(b, [f"s_waitcnt vmcnt({','.join(tags)})"]); tl.force(b + 1, ["s_barrier"], lock=True)
        wpos = {14: 31, 32: 23}.get(t, n - 1)
        tl.force(b + wpos, ["s_waitcnt lgkmcnt(0)"])
        if t in (14, 32): tl.seq(reads(t + 1), b + 2, b + wpos - 7, step=1)
        if t in catch: grp = catch[t]
        else:
            grp = []
            if t + 4 < 34: grp.append(wt_dma(t + 4))
            st, hf = (t + 5) >> 1, 1 - (t & 1)
            if st < 17: grp.append(act_dma(st, hf))
            if t in STG: grp.append(([], [([f"s_add_u32 m0, {sStg}, {i*1024}", f"s_add_u32 {sT}, {sRB if i < 5 else sRA}, {32*i if i < 5 else 0}"],
                                               [f"buffer_load_dwordx4 {'v24' if i < 5 else 'v25'}, {srd(rWOB if i < 5 else rWO)}, {sT} offen lds ;@stg"]) for i in STG[t]]))
            if t in recs:
                if recs[t] == -1: grp.append(([[f"s_lshl_b32 {sKl}, {sWave}, 12", f"s_and_b32 {sKg}, {sKl}, 8192", f"s_mul_i32 {sKg}, {sKg}, {BS // 8192 - 1}"], [f"s_add_u32 {sKg}, {sKg}, {sKl}", f"s_add_u32 {sKg}, {sKg}, {sHb}"]], []))
                grp.append(rec_dma(recs[t]))
        put_dmas(tl, grp, b + (16 if t in (14, 32) else 4), b + n - 2)
        if t == 15:
            g = tl.seq([f"s_lshr_b32 {t3}, {sWave}, 1", f"s_lshl_b32 {t3}, {t3}, 14", f"s_lshl_b32 {t2}, {sWave}, 13", f"s_sub_u32 {t3}, {t2}, {t3}", f"s_and_b32 {t2}, {sWave}, 1", f"s_lshl_b32 {t2}, {t2}, 12"], base[14] + 26)
            g = tl.seq([f"v_add_u32 {vC0}, {t3}, {vC0}", f"v_add_u32 {vC1}, {t3}, {vC1}"] + [f"v_subrev_u32 {p}, {t2}, {p}" for p in vWp], g + 1, b)
            R_ = reads(16); g = tl.seq(R_[:6], b + 2, step=2)
            for k, r in enumerate(R_[6:]): g = tl.put(r, max(g + 1, b + 8*((k//2 if k < 4 else k - 2) + 1)))
            assert g < b + n - 8
        elif t not in (14, 32, 33):
            tl.seq(reads(t + 1), b + 2, b + n - 9, step=2)
        if t % 2 == 0 and t < 32:
            d = -65536 if (t >> 1) % 3 == 2 else 32768
            tl.put([f"v_add_u32 {vC0}, {d}, {vC0}", f"v_add_u32 {vC1}, {d}, {vC1}"], b + (25 if t == 14 else n - 8), b + (33 if t == 14 else n - 1))

    aU = 192; US = opt("ustep", 2)
    if opt("u1t", 1) >= 0:
        g = tl.seq([f"s_mul_i32 {t0}, {sSlot}, {32*3456}", f"s_mul_i32 {t1}, {sWave}, {8*3456}", f"s_add_u32 {t0}, {t0}, {t1}", f"s_mul_i32 {t1}, {sX}, 144", f"s_add_u32 {t0}, {t0}, {t1}"], base[opt("u1t", 1)] + 2)
        tl.put(f"buffer_load_dword a252, v28, {srd(rU1)}, {t0} offen", g + 1)
    g = base[opt("u1", 4)] + 2
    for jj in range(8):
        g = tl.put(f"s_add_u32 {t0}, {sU1b}, {jj*3456}", g)
        g = tl.put(f"buffer_load_dwordx2 a[{aU+2*jj}:{aU+2*jj+1}], v26, {srd(rU1)}, {t0} offen", g + 1) + US
    g = tl.put(f"buffer_load_dwordx4 a[{aU+16}:{aU+19}], v27, {srd(rG)}, {sU1g} offen ;@u1", g)
    g = tl.put("s_waitcnt vmcnt(@u1)", g + opt("u1w", 40))
    for hp in range(2):
        g = tl.seq([f"v_accvgpr_read_b32 v{16+jj}, a{aU+2*jj+hp}" for jj in range(8)], g + 1)
        g = tl.seq([f"v_perm_b32 v{24+4*e+q}, v{17+2*q}, v{16+2*q}, {sPerm1 if e else sPerm0}" for e in range(2) for q in range(4)], g + 2)
        if hp == 0: g = tl.seq([f"v_accvgpr_read_b32 v{16+q}, a{aU+16+q}" for q in range(4)] + [f"v_or_b32 v{24+q}, v{24+q}, v{16+q}" for q in range(4)], g)
        for e in range(2): g = tl.put(f"buffer_store_dwordx4 v[{24+4*e}:{27+4*e}], {vL16}, {srd(rWS)}, {sU1s} offen offset:{(2*hp+e)*1024}{FL[opt('fwa', 0)]}", g + 1 + e*US)
    g = tl.seq([f"s_lshl_b32 {t0}, {sX}, 4", f"v_and_b32 v22, 3, {vLane}", f"v_lshl_add_u32 v22, v22, 2, {t0}"], g + 1)
    g = put_check(tl, "CK_Z", f"buffer_load_dword v23, v22, {srd(rD)}, 0 offen sc1", "v23", 1, "ckz", g + 1, g + 50)
    g = tl.put(signal(sSigA), g + 1)
    note("WA signal at k-step", kof(g))
    g = tl.seq([f"s_mul_i32 {t0}, {sGs}, {18*8192}", f"s_lshl_b32 {t1}, {sH}, 8", f"s_add_u32 {t0}, {t0}, {t1}", f"s_lshl2_add_u32 {t1}, s2, {sWave}", f"s_mul_i32 {t1}, {t1}, 2304",
                f"v_lshrrev_b32 v16, 1, {vLane}", f"v_and_b32 v17, 1, {vLane}", "v_lshlrev_b32 v16, 13, v16", "v_lshl_add_u32 v16, v17, 7, v16", f"v_mov_b32 v17, {OOB}",
                f"v_cmp_gt_u32 s[96:97], 18, {vLane}", f"v_lshlrev_b32 v18, 7, {vLane}", "v_mov_b32 v29, 0"], g + 1)
    g = tl.seq(["v_cndmask_b32 v16, v17, v16, s[96:97]", "v_cndmask_b32 v18, v17, v18, s[96:97]"], g + 2)
    pft = [opt("pf0", 7), opt("pf1", 8), opt("pf2", 9)]
    g = tl.put(f"buffer_load_dword a253, v18, {srd(rX)}, {t1} offen", max(g + 1, base[pft[0]] + 2))
    g = tl.put(f"buffer_load_dword a252, v16, {srd(rWq)}, {t0} offen", max(g + 1, base[pft[1]] + 2))
    g = tl.put(f"s_add_u32 {t0}, {t0}, {9*8192}", g + 1)
    g = tl.put(f"buffer_load_dword a252, v16, {srd(rWq)}, {t0} offen", max(g + 1, base[pft[2]] + 2))
    if opt("pf3", 12) >= 0:
        g = tl.seq([f"s_lshr_b32 {t0}, s2, 1", f"s_lshl2_add_u32 {t0}, {t0}, {sWave}", f"s_mul_i32 {t0}, {t0}, {8*1152}", f"s_and_b32 {t1}, s2, 1", f"s_lshl_b32 {t1}, {t1}, 9", f"s_add_u32 {t0}, {t0}, {t1}",
                    f"s_lshl2_add_u32 {t1}, s2, {sWave}", f"s_mul_i32 {t1}, {t1}, 768",
                    f"v_cmp_gt_u32 s[96:97], 40, {vLane}", f"v_and_b32 v16, 7, {vLane}", "v_mul_u32_u24 v16, 1152, v16", f"v_lshrrev_b32 v19, 3, {vLane}", "v_lshl_add_u32 v16, v19, 7, v16",
                    "v_cndmask_b32 v16, v17, v16, s[96:97]", f"v_cmp_gt_u32 s[96:97], 6, {vLane}"], g + 1)
        g = tl.put("v_cndmask_b32 v18, v17, v18, s[96:97]", g + 2)
        g = tl.put(f"buffer_load_dword a252, v16, {srd(rWOB)}, {t0} offen", max(g + 1, base[opt("pf3", 12)] + 2))
        g = tl.put(f"buffer_load_dword a253, v18, {srd(rWO)}, {t1} offen", g + 1)
    if opt("pfo", 0):
        g = tl.seq([f"s_lshl2_add_u32 {t1}, s2, {sWave}", f"s_mul_i32 {t1}, {t1}, 2304", f"v_cmp_gt_u32 s[96:97], 18, {vLane}", f"v_lshlrev_b32 v18, 7, {vLane}"], g + 1)
        g = tl.put("v_cndmask_b32 v18, v17, v18, s[96:97]", g + 2)
        g = tl.put(f"buffer_load_dword a253, v18, {srd(rO)}, {t1} offen", max(g + 1, base[opt("pfo", 0)] + 2))
    assert g < base[14], (g, base)
    g = put_check(tl, "CK_WA", f"buffer_load_dword v30, v29, {srd(rWS)}, {sFH} offen sc1", "v30", 18, "ckwa", base[opt("cwa", 10)] + 40, base[11] + 50)
    assert g < base[12] + 2, (g, base)

    NA = opt("na", 2)
    vfr = [("V", f) for f in range(16)]; kfr = [("K", f) for f in range(16)]
    sord = vfr[:4*NA] + kfr[:4*NA] + vfr[4*NA:] + kfr[4*NA:]
    S1, S2, SW = opt("s1", 27), opt("s2", 27), opt("sw", 13)
    spos = {}; g = base[14] + 46
    for k, fr in enumerate(sord):
        off = (fr[1] >> 2)*16*RS + ((fr[1] & 3)*1024 if fr[0] == "V" else ((fr[1] >> 1) & 1)*4096 + (fr[1] & 1)*1024)
        gg = tl.put(f"s_add_u32 {t1}, {sVst if fr[0] == 'V' else sKst}, {off & ~4095}", g)
        gg = tl.put(f"buffer_store_dwordx4 %{fr[0]}{fr[1]}%, {vL16}, {srd(rWS)}, {t1} offen offset:{off & 4095}{FL[opt('fkv', 0)]}", gg + 1)
        spos[fr] = gg; g = max(gg + 1, g + (S1 if gg < base[16 + SW] else S2))
    note("kv stores: part A ends at P2 k-step", kof(spos[sord[8*NA-1]]) - 16, ", last at", kof(spos[sord[-1]]) - 16)
    assert spos[sord[8*NA-1]] < base[16 + KVSIG] - 30 and spos[sord[-1]] < bQs
    where = {}; freeV = []
    g = 0
    for f in range(16):
        g = tl.seq(pack(VB[2*f], VB[2*f], VB[2*f+1]), max(g, base[14] + 33 + 2*f + 7))
        assert g < spos[("V", f)]
        where[("V", f)] = VB[2*f]; freeV.append((g, VB[2*f+1]))
    for f in range(12):
        x0, x1 = accK(f >> 1, 2*(f & 1)), accK(f >> 1, 2*(f & 1) + 1)
        g = tl.seq([f"v_mul_f32 v{x.b+q}, {sScale}, v{x.b+q}" for x in (x0, x1) for q in range(4)] + pack(x0, x0, x1), max(g, base[15] + 4*f + 10))
        assert g < spos[("K", f)], (f, g, spos)
        where[("K", f)] = x0; freeV.append((g, x1))
    freeA = []
    for f in range(12, 16):
        x0 = accK(f >> 1, 2*(f & 1)); y0, y1 = V(TMP), V(TMP + 4)
        g = tl.seq([f"v_accvgpr_read_b32 v{TMP+q}, a{x0.b+q}" for q in range(8)] + [f"v_mul_f32 v{TMP+q}, {sScale}, v{TMP+q}" for q in range(8)] + pack(y0, y0, y1)
                   + [f"v_accvgpr_write_b32 a{x0.b+q}, v{TMP+q}" for q in range(4)], g)
        assert g < spos[("K", f)]
        where[("K", f)] = x0; freeA.append((g, x0 + 4))
    gpk = g
    PARK = base[16 + opt("park", 11)]
    topark = [fr for fr in reversed(sord) if where[fr].p == "v" and spos[fr] > PARK]
    for fr in sord:
        if where[fr].p == "v" and fr not in topark: freeV.append((spos[fr] + 1, where[fr]))
    freeV.sort(key=lambda x: x[0])
    spareA = [A(32 + 4*i) for i in range(8)] + [A(192 + 4*i) for i in range(15)]
    loc = {}
    for i, key in enumerate(order2):
        if i < len(spareA): loc[key] = spareA[i]
        else:
            tf, blk = freeV.pop(0); assert tf < base[16] + i, ("no free block", i, tf - base[16]); loc[key] = blk
    migr = {}; g = gpk; pend = list(order2[:len(spareA)])
    while pend or topark:
        if topark and freeA:
            fr = topark.pop(0); ta, ab = freeA.pop(0); src = where[fr]
            g = tl.seq([f"v_accvgpr_write_b32 a{ab.b+q}, v{src.b+q}" for q in range(4)], max(g, ta))
            assert g < spos[fr]
            where[fr] = ab; freeV.append((g, src)); freeV.sort(key=lambda x: x[0])
            continue
        key = pend.pop(0); tf, blk = freeV.pop(0); i = order2.index(key)
        lo = max(g, tf + 1); tm = 16
        while base[tm] + i + 30 < lo: tm += 1
        assert tm < 31, "migration too late"
        g = tl.seq([f"v_accvgpr_read_b32 v{blk.b+q}, a{loc[key].b+q}" for q in range(4)], max(lo, base[tm] + i + 8))
        assert g < base[tm + 1] + i - 2, (key, tm, g)
        migr[key] = (tm, blk)
        if loc[key].b < 64: freeA.append((g, loc[key]))
    gmig = g
    note("migrations end at P2 k-step", kof(g) - 16)
    assert len(freeV) == 8
    spareV = [b_ for _, b_ in freeV]; gspare = max(t_ for t_, _ in freeV)
    for t_ in tl.sl: t_.mem = [re.sub(r"%([VK])(\d+)%", lambda m: where[(m.group(1), int(m.group(2)))](4), x) for x in t_.mem]
    loc_at = lambda key, t: migr[key][1] if key in migr and t > migr[key][0] else loc[key]
    for t in range(16, 34):
        for i, (tt, (aa, c)) in enumerate(sched2[t]): tl.sl[base[t] + i].mf = mfma(loc_at((aa, c), tt), fW2(tt & 1, c), fX2(tt & 1, aa), "0" if tt == 16 else None)
    acc2 = lambda aa, i: loc_at((aa, i), 99)

    Q = lambda aa, s: acc2(aa, 2*s)
    Cb = lambda G, u, a2: spareV[4*G + 2*u + a2]
    Sb = lambda b, ch: acc2(b, 2*ch + 1)
    Pb = lambda b, a2: acc2(2, 2*(2*b + a2) + 1)
    Ol = [acc2(aa, 8 + T) for aa in range(4) for T in range(4)]
    XV = [acc2(3, 2*s + 1) for s in range(4)]
    def O(aa, dt): return A(4*(aa*8 + dt)) if aa < 2 else Ol[(aa - 2)*8 + dt]
    Kf = lambda u, s: A(192 + 4*(u*4 + s))
    Vf = lambda dt: A(64 + 4*dt)
    Ls = lambda aa: A(224 + 4*aa)
    ONE = A(240)
    sreg = lambda b, e: Sb(b, e >> 2).b + (e & 3)
    vB, vNEG, vOmg = "v5", "v6", 8
    qk = lambda G, b: [mfma(Sb(b, 2*u + a2), Kf(u, s), Q(2*G + a2, s), Cb(G, u, a2) if s == 0 else None) for u in range(2) for a2 in range(2) for s in range(4)]
    def pv(G, b, c=None): return [mfma(O(2*G + a2, dt), Vf(dt), Pb(b, a2), c) for dt in range(8) for a2 in range(2)] + [mfma(Ls(2*G + a2), ONE, Pb(b, a2), c) for a2 in range(2)]
    ex = lambda b, e: f"v_exp_f32 v{sreg(b,e)}, v{sreg(b,e)}"
    cv = lambda b, i: f"v_cvt_pk_bf16_f32 v{Pb(b, (i>>1)&1).b + 2*(i>>2) + (i&1)}, v{sreg(b,2*i)}, v{sreg(b,2*i+1)}"
    for i, m in enumerate(qk(0, 0) + qk(1, 1)): tl.sl[bQs + i].mf = m

    tl.put(signal(sSig, 4), base[16 + KVSIG] + 2)
    g = tl.seq([f"v_and_b32 v28, 31, {vLane}", "v_lshlrev_b32 v28, 2, v28"], gpk + 1)
    g = put_check(tl, "CK_ZA", f"buffer_load_dword v30, v28, {srd(rD)}, 0 offen sc1", "v30", 1, "ckza", g + 1, g + 40)
    g = put_check(tl, "CK_KV", f"buffer_load_dword v30, v29, {srd(rWS)}, {sFH} offen offset:4 sc1", "v30", 8, "ckkv", max(g + 1, base[16 + opt("ckl", 11)] + 4), base[15 + RPF] + 34)
    assert g < base[16 + RPF] + 2
    m96 = "s[96:97]"; ZR = opt("zr", 1)
    sal = [f"s_lshr_b32 {sKq}, {sX}, 1", f"s_and_b32 {sRb}, {sX}, 1", f"s_xor_b32 {t0}, {sJ}, {opt('jx', 7)}", f"s_lshl1_add_u32 {sRb}, {t0}, {sRb}", f"s_and_b32 {sCt}, {sSlot}, 3",
           f"s_lshl_b32 {sStg}, {sWave}, 13", f"s_add_u32 {sStg}, {sStg}, 131072",
           f"s_mul_i32 {t0}, s2, 5462", f"s_lshr_b32 {t0}, {t0}, 16", f"s_mul_i32 {t2}, {t0}, 12", f"s_sub_u32 {t2}, s2, {t2}", f"s_mul_i32 {t2}, {t2}, 3", f"s_add_u32 {t2}, {t2}, {sWave}",
           f"s_mul_i32 {t3}, {t0}, 13108", f"s_lshr_b32 {t3}, {t3}, 16", f"s_mul_i32 {sRA}, {t3}, 5", f"s_sub_u32 {t0}, {t0}, {sRA}"]
    g = tl.seq(sal, gmig + 1)
    val = [f"v_lshrrev_b32 v16, 1, {vLane}", f"v_and_b32 v17, 1, {vLane}", "v_mul_u32_u24 v18, 1152, v16", "v_lshl_add_u32 v18, v17, 4, v18", "v_mov_b32 v24, v18",
           "v_lshrrev_b32 v18, 4, v16", "v_bfe_u32 v19, v16, 2, 2", "v_and_b32 v16, 3, v16",
           "v_lshrrev_b32 v20, 1, v19", "v_mul_u32_u24 v20, 18, v20", "v_and_b32 v21, 1, v19", "v_lshl_add_u32 v20, v21, 1, v20", "v_lshl_add_u32 v20, v16, 2, v20", "v_add_u32 v20, v20, v18",
           f"v_mad_u32_u24 v20, {t0}, 36, v20",
           "v_lshlrev_b32 v21, 1, v18", "v_lshl_add_u32 v21, v19, 2, v21", "v_lshrrev_b32 v22, 1, v16", "v_add_u32 v21, v21, v22", "v_mul_u32_u24 v21, 18, v21",
           "v_and_b32 v22, 1, v16", "v_add3_u32 v21, v21, v22, 16", f"v_cmp_lt_u32 {m96}, 1, v19", "v_mov_b32 v22, 0x100000", "v_mul_u32_u24 v23, 1, v23"]
    g = tl.seq(val, g + 1)
    g = tl.seq([f"v_cndmask_b32 v21, v21, v22, {m96}", f"v_mov_b32 v22, {t0}", f"v_cmp_eq_u32 {m96}, 4, v22"], g + 1)
    g = tl.seq([f"v_cndmask_b32 v20, v20, v21, {m96}", "v_mul_u32_u24 v20, 1152, v20", "v_lshl_add_u32 v20, v17, 4, v20", "v_mov_b32 v25, v20",
                f"v_mov_b32 v16, {t2}", f"v_mov_b32 v17, {t3}", f"v_add_u32 v18, 32, v22"], g + 2)
    g = tl.seq([f"s_mul_i32 {sRA}, {t3}, {144*1152}", f"s_lshl_b32 {t2}, {t2}, 5", f"s_add_u32 {sRA}, {sRA}, {t2}",
                f"s_and_b32 {t0}, s2, 1", f"s_lshr_b32 {t2}, {sWave}, 1", f"s_lshl1_add_u32 {t0}, {t0}, {t2}", f"s_mul_i32 {t0}, {t0}, 9", f"s_and_b32 {t2}, {sWave}, 1", f"s_mul_i32 {t3}, {t2}, 5",
                f"s_add_u32 {t0}, {t0}, {t3}", f"s_lshr_b32 {t3}, s2, 1", f"s_mul_i32 {sRB}, {t3}, 1152", f"s_add_u32 {sRB}, {sRB}, {t0}", f"s_lshl_b32 {sRB}, {sRB}, 5"], g + 1)
    g = tl.seq([f"v_cmp_gt_u32 {m96}, 5, {vLane}", f"v_add_u32 v19, {t0}, {vLane}", f"v_lshrrev_b32 v20, 5, {t3}", f"v_and_b32 v21, 31, {t3}"], g + 1)
    g = tl.seq([f"v_cndmask_b32 v16, v16, v19, {m96}", f"v_cndmask_b32 v17, v17, v20, {m96}", f"v_cndmask_b32 v18, v18, v21, {m96}",
                "v_mul_u32_u24 v19, 7282, v16", "v_lshrrev_b32 v19, 16, v19", "v_mul_u32_u24 v20, 9, v19", "v_sub_u32 v16, v16, v20",
                f"v_and_b32 v20, {ZR}, v19", "v_lshlrev_b32 v20, 2, v20", f"v_cndmask_b32 v20, 0, v20, {m96}", "v_xor_b32 v18, v18, v20",
                "v_lshlrev_b32 v19, 22, v19", "v_and_b32 v20, 1, v17", f"v_mul_u32_u24 v20, {WO_S}, v20", "v_lshrrev_b32 v21, 1, v17", f"v_xor_b32 v21, {SC}, v21", "v_lshlrev_b32 v21, 13, v21", "v_add3_u32 v19, v19, v20, v21",
                "v_lshrrev_b32 v20, 1, v16", "v_sub_u32 v20, v20, v17", "v_add_u32 v20, 3, v20", "v_and_b32 v20, 3, v20",
                f"v_cmp_eq_u32 {m96}, 8, v16", "v_and_b32 v16, 1, v16", "v_lshlrev_b32 v21, 1, v20", "v_mul_u32_u24 v22, 74, v20"], g + 1)
    g = tl.seq([f"v_cndmask_b32 v21, v21, 4, {m96}", f"v_cndmask_b32 v20, v20, 0, {m96}", "v_mad_u32_u24 v21, v18, 5, v21", "v_lshl_add_u32 v22, v18, 1, v22", f"v_cmp_gt_u32 {m96}, 2, v20", "v_add_u32 v22, 37, v22", f"v_add_u32 v19, {WS_WO}, v19"], g + 1)
    g = tl.seq([f"v_cndmask_b32 v21, v22, v21, {m96}", "v_add_u32 v21, v21, v16", "v_and_b32 v22, -8, v21", f"v_mad_u32_u24 v21, v22, {BS // 8192 - 1}, v21", "v_lshl_add_u32 v19, v21, 10, v19"], g + 1)
    g = tl.seq([[f"s_cmp_eq_u32 {t2}, 1", f"s_cselect_b32 s96, 16, 0"], [f"s_cmp_eq_u32 {sWave}, 3", f"s_cselect_b32 {t0}, 32, 0"], f"s_or_b32 s96, s96, {t0}", [f"s_cmp_ge_u32 s2, 240", f"s_cselect_b32 {t0}, 32, 0"],
                f"s_or_b32 s96, s96, {t0}", "s_mov_b32 s97, 0"], g + 1)
    g = tl.seq([f"v_mov_b32 v20, {OOB}", f"v_cndmask_b32 v26, v19, v20, {m96}", f"v_lshlrev_b32 v27, 3, {vLane}", f"v_add_u32 v27, {sStg}, v27"], g + 1)
    assert g < base[29], kof(g)
    g = tl.seq([f"v_mov_b32 v16, 0x3f803f80"] + [f"v_accvgpr_write_b32 a{ONE.b+q}, v16" for q in range(4)] + [f"v_accvgpr_write_b32 a{Ls(2).b+q}, 0" for q in range(8)]
               + [f"v_lshlrev_b32 v16, 2, {vG}", f"v_sub_u32 v16, {vN}, v16"] + [f"v_cmp_gt_i32 s[{sTri[r]}:{sTri[r]+1}], {r}, v16" for r in range(4)]
               + [f"v_cmp_eq_u32 {m96}, 3, {vG}", f"v_add_u32 v17, 48, {vN}", "v_lshlrev_b32 v17, 2, v17", f"v_lshlrev_b32 v18, 16, {vG}", f"v_lshl_add_u32 v18, {vN}, 4, v18", "v_add_u32 v19, 0x8000, v18",
                  f"v_cndmask_b32 v19, v19, v20, {m96}"], g + 1)
    g = tl.seq([f"v_mov_b32 v{Cb(G,u,a2).b+r}, 0" for G in range(2) for u in range(2) for a2 in range(2) for r in range(4)], max(g, gspare + 2))
    g = tl.put(f"v_mov_b32 {vNEG}, {NEG:#x}", max(g, base[30]))
    def diag(G):
        o = []
        for r in range(4):
            for u in range(2): o.append(f"v_cndmask_b32 v{Cb(G,u,u).b+r}, v{Cb(G,u,u).b+r}, {vNEG}, s[{sTri[r]}:{sTri[r]+1}]")
            o.append(f"v_mov_b32 v{Cb(G,1,0).b+r}, {vNEG}")
        return o
    STUBS.extend(["D0:"] + diag(0) + ["s_branch D0_R"])
    g = tl.put([f"s_cmp_eq_u32 {sGs}, 0", "s_cbranch_scc1 D0\nD0_R:"], g + 1, lock=True)
    g = tl.seq([f"s_lshl_b32 {t0}, {sH}, 18", f"s_add_u32 {t0}, {t0}, {WS_QA}", f"s_lshl_b32 {t2}, {sGs}, 9", f"s_add_u32 {t2}, {t2}, {t0}", f"s_lshl_b32 {t3}, {sGl}, 9", f"s_add_u32 {t3}, {t3}, {t0}"], g + 1)
    note("P3 constants end at P2 k-step", kof(g) - 16)
    assert g < base[33] + 16
    g = tl.put("s_waitcnt vmcnt(@stg)", base[16 + opt("stw", 15)] + 3)
    g = tl.seq([[f"ds_read_b64_tr_b16 a[{192+4*i+2*q}:{193+4*i+2*q}], v27 offset:{i*1024 + q*512} ;@tr" for q in range(2)] for i in range(6)], g)
    dst = [sRB, sRA, sCc, sCc2, sWb, sWk]
    g = tl.seq([f"v_readlane_b32 {dst[i]}, v26, {i}" for i in range(6)], g)
    assert g < base[17 + opt("stw", 15)] - 6
    g = base[17 + opt("stw", 15)] - 3
    for i in range(6): g = tl.put(f"buffer_store_dwordx4 a[{192+4*i}:{195+4*i}], {vL16}, {srd(rWS)}, {dst[i]} offen sc1 ;@wo", g + opt("wsp", 5))
    note("w_o stores end at P2 k-step", kof(g) - 16)
    gwo = g
    g = 0
    for aa in range(4):
        for s in range(4): g = tl.seq(pack(Q(aa, s), acc2(aa, 2*s), acc2(aa, 2*s + 1)), max(g, fin[(aa, 2*s + 1)] + 7))
    assert g < bQs - 2
    tl.seq([f"ds_read_b128 {Kf(i>>2, i&3)(4)}, {vL16} offset:{2*16384 + i*1024}" for i in range(8)], max(base[33] + 2, gwo + 2), bQs - 8)
    g = 0
    for aa in range(4):
        ins = [f"ds_bpermute_b32 v{vOmg+aa}, v17, v{acc2(aa,8).b+3}"]
        for hf in range(2):
            d = acc2(aa, 8 + 2*hf)
            ins += pack(d, d, acc2(aa, 9 + 2*hf))
            ins.append(f"buffer_store_dwordx4 {d(4)}, v{18+hf}, {srd(rWS)}, {t2 if aa < 2 else t3} offen offset:{(aa & 1)*256}{FL[opt('fqa', 0)]} ;@qa")
        g = tl.seq(ins, max(g, fin[(aa, 11)] + 7))
    nrec = 18 - RPF - 1
    tl.force(bQl - 1, ["s_waitcnt vmcnt(@r1)"]); tl.force(bQl, ["s_barrier"])
    if STAMPS and opt("kst", 1):
        for t in range(2, 34):
            tl.force(base[t] + 2, ["s_memtime s[100:101]" if opt("kst", 1) == 1 else "s_memrealtime s[100:101]"])
            tl.force(base[t] + {14: 32, 32: 24}.get(t, (base[t+1] if t < 33 else bQs) - base[t]), [f"v_writelane_b32 v15, s100, {30 + t}"])
    L += tl.lines()
    L += stamp(2)
    for i in range(8): a(f"ds_read_b128 {Vf(i)(4)}, {vL16} offset:{3*16384 + 8192 + i*1024}")
    def maxsub(G, b):
        o = []; m = [TMP + 8 + 2*a2 for a2 in range(2)]
        rr = [[sreg(b, 4*(2*u + a2) + q) for u in range(2) for q in range(4)] for a2 in range(2)]
        for a2, r in enumerate(rr): o += [f"v_max3_f32 v{m[a2]}, v{r[0]}, v{r[1]}, v{r[2]}", f"v_max3_f32 v{m[a2]+1}, v{r[3]}, v{r[4]}, v{r[5]}"]
        for a2, r in enumerate(rr): o += [f"v_max3_f32 v{m[a2]}, v{m[a2]}, v{r[6]}, v{r[7]}", f"v_max_f32 v{m[a2]}, v{m[a2]}, v{m[a2]+1}"]
        for sw in ("v_permlane32_swap_b32", "v_permlane16_swap_b32"):
            o += [f"v_mov_b32 v{x+1}, v{x}" for x in m] + ["s_nop 1"] + [f"{sw} v{x+1}, v{x}" for x in m] + ["s_nop 0"] + [f"v_max_f32 v{x}, v{x}, v{x+1}" for x in m]
        o += [f"v_sub_f32 v{sreg(b,e)}, v{sreg(b,e)}, v{m[(e >> 2) & 1]}" for e in range(16)]
        c = [f"v_sub_f32 v{Cb(G,u,a2).b+r}, v{Cb(G,u,a2).b+r}, v{m[a2]}" for u in range(2) for a2 in range(2) for r in range(4)]
        return o, c
    rest = [x for n in range(nrec, RING - 1) for x in flat(rec_dma(n))]
    o, c = maxsub(0, 0)
    body = o + c
    for e in range(16):
        body.append(ex(0, e))
        if e >= 3 and e % 2 == 1: body.append(cv(0, (e - 3) // 2))
    o, c = maxsub(1, 1)
    body += o[:1] + [cv(0, 7)] + o[1:] + c
    body += [f"v_mov_b32 v{blk.b+q}, 0" for blk in Ol for q in range(4)]
    L += sprinkle(body, rest, 9)
    for i in range(8): a(f"ds_read_b128 {Kf(i>>2, i&3)(4)}, {vL16} offset:{3*16384 + i*1024}")
    a("s_waitcnt lgkmcnt(8)")
    EVT = [opt("e0", 16), opt("e1", 20)]
    tp = Timeline(); tp.add(pv(0, 0, "0"))
    items = []
    for e in range(13):
        items.append(ex(1, e))
        if e >= 3 and e % 4 == 3: items.append([cv(1, (e - 3) // 2), cv(1, (e - 3) // 2 + 1)])
    tp.seq(items, 0, step=1)
    a(f"s_and_b32 {sWst}, {sKq}, 1"); a(f"s_mul_i32 {sWst}, {sWst}, {WO_S}"); a(f"s_lshl_b32 {t0}, {sCt}, 22"); a(f"s_add_u32 {sWst}, {sWst}, {t0}")
    tp.seq([f"s_mul_i32 {t0}, {sJ}, {4*RS}", f"s_sub_u32 {t0}, {65*RS}, {t0}", f"s_add_u32 {sLastP}, {sKg}, {t0}",
            f"s_and_b32 {t0}, {sKg}, 0xffff", f"s_add_u32 {sWst}, {sWst}, {t0}", f"s_add_u32 {sWst}, {sWst}, {WS_WO}", f"s_add_u32 {sKg}, {sKg}, {RING*RS}",
            f"s_add_u32 {sKl}, {sKl}, {((RING - 1 + 3) % RING)*16384}",
            f"s_mov_b32 {sBo}, {4*16384}", f"s_mov_b32 {sN}, 1", f"s_mov_b32 {sEvT}, {EVT[0]}", f"s_min_u32 {sCnt}, {sEvT}, {sGs}"], 0)
    tp.put("s_waitcnt vmcnt(@qa,@kvB,@wo) lgkmcnt(0)", 16)
    tp.force(17, ["s_barrier"])
    L += tp.lines()
    a(signal(sSig, 8))
    L += stamp(3)
    a(f"s_cmp_lt_u32 {sGs}, 2"); a("s_cbranch_scc1 L_DN")
    if "kill" in OPT:
        ks = OPT["kill"].split("+"); L = "\n".join(L).split("\n")
        for i, l in enumerate(L):
            c = ("kv" if "@kv" in l else "qa" if "@qa" in l else "wo" if "@wo" in l else "stg" if "@stg" in l else "pf" if l.startswith(("buffer_load_dword a252", "buffer_load_dword a253")) else
                 "u1" if l.startswith("buffer_load_dwordx2 a[") else "u1s" if sU1s + " offen offset" in l else "rec" if "@r" in l else None)
            if l.startswith("buffer_") and c in ks: L[i] = re.sub(r"s\[\d+:\d+\]", srd(rO), l)
            if l == f"s_mov_b32 s{rO+2}, {2048*576*2}": L[i] = f"s_mov_b32 s{rO+2}, 0"
        L.insert(-2, f"s_mov_b32 s{rO+2}, {2048*576*2}")
    pre = resolve_waits("\n".join(L).split("\n"))

    KPOS = [6, 8, 8, 10, 14, 16, 16, 18]; VPOS = [22, 24, 24, 26, 30, 32, 32, 33]; DPOS = [4, 12, 20, 28]
    def half(mode, hb):
        sal, ds, va = {}, {}, {}
        add = lambda d, g, x: d.setdefault(g, []).append(x)
        newrec = mode != "D" or hb == 0
        if newrec: add(va, 2, f"v_add_u32 {vB}, {sBo}, {vL16}")
        for e in range(16): add(va, 7 + 2*e if e < 13 else 2*e - 25, ex(hb if e < 13 else 1 - hb, e))
        for i in range(8): add(va, 10 + 4*i if i < 6 else 4*i - 22, cv(hb if i < 6 else 1 - hb, i))
        if mode == "S" or (mode == "D" and hb == 1):
            for i in range(8): add(ds, KPOS[i], f"ds_read_b128 {Kf(i>>2,i&3)(4)}, {vB} offset:{i*1024}")
        if newrec:
            for i in range(8): add(ds, VPOS[i], f"ds_read_b128 {Vf(i)(4)}, {vB} offset:{8192 + i*1024}")
            add(sal, 0, f"s_waitcnt vmcnt({8 if mode == 'F' else 4*(RING-3)})"); add(sal, 0, "s_barrier")
            add(sal, 1, f"s_cmp_eq_u32 {sKg}, {sLastP}"); add(sal, 2, f"s_cselect_b32 {sT}, {sWst}, {sKg}"); add(sal, 3, f"s_mov_b32 m0, {sKl}")
            for q in range(4): add(ds, DPOS[q], f"buffer_load_dwordx4 {vL16}, {srd(rWS)}, {sT} offen offset:{q*1024} sc1 lds")
            add(sal, 5, f"s_add_u32 {sBo}, {sBo}, 16384"); add(sal, 7, f"s_and_b32 {sBo}, {sBo}, {RING*16384 - 1}")
            add(sal, 9, f"s_add_u32 {sKg}, {sT}, {RS}"); add(sal, 11, f"s_add_u32 {sKl}, {sKl}, 16384"); add(sal, 13, f"s_and_b32 {sKl}, {sKl}, {RING*16384 - 1}")
            add(sal, 17, f"s_add_u32 {sN}, {sN}, 1")
        else: add(sal, 4, "s_nop 0")
        if mode == "S": add(sal, 15, "s_waitcnt lgkmcnt(5)"); add(sal, 31, "s_waitcnt lgkmcnt(5)")
        if mode == "F": add(sal, 15, "s_waitcnt lgkmcnt(0)")
        if mode == "D" and hb == 1: add(sal, 15, "s_waitcnt lgkmcnt(5)"); add(sal, 31, "s_waitcnt lgkmcnt(0)")
        if hb == 1: add(sal, 29, f"s_cmp_lt_u32 {sN}, {sCnt}")
        return sal, ds, va
    def emit(mf, f):
        sal, ds, va = f
        return weave(mf, {g: sal.get(g, []) + ds.get(g, []) + va.get(g, []) for g in range(len(mf))})
    D = ["L_DUAL:"] + emit(qk(0, 0) + pv(1, 1), half("D", 0)) + emit(qk(1, 1) + pv(0, 0), half("D", 1)) + ["s_cbranch_scc1 L_DUAL"]
    Sg = ["L_SINGLE:"] + emit(qk(1, 0) + pv(1, 1), half("S", 0)) + emit(qk(1, 1) + pv(1, 0), half("S", 1)) + ["s_cbranch_scc1 L_SINGLE"]
    check_scc(D); check_scc(Sg)
    tb = [V(TMP), V(TMP + 4), V(TMP + 8), V(TMP + 12)]
    BIG = f2u(2.0 ** opt("big", 60))
    rdl = lambda G: [f"v_accvgpr_read_b32 v{XV[0].b+2*a2}, a{Ls(2*G+a2).b}" for a2 in range(2)]
    def slow(G, name):
        g_ = sGl if G else sGs; m = [16, 18]; o = [f"{name}:", f"v_add_u32 v20, 4096, {vL16}", f"s_mov_b32 {t2}, 0"]
        o += [f"v_mov_b32 v{x}, {vNEG}" for x in m]
        o += [f"{name}_P:", f"s_mov_b32 {t1}, 0", f"s_mov_b32 {t0}, {sHb}", f"{name}_T:", f"s_add_u32 {t3}, {t0}, {RS + BS}"]
        o += [f"buffer_load_dwordx4 {Kf(i>>2,i&3)(4)}, {'v20' if i > 3 else vL16}, {srd(rWS)}, {t0} offen offset:{(i&3)*1024} sc1" for i in range(8)]
        o += [f"buffer_load_dwordx4 {Vf(i)(4)}, {'v20' if i > 3 else vL16}, {srd(rWS)}, {t3} offen offset:{(i&3)*1024} sc1" for i in range(8)]
        o += ["s_waitcnt vmcnt(0)"] + [mfma(Sb(0, 2*u + a2), Kf(u, s_), Q(2*G + a2, s_), "0" if s_ == 0 else None) for u in range(2) for a2 in range(2) for s_ in range(4)]
        o += ["s_nop 7", f"s_cmp_lg_u32 {t1}, {g_}", f"s_cbranch_scc1 {name}_U"]
        for r in range(4):
            o += [f"v_cndmask_b32 v{Sb(0,3*u).b+r}, v{Sb(0,3*u).b+r}, {vNEG}, s[{sTri[r]}:{sTri[r]+1}]" for u in range(2)] + [f"v_mov_b32 v{Sb(0,2).b+r}, {vNEG}"]
        o += [f"{name}_U:", f"s_cmp_lg_u32 {t2}, 0", f"s_cbranch_scc1 {name}_A"]
        o += [f"v_max3_f32 v{m[(e>>2)&1]}, v{m[(e>>2)&1]}, v{sreg(0,e)}, v{sreg(0,e+1)}" for e in range(0, 16, 2)]
        o += [f"s_branch {name}_N", f"{name}_A:"]
        o += [f"v_sub_f32 v{sreg(0,e)}, v{sreg(0,e)}, v{m[(e>>2)&1]}" for e in range(16)] + [ex(0, e) for e in range(16)] + ["s_nop 0"] + [cv(0, i) for i in range(8)] + ["s_nop 1"] + pv(G, 0)
        o += [f"{name}_N:", f"s_add_u32 {t0}, {t0}, {RS}", f"s_add_u32 {t1}, {t1}, 1", f"s_cmp_le_u32 {t1}, {g_}", f"s_cbranch_scc1 {name}_T",
              f"s_cmp_lg_u32 {t2}, 0", f"s_cbranch_scc1 {name}_E"]
        for sw in ("v_permlane32_swap_b32", "v_permlane16_swap_b32"):
            o += [f"v_mov_b32 v{x+1}, v{x}" for x in m] + ["s_nop 1"] + [f"{sw} v{x+1}, v{x}" for x in m] + ["s_nop 1"] + [f"v_max_f32 v{x}, v{x}, v{x+1}" for x in m]
        for blk in [O(2*G + a2, dt) for a2 in range(2) for dt in range(8)] + [Ls(2*G), Ls(2*G + 1)]:
            o += [(f"v_mov_b32 v{blk.b+q}, 0" if blk.p == "v" else f"v_accvgpr_write_b32 a{blk.b+q}, 0") for q in range(4)]
        o += [f"s_mov_b32 {t2}, 1", f"s_branch {name}_P", f"{name}_E:", "s_nop 7"] + rdl(G) + [f"s_branch {name}_R"]
        return o
    def epilogue(G, bad, ret=None):
        sc = XV[0].b
        o = rdl(G) + [f"v_cmp_nle_f32 vcc, v{sc}, v7", f"v_cmp_nle_f32 s[96:97], v{sc+2}, v7", "s_nop 3", "s_or_b64 vcc, vcc, s[96:97]", f"s_cbranch_vccnz {bad}"] + ([f"{ret}:"] if ret else [])
        for a2 in range(2): o.append(f"v_mul_f32 v{vOmg+2*G+a2}, {f2u(LOG2E):#x}, v{vOmg+2*G+a2}")
        for a2 in range(2): o.append(f"v_exp_f32 v{vOmg+2*G+a2}, v{vOmg+2*G+a2}")
        o += ["s_nop 0"]
        for a2 in range(2): o.append(f"v_fma_f32 v{sc+2*a2}, v{sc+2*a2}, v{vOmg+2*G+a2}, v{sc+2*a2}")
        for a2 in range(2): o.append(f"v_rcp_f32 v{sc+2*a2}, v{sc+2*a2}")
        o += [f"s_add_u32 {t0}, {sZl if G else sZs}, 4096"]
        for a2 in range(2): o.append(f"v_mov_b32 v{sc+2*a2+1}, v{sc+2*a2}")
        k = 0
        for s in range(4):
            for a2 in range(2):
                aa = 2*G + a2; x0, x1 = O(aa, 2*s), O(aa, 2*s + 1)
                if x0.p == "a":
                    y0, y1 = tb[2*(k & 1)], tb[2*(k & 1) + 1]; k += 1
                    o += [f"v_accvgpr_read_b32 v{y.b+q}, a{x.b+q}" for x, y in ((x0, y0), (x1, y1)) for q in range(4)]
                    x0, x1 = y0, y1
                o += [f"v_pk_mul_f32 v[{x.b+q}:{x.b+q+1}], v[{x.b+q}:{x.b+q+1}], v[{sc+2*a2}:{sc+2*a2+1}]" for x in (x0, x1) for q in (0, 2)]
                o += pack(x0, x0, x1)
                o.append(f"buffer_store_dwordx4 {x0(4)}, {vL16}, {srd(rWS)}, {t0 if s > 1 else (sZl if G else sZs)} offen offset:{(s & 1)*2048 + a2*1024} sc1")
        return o
    SE = epilogue(0, "L_SN") + [f"s_mov_b32 {sDone}, 1"]
    SE2 = epilogue(0, "SLOW0", "SLOW0_R")
    SL = [slow(0, "SLOW0"), slow(1, "SLOW1")]
    vF, vFa = f"v{XV[1].b}", f"v{XV[1].b+1}"
    ldW = f"buffer_load_dword {vF}, {vFa}, {srd(rWS)}, 0 offen sc1"
    def event(n):
        e0 = [f"s_cmp_lt_u32 {sN}, {sEvT}", f"s_cbranch_scc1 L_{n}N", f"s_cmp_lg_u32 {sEvT}, {EVT[0]}", f"s_cbranch_scc1 L_{n}C"]
        e1 = [f"v_and_b32 {vFa}, 31, {vLane}", f"v_lshlrev_b32 {vFa}, 10, {vFa}", f"v_add_u32 {vFa}, {WS_FL + 512 + 8}, {vFa}", ldW, f"s_mov_b32 {sEvT}, {EVT[1]}", f"s_branch L_{n}N"]
        w, c, b = check(f"CK_{n}", ldW, vF, 8, f"s_waitcnt vmcnt({4*(EVT[1] - EVT[0] - 1)})")
        e2 = [f"L_{n}C:"] + w + c + [f"s_mov_b32 {sEvT}, 64", "s_nop 3"] + b[0].split("\n")
        return e0, e1, e2
    ED, ES = event("D"), event("S")
    X1 = ["L_DN:", f"s_min_u32 {sCnt}, {sEvT}, {sGs}", f"s_cmp_lt_u32 {sN}, {sGs}", "s_cbranch_scc1 L_DUAL", f"s_cmp_gt_u32 {sN}, {sGs}", "s_cbranch_scc1 L_POST"]
    X2 = diag(0) + ["s_nop 0", "s_branch L_DUAL"]
    X4 = ["L_POST:"] + stamp(4) + zq(t0) + [f"s_and_b32 {t1}, {sH}, 7", f"s_mul_i32 {t1}, {t1}, {BS}", f"s_add_u32 {t0}, {t0}, {t1}"] + zgrp(sZs, sGs, t0) + zgrp(sZl, sGl, t0) + [
          f"s_mov_b32 {sDone}, 0", f"v_mov_b32 v7, {BIG:#x}", f"s_cmp_ge_u32 {sWave}, 2", "s_cbranch_scc1 L_SN"]
    X5 = [f"s_min_u32 {sCnt}, {sEvT}, {sGl}"]
    X6 = ["L_SN:", f"s_min_u32 {sCnt}, {sEvT}, {sGl}", f"s_cmp_lt_u32 {sN}, {sGl}", "s_cbranch_scc1 L_SINGLE"]

    E = stamp(5) + diag(1) + ["s_nop 1"]; a = E.append
    E += emit(qk(1, 0) + pv(1, 1), half("F", 0))
    xbar = lambda k: [f"s_cmp_lt_u32 {sWave}, {k}", f"s_cbranch_scc1 L_XB{k}", "s_barrier"] + flat(ring_dma("x")) + [f"L_XB{k}:"]
    a(ex(0, 13)); a(ex(0, 14)); a(ex(0, 15)); E += xbar(1); a(cv(0, 6)); a(cv(0, 7))
    E += [f"s_lshl_b32 {t1}, {sH}, 18", f"s_add_u32 {t1}, {t1}, {WS_QA}", f"s_lshl_b32 {t2}, {sGs}, 9", f"s_add_u32 {t2}, {t2}, {t1}", f"s_lshl_b32 {t3}, {sGl}, 9", f"s_add_u32 {t3}, {t3}, {t1}"]
    la = [([f"s_add_u32 m0, {sStg}, {(G*5 + c - 2)*768}", f"s_add_u32 {sT}, {t3 if G else t2}, {c*32768 - 256}"],
           ["s_mov_b32 exec_hi, 0xffff", f"buffer_load_dwordx4 {vL16}, {srd(rWS)}, {sT} offen sc1 lds", "s_mov_b32 exec_hi, -1"]) for G in range(2) for c in range(2, 7)]
    E += la[0][0] + la[0][1]
    a("s_waitcnt lgkmcnt(0)")
    E += weave(pv(1, 0), {g: la[1 + g//2][g & 1] for g in range(18)})
    vRow, vLa = XV[2].b, XV[2].b + 1
    qr = [Cb(0, 0, 0), Cb(0, 0, 1)]
    a(f"v_and_b32 v{vRow+2}, 31, {vLane}"); a(f"v_cmp_lt_u32 vcc, 31, {vLane}"); a(f"v_mov_b32 v{vRow}, {sGs}"); a(f"v_mov_b32 v{vRow+3}, {sGl}")
    a(f"v_cndmask_b32 v{vRow}, v{vRow}, v{vRow+3}, vcc"); a(f"v_lshl_add_u32 v{vRow}, v{vRow}, 5, v{vRow+2}"); a(f"v_lshlrev_b32 v{vRow+3}, 4, v{vRow}")
    a(f"buffer_load_dwordx4 {qr[0](4)}, v{vRow+3}, {srd(rWS)}, {t1} offen sc1"); a(f"s_add_u32 {t1}, {t1}, 32768")
    a(f"buffer_load_dwordx4 {qr[1](4)}, v{vRow+3}, {srd(rWS)}, {t1} offen sc1")
    a(f"v_lshrrev_b32 v{vLa}, 5, {vLane}"); a(f"v_mul_u32_u24 v{vLa}, 3840, v{vLa}"); a(f"v_lshl_add_u32 v{vLa}, v{vRow+2}, 4, v{vLa}"); a(f"v_add_u32 v{vLa}, {sStg}, v{vLa}")
    E += xbar(2) + epilogue(1, "SLOW1", "SLOW1_R") + xbar(3)
    E1 = [f"s_cmp_lg_u32 {sDone}, 0", "s_cbranch_scc1 L_NOSE2"]
    E2 = ["L_NOSE2:"] + stamp(6); a = E2.append
    sFz, sFc, sZb, sPx, sFp = sCnt, sBo, sDone, sEv, sEvT
    a(f"v_mov_b32 v5, v{vRow}"); a(f"v_mov_b32 v6, v{vLa}")
    a(f"s_lshl_b32 {sFz}, {sGs}, 10"); a(f"s_lshr_b32 {t0}, {sH}, 3"); a(f"s_lshl_b32 {t0}, {t0}, 7"); a(f"s_add_u32 {sFz}, {sFz}, {t0}"); a(f"s_add_u32 {sFz}, {sFz}, {WS_FL}")
    a("s_waitcnt vmcnt(8)")
    for q in range(8): a(f"v_mov_b32 v{16+q}, v{qr[q>>2].b + (q&3)}")
    a("s_barrier")
    Kr = lambda w: 32 + 8*w; Xr = lambda w: 96 + 4*w; Vr = lambda w: 128 + 8*w
    for w in range(8):
        o = (16 - 2*w)*16
        a(f"ds_read_b128 v[{Xr(w)}:{Xr(w)+3}], v6 offset:{o + 4*768}"); a(f"ds_read_b128 v[{Kr(w)}:{Kr(w)+3}], v6 offset:{o}"); a(f"ds_read_b128 v[{Kr(w)+4}:{Kr(w)+7}], v6 offset:{o + 768}")
    a("s_waitcnt lgkmcnt(0)")
    for w in range(8):
        o = (16 - 2*w)*16
        a(f"ds_read_b128 v[{Vr(w)}:{Vr(w)+3}], v6 offset:{o + 2*768}"); a(f"ds_read_b128 v[{Vr(w)+4}:{Vr(w)+7}], v6 offset:{o + 3*768}")
    lg = 24
    d2 = lambda d, x, y, first=False: f"v_dot2_f32_bf16 v{d}, v{x}, v{y}, 0" if first else f"v_dot2c_f32_bf16 v{d}, v{x}, v{y}"
    a(f"v_and_b32 v9, 0xffff, v{Xr(0)+1}"); a(f"v_and_b32 v11, 0xffff0000, v{Xr(0)+1}")
    for w in range(8): a(d2(lg+w, Xr(w)+2, Xr(0)+3, True))
    for w in range(8): a(d2(lg+w, Xr(w), 9))
    for i in range(8):
        for w in range(8): a(d2(lg+w, 16+i, Kr(w)+i))
    sGam, sO9, sZe, sZx = sN, sLastP, sRB, sRA
    a(f"s_lshr_b32 {t0}, {sWave}, 1"); a(f"s_lshl1_add_u32 {t0}, {sRb}, {t0}")
    a(f"s_lshl3_add_u32 {sFc}, {t0}, {sKq}"); a(f"s_lshl_b32 {sFc}, {sFc}, 7"); a(f"s_add_u32 {sFc}, {sFc}, {WS_FL}")
    a(f"s_sub_u32 {t1}, 63, {t0}"); a(f"s_bitcmp1_b32 {sWave}, 0"); a(f"s_cselect_b32 {sGam}, {t1}, {t0}")
    E2 += zq(t1) + zgrp(sZb, sGam, t1)
    a(f"s_and_b32 {sZx}, {sCt}, {ZR}")
    a("v_mov_b32 v13, 0")
    ldB = f"buffer_load_dword v12, v13, {srd(rWS)}, {sFc} offen sc1"
    a(ldB)
    a("s_waitcnt vmcnt(0)"); a(signal(sFz))
    a("v_cmp_gt_u32 vcc, 8, v12")
    Zf = lambda k, a2: A(4*(2*k + a2)) if k < 32 else V(32 + 4*(2*(k - 32) + a2))
    def zload(i, b_=None):
        k, a2 = i >> 1, i & 1; b_ = b_ or sZb; zo = (i >> 3)*16384 + (i & 4)*1024
        pre_ = ([] if i % 4 else [f"s_add_u32 {sT2}, {sT2}, 4096"] if i % 8 else [f"s_xor_b32 {sT2}, {sZx}, {i >> 3}", f"s_mul_i32 {sT2}, {sT2}, {BS}", f"s_add_u32 {sT2}, {sT2}, {b_}"] if k < 32
                else [f"s_add_u32 {sT2}, {b_}, {(i >> 3)*BS}"])
        return pre_, f"buffer_load_dwordx4 {Zf(k,a2)(4)}, {'v11' if k == 36 else vL16}, {srd(rWS)}, {sT2} offen offset:{(i & 3)*1024} sc1 ;@Z{k}"
    Z0 = opt("z0", 12); RA = 6
    zl = lambda b_: [x for i in range(Z0) for x in zload(i, b_)[0] + [zload(i, b_)[1]]]
    a(f"v_mov_b32 v9, {NEG:#x}"); a(f"v_mul_f32 v11, {f2u(-LOG2E):#x}, v11"); a("v_exp_f32 v11, v11")
    a("s_cmp_eq_u64 vcc, 0"); a(f"s_cselect_b32 {sZe}, {sZb}, {OOB}")
    LA = []; a = LA.append
    for w in range(1, 8, 2):
        a(f"v_cmp_gt_u32 vcc, {2*w}, v5")
        a(f"v_cmp_gt_u32 s[{sTri[0]}:{sTri[0]+1}], {2*w+2}, v5" if w < 7 else "s_nop 0")
        a("s_nop 0"); a(f"v_cndmask_b32 v{lg+w}, v{lg+w}, v9, vcc")
        if w < 7: a(f"v_cndmask_b32 v{lg+w+1}, v{lg+w+1}, v9, s[{sTri[0]}:{sTri[0]+1}]")
    a(f"v_max3_f32 v10, v{lg}, v{lg+1}, v{lg+2}"); a(f"v_max3_f32 v10, v10, v{lg+3}, v{lg+4}"); a(f"v_max3_f32 v10, v10, v{lg+5}, v{lg+6}"); a(f"v_max_f32 v10, v10, v{lg+7}")
    a(f"s_mov_b32 {t0}, {f2u(LOG2E / math.sqrt(18.0)):#x}")
    for w in range(8): a(f"v_sub_f32 v{lg+w}, v{lg+w}, v10")
    for w in range(8): a(f"v_mul_f32 v{lg+w}, {t0}, v{lg+w}")
    for w in range(8): a(f"v_exp_f32 v{lg+w}, v{lg+w}")
    for w in range(8): a(f"v_cvt_pk_bf16_f32 v{Kr(w)}, v{lg+w}, 0")
    for w in range(8): a(f"v_lshlrev_b32 v{Kr(w)+1}, 16, v{Kr(w)}")
    a(f"v_add_f32 v10, v{Kr(0)+1}, v{Kr(1)+1}")
    for w in range(2, 8): a(f"v_add_f32 v10, v10, v{Kr(w)+1}")
    a("v_fmac_f32 v10, v10, v11"); a("v_rcp_f32 v10, v10")
    a("s_waitcnt lgkmcnt(0)")
    ob = 192
    for w in range(8):
        for i in range(8):
            for q in range(2): a(d2(ob+2*i+q, Vr(w)+i, Kr(w)+q, w == 0))
        for q in range(2): a(d2(ob+16+q, Xr(w)+2*q, Kr(w)+1, w == 0))
    a("v_bfe_u32 v9, v5, 5, 2"); a(f"v_mul_u32_u24 v9, {Z_G}, v9"); a("v_lshrrev_b32 v11, 7, v5"); a("v_lshl_add_u32 v9, v11, 22, v9"); a(f"v_and_b32 v11, 1, {vG}"); a("v_lshl_add_u32 v9, v11, 10, v9"); a(f"v_lshl_add_u32 v9, {vN}, 4, v9")
    for i in range(18): a(f"v_mul_f32 v{ob+i}, v10, v{ob+i}")
    for i in range(9): a(f"v_cvt_pk_bf16_f32 v{ob+i}, v{ob+2*i}, v{ob+2*i+1}")
    E2 += sprinkle(LA, flat(ring_dma("x")) + flat(ring_dma("W7")) + zl(sZe), len(LA) // (Z0 + 8))
    a = E2.append
    a(f"s_add_u32 {t1}, {t1}, {8*BS}")
    a(f"s_bfe_u32 {t2}, {sH}, {(2 << 16) | 1}"); a(f"s_lshl_b32 {t2}, {t2}, 11"); a(f"s_add_u32 {t2}, {t2}, {t1}")
    a(f"s_and_b32 {t3}, {sH}, 1"); a(f"s_lshl_b32 {t3}, {t3}, 9"); a(f"s_add_u32 {t2}, {t2}, {t3}")
    a(f"buffer_store_dwordx4 v[{ob}:{ob+3}], v9, {srd(rWS)}, {t2} offen sc1"); a(f"buffer_store_dwordx4 v[{ob+4}:{ob+7}], v9, {srd(rWS)}, {t2} offen offset:256 sc1")
    a(f"s_bfe_u32 {t3}, {sH}, {(1 << 16) | 2}"); a(f"s_lshl_b32 {t3}, {t3}, 8"); a(f"s_add_u32 {t2}, {t1}, {t3}")
    a(f"s_and_b32 {t3}, {sH}, 3"); a(f"s_lshl2_add_u32 {t2}, {t3}, {t2}"); a(f"s_add_u32 {t2}, {t2}, {BS}")
    a(f"buffer_store_dword v{ob+8}, v9, {srd(rWS)}, {t2} offen sc1 ;@za")
    a(f"s_lshl2_add_u32 {t0}, {sRb}, {sCt}")
    a(f"s_lshl2_add_u32 {sPx}, {t0}, {sWave}"); a(f"s_mul_i32 {sPx}, {sPx}, {PX_S}"); a(f"s_add_u32 {sPx}, {sPx}, {WS_PX}")
    a(f"s_lshr_b32 {sFp}, {t0}, 1"); a(f"s_lshl_b32 {sFp}, {sFp}, 10"); a(f"s_and_b32 {t0}, {t0}, 1"); a(f"s_lshl_b32 {t0}, {t0}, 7"); a(f"s_add_u32 {sFp}, {sFp}, {t0}")
    a(f"s_lshl2_add_u32 {sFp}, {sWave}, {sFp}"); a(f"s_add_u32 {sFp}, {sFp}, {WS_FL + 640}")
    a(f"s_and_b32 {t0}, {sJ}, 1"); a(f"s_lshl_b32 {t0}, {t0}, 16"); a(f"v_add_u32 v7, {t0}, {vL16}"); a("v_xor_b32 v8, 0x10000, v7")
    a(f"v_cmp_gt_u32 vcc, 32, {vLane}"); a(f"v_mov_b32 v11, {OOB}"); a("v_mov_b32 v10, 0"); a(f"v_cndmask_b32 v11, v11, {vL16}, vcc")
    E2 += stamp(7)
    check("CK_ZB", ldB, "v12", 8, "")
    LATE = ["L_LATE:", "s_waitcnt vmcnt(0)", signal(sFz, 4), f"s_mov_b32 {sFz}, {OOB}", "s_branch CK_ZB", "CK_ZB_R:"] + zl(sZb) + [signal(sFz)]*3 + ["s_branch L_LATE_R"]
    a(f"s_cmp_lg_u32 {sZe}, {sZb}"); a("s_cbranch_scc1 L_LATE"); a("L_LATE_R:")
    E2 += stamp(8)
    accA = lambda t, a2: V(72 + 4*(2*t + a2)); accB = lambda t, a2: V(112 + 4*(2*t + a2)); accC = lambda t, a2: V(128 + 4*(2*t + a2))
    NWB = 8; Wb = lambda f: V(144 + 4*(f % NWB)); IN = lambda i: V(176 + 4*i); SUM = lambda t, a2: V(212 + 4*(2*t + a2))
    def wread(f):
        p = (3 + (f >> 4)) % 8
        return f"ds_read_b128 {Wb(f)(4)}, {'v8' if p >> 2 else 'v7'} offset:{(p & 3)*16384 + (f & 15)*1024} ;@f{f}"
    a("s_waitcnt vmcnt(@W7)"); a("s_barrier")
    for f in range(RA): a(wread(f))
    a("s_waitcnt vmcnt(@Z0) lgkmcnt(@f1)")
    t4 = Timeline()
    t4.add([mfma(accA(t, a2), Wb(5*k + t), Zf(k, a2), "0" if k == 0 else None) for k in range(37) for t in range(5) for a2 in range(2)])
    bB = t4.add([mfma(accB(t, a2), Wb(185 + 2*k + t), Zf(k, a2), "0" if k == 0 else None) for k in range(37) for t in range(2) for a2 in range(2)])
    bC = t4.add([mfma(accC(t, a2), Wb(259 + 2*k + t), Zf(k, a2), "0" if k == 0 else None) for k in range(37) for t in range(2) for a2 in range(2)])
    barpos = {c: 32*c - 2*RA - 3 for c in range(2, 21, 2)}
    for c, p in barpos.items():
        if c >= 8: t4.force(p - 1, [f"s_waitcnt vmcnt(@W{min(c + 1, 20)})"])
        t4.force(p, ["s_barrier"], lock=True)
    ldA = f"buffer_load_dword v12, v10, {srd(rWS)}, {sFc} offen offset:4 sc1"
    ZS = opt("zs", 5); zpos = lambda i: min(ZS*(i - Z0) + 2, 5*i - opt("zl", 50))
    g = t4.put("s_waitcnt vmcnt(@za)", opt("zaw", 50)); t4.put(signal(sFz, 4), g + 1)
    gA = put_check(t4, "CK_ZAA", ldA, "v12", 8, "fa", 5*64 - 110, 5*64 - 64)
    g = 0
    for i in range(Z0, 74):
        s_, l_ = zload(i); lo = max(g + 4, zpos(i), gA + 1 if i >= 64 else 0)
        if s_: lo = t4.put(s_, max(g + 1, lo - 1)) + 1
        g = t4.put(l_, lo)
        assert g < 10*(i >> 1) - 20, (i, g)
    for c, chs in {2: [8], 4: [9], 6: [10, 11], 8: [12, 13], 10: [14, 15], 12: [16, 17], 14: [18, 19], 16: [20]}.items():
        g = put_dmas(t4, [ring_dma(f"W{x}", x == 20) for x in chs], barpos[c] + 3, barpos[c] + 58)
        assert g <= barpos[c + 2], (c, g)
    def send(d): return [f"s_add_u32 {t0}, {sKq}, {d}", f"s_and_b32 {t0}, {t0}, 3", f"s_mul_i32 {t0}, {t0}, 6144"], [f"s_add_u32 {t0}, {t0}, {sPx}", f"s_add_u32 {t0}, {t0}, {(d - 1)*2048}"]
    st = lambda blk, sr, off, tag: f"buffer_store_dwordx4 {blk(4)}, {vL16}, {srd(rWS)}, {sr} offen offset:{off} sc1 ;@{tag}"
    ld = lambda blk, sr, off, tag: f"buffer_load_dwordx4 {blk(4)}, {vL16}, {srd(rWS)}, {sr} offen offset:{off} sc1 ;@{tag}"
    deferred = []
    g = bB + 6
    for d in (1, 2):
        g = t4.seq(list(send(d)), g)
        for a2 in range(2):
            g0 = g; g = t4.put(st(accA(2*d - 2, a2), t0, a2*1024, "p1"), g + 6) + 1; deferred.append((pack(accA(2*d - 2, a2), accA(2*d - 2, a2), accA(2*d - 1, a2)), bB + 7, g - 1))
    g = t4.seq([[f"s_sub_u32 {t0}, {sWave}, {sKq}", f"s_and_b32 {t0}, {t0}, 3", f"s_lshl_b32 {t1}, {t0}, 10"], [f"s_add_u32 {t1}, {t1}, {sPx}", f"s_add_u32 {t1}, {t1}, {24576 - 1024}", f"s_add_u32 {sO9}, {sPx}, 24576"],
                [f"s_cmp_eq_u32 {t0}, 0", f"s_cselect_b32 {t1}, {OOB}, {t1}", f"s_cselect_b32 {sO9}, {sO9}, {OOB}"]], g)
    g = t4.put(st(V(228), t1, 0, "p1"), g + 3); deferred.append((pack(V(228), accA(4, 0), accA(4, 1)), bB + 7, g))
    g = t4.put("s_waitcnt vmcnt(@p1)", g + opt("pw1", 60)); g = t4.put(signal(sFp), g + 1)
    assert g < bC
    g = t4.seq(list(send(3)), bC - 4)
    for a2 in range(2):
        g = t4.put(st(accB(0, a2), t0, a2*1024, "p2"), max(g + 5, bC + 13)); deferred.append((pack(accB(0, a2), accB(0, a2), accB(1, a2)), bC + 7, g))
    ld1 = f"buffer_load_dword v12, v10, {srd(rWS)}, {sFp} offen sc1"
    g = put_check(t4, "CK_P1", ld1, "v12", 4, "g1", g + 1, g + opt("pw2", 40))
    g = t4.put(signal(sFp, 16), g + 1)
    g = t4.seq([[f"s_mul_i32 {t0}, {sKq}, 6144", f"s_add_u32 {t0}, {t0}, {sPx}", f"s_add_u32 {t1}, {t0}, 4096"]], g + 1)
    for i in range(7): g = t4.put(ld(IN(i), t0 if i < 4 else sO9, (i if i < 4 else i - 4)*1024, "in1"), g + 2)
    gin = g
    ld2 = f"buffer_load_dword v12, v10, {srd(rWS)}, {sFp} offen offset:16 sc1"
    t4.put(ld2, max(gin + 1, len(t4) - opt("pw3", 24)))
    rpos = {f: -99 for f in range(RA)}; g = 0
    for f in range(RA, 333):
        c = (f >> 4) & ~1
        lo = max(g, 2*f - 2*RA - 2, 2*(f - NWB) + 1, barpos[c] + 1 if c >= 8 else 0)
        g = rpos[f] = t4.put(wread(f), lo, 2*f - 5)
    for f in range(2, 333, 2): t4.put_back(f"s_waitcnt lgkmcnt(@f{min(f + 1, 332)})", 2*f - 1, max(rpos[min(f + 1, 332)] + 1, 0))
    for k in range(1, 37): t4.put_back(f"s_waitcnt vmcnt(@Z{k})", 10*k - 1, 10*k - 8)
    g = 0
    for ins, lo, hi in deferred: g = t4.seq(ins, max(lo, g), hi - 1)
    def unpack(src, d0, d1, first):
        o = []
        for q in range(4):
            d = (d0 if q < 2 else d1).b + 2*(q & 1); x = 16 + 2*q
            if first: o += [f"v_lshlrev_b32 v{d}, 16, v{src.b+q}", f"v_and_b32 v{d+1}, 0xffff0000, v{src.b+q}"]
            else: o += [f"v_lshlrev_b32 v{x}, 16, v{src.b+q}", f"v_and_b32 v{x+1}, 0xffff0000, v{src.b+q}", f"v_add_f32 v{d}, v{d}, v{x}", f"v_add_f32 v{d+1}, v{d+1}, v{x+1}"]
        return o
    up = [x for a2 in range(2) for x in unpack(IN(a2), SUM(0, a2), SUM(1, a2), True)] + [x for a2 in range(2) for x in unpack(IN(2 + a2), SUM(0, a2), SUM(1, a2), False)]
    up += [x for i in range(3) for x in unpack(IN(4 + i), accA(4, 0), accA(4, 1), False)]
    g = t4.put("s_waitcnt vmcnt(@in1)", min(gin + opt("pw4", 30), len(t4) - 2)) ; g0 = g
    while up:
        try: g = t4.put(up[0], g); up.pop(0)
        except RuntimeError: break
    note("P4: inbox wait at", g0 - bC, "of", len(t4) - bC, "; unpack ops left over:", len(up))
    if STAMPS:
        for q, p in enumerate((180, bB, bC, bC + 100)): t4.sl[p].va = t4.sl[p].va + stamp(11 + q)
    E2 += t4.lines()
    E2 += stamp(9)
    E2 += line_check("CK_P2", ld2, "v12", 4, "s_waitcnt vmcnt(0)")
    for a2 in range(2): a(ld(IN(7 + a2), t1, a2*1024, "in2"))
    E2 += up
    a(f"s_mul_i32 {t0}, {sGam}, {32*1152}"); a(f"s_mul_i32 {t1}, {sCt}, 288"); a(f"s_add_u32 {t0}, {t0}, {t1}")
    a(f"s_add_u32 {t2}, {t0}, 256"); a(f"s_cmp_eq_u32 {sWave}, {sKq}"); a(f"s_cselect_b32 {t2}, {t2}, {OOB}"); a(f"s_add_u32 {t3}, {t2}, {16*1152}")
    a(f"s_lshl_b32 {t1}, {sKq}, 6"); a(f"s_add_u32 {t0}, {t0}, {t1}"); a(f"s_add_u32 {t1}, {t0}, {16*1152}")
    a(f"v_mul_u32_u24 v5, 1152, {vN}"); a(f"v_lshl_add_u32 v6, {vG}, 3, v5"); a(f"v_and_b32 v7, 1, {vG}"); a("v_lshl_add_u32 v5, v7, 5, v5"); a(f"v_lshrrev_b32 v7, 1, {vG}"); a("v_lshl_add_u32 v5, v7, 4, v5")
    E2 += pack(V(228), accA(4, 0), accA(4, 1))
    a(f"buffer_store_dwordx2 v[228:229], v6, {srd(rO)}, {t2} offen{OF}"); a(f"buffer_store_dwordx2 v[230:231], v6, {srd(rO)}, {t3} offen{OF}")
    for r in range(0, 16, 2): a(f"v_pk_add_f32 v[{212+r}:{213+r}], v[{212+r}:{213+r}], v[{128+r}:{129+r}]")
    a("s_waitcnt vmcnt(@in2)")
    for a2 in range(2):
        d = SUM(0, a2)
        E2 += unpack(IN(7 + a2), d, SUM(1, a2), False) + pack(d, d, SUM(1, a2)) + ["s_nop 1", f"v_permlane16_swap_b32 v{d.b}, v{d.b+2}", f"v_permlane16_swap_b32 v{d.b+1}, v{d.b+3}"]
        a(f"buffer_store_dwordx4 {d(4)}, v5, {srd(rO)}, {t1 if a2 else t0} offen{OF}")
    E2 += stamp_out(10)
    a("L_END:"); a("s_endpgm")
    sp = lambda x: "\n".join(x).split("\n")
    E = sp(E); E2 = resolve_waits(sp(E2))
    check_scc(pre); check_scc(E); check_scc(E2)
    code = pre + D + ED[0] + ED[1] + ED[2] + X1 + X2 + X4 + SE + X5 + Sg + ES[0] + ES[1] + ES[2] + X6 + E + E1 + SE2 + E2 + LATE + STUBS + SL[0] + SL[1]
    nr = EVT[1] - EVT[0] - 1
    traces = [pre + D + D + ED[0] + ED[1] + X1[:4] + D*nr + ED[0] + ED[2] + X1 + X2 + D + ED[0][:2] + X1 + X4 + SE + X5 + Sg + Sg + ES[0][:2] + X6 + E + E1 + E2,
              pre + X1 + X4 + SE + X5 + Sg + ES[0] + ES[1] + X6 + Sg*((nr + 1)//2) + ES[0] + ES[2] + X6 + Sg + ES[0][:2] + X6 + E + E1 + SE2 + E2,
              pre + X1 + X2 + D + ED[0][:2] + X1 + X4 + X6 + E + E1 + SE2 + E2]
    def splice(lines, nm, sl):
        i = lines.index(f"{nm}_R:"); iT, iA, iN, iE = (sl.index(f"{nm}_{c}:") for c in "TANE")
        return lines[:i] + sl[:iA] + sl[iN:iN+5] + sl[iT:iA] + sl[iN:iE] + sl[sl.index(f"{nm}_P:"):iA-9] + sl[iA:iN+5] + sl[iT:iA-9] + sl[iA:iN+7] + sl[iE:] + lines[i:]
    traces.append(X6 + splice(E, "SLOW1", SL[1]) + E1 + splice(SE2, "SLOW0", SL[0]) + E2)
    i = E2.index("L_LATE_R:"); traces.append(E2[:i] + LATE + E2[i:])
    return code, traces

if __name__ == "__main__":
    path = [x for x in sys.argv[1:] if not x.startswith("--")]
    path = path[0] if path else "gated_mix__sliding_local_dilated__compressed_kv_cla__prompt.s"
    code, traces = build()
    bad = sorted(set(p.split("] ", 1)[1] for t in traces for p in verify(t, "k")))
    for p in bad[:40]: print(p)
    out = ["; gated mix: local dilated attention + compressed-KV causal attention, one persistent launch (generated by gen/gen3.py)",
           f"; @launch grid=(256,1,1) block=(256,1,1) lds={LDS_BYTES}", HEADER] + kernel_open(NAME) + [l.split(" ;@")[0] for l in code]
    out += ['.section .rodata,"a"', ".p2align 6", kernel_desc(NAME)]
    open(path, "w").write("\n".join(out) + "\n")
    print("hazard problems:", len(bad), "lines:", len(code))
```

```python
import sys, math, struct, os
sys.path.insert(0, "gen")
from asmlib import *

NAME = "gated_mix__sliding_local_dilated__compressed_kv_cla__prompt_kernel"
def f2u(x): return struct.unpack("<I", struct.pack("<f", x))[0]
OPT = dict(kv.split("=") if "=" in kv else (kv, "1") for kv in os.environ.get("XP", "").split(",") if kv)
def opt(k, d): return int(OPT.get(k, d))
STAMPS = "--stamps" in sys.argv
def note(*a): print(*a, file=sys.stderr)

BS = opt('bs', 24576)
RS = 2 * BS
WS_Z  = 64 << 20
Z_Q = 11 * BS; Z_G = 2 * Z_Q
WS_WO = 128 << 20
WO_S = 43 * BS
WS_WA = 144 << 20
WA_S = 9 * BS
WS_QA = 152 << 20
WS_FL = 160 << 20
WS_PX = 161 << 20
PX_S = 28672
SC = opt("sc", 0)
WS_SIZE = 268435456
OOB = 0x7FFF0000
NEG = 0xF149F2CA
LDS_BYTES = 163840
CB = 65536
RING = 10
UX = opt('ux', 31)
LOG2E = math.log2(math.e)

sWave, sH, sJ, sSlot, sX = "s3", "s4", "s5", "s6", "s7"
rC, rX, rWkv, rWq, rWS, rU1, rWOB, rG, rD, rO, rWO = 8, 12, 16, 20, 24, 28, 32, 36, 40, 44, 48
def srd(r): return f"s[{r}:{r+3}]"
_s = [52]
def S_(n=1):
    if n == 2 and _s[0] & 1: _s[0] += 1
    r = _s[0]; _s[0] += n; assert _s[0] <= 96, "out of sgprs"; return f"s{r}" if n == 1 else r
t0, t1, t2, t3 = S_(), S_(), S_(), S_()
sTri = [S_(2) for _ in range(4)]
sT, sT2, sGs, sGl = S_(), S_(), S_(), S_()
sCb, sCb2, sCk, sCc, sCc2, sCl = S_(), S_(), S_(), S_(), S_(), S_()
sWb, sWk, sWc, sWl = S_(), S_(), S_(), S_()
sAb, sAc, sAl = S_(), S_(), S_()
sU1b, sU1s, sU1g, sSigA, sPerm0, sPerm1 = S_(), S_(), S_(), S_(), S_(), S_()
sKst, sVst, sFH, sSig, sScale, sSpin, sR2, sSide, sHb = S_(), S_(), S_(), S_(), S_(), S_(), S_(), S_(), S_()
sR1 = sCb2
sKg, sKl, sLastP, sN, sCnt, sBo, sDone, sSE, sEvT, sWst, sW4 = sCb, sCk, sCc, sCc2, sWb, sWk, sWc, sCb2, sCl, sWl, sAl
sRB, sRA, sStg = sU1b, sU1s, sU1g
sKq, sRb, sCt = sSigA, sPerm0, sPerm1
sZs, sZl = sAb, sAc

vLane, vN, vG, vL16 = "v1", "v2", "v3", "v4"
vCe, vCo, vWe, vWo, vC0, vC1 = "v5", "v6", "v7", "v8", "v9", "v10"
vWp = ["v11", "v12", "v13", "v14"]
vOne = vLane
vSig = "v0"
TMP = 16

def stamp(i):
    if not STAMPS: return []
    return ["s_memrealtime s[98:99]", "s_memtime s[100:101]", "s_waitcnt lgkmcnt(0)", f"v_writelane_b32 v15, s98, {i}", f"v_writelane_b32 v15, s100, {16+i}"]
def stamp_out(i):
    if not STAMPS: return []
    return ["s_waitcnt vmcnt(0)"] + stamp(i) + ["s_lshl_b32 s96, s2, 2", f"s_add_u32 s96, s96, {sWave}", "s_lshl_b32 s96, s96, 8", "s_add_u32 s96, s96, 0xF000000",
            f"v_lshlrev_b32 v30, 2, {vLane}", f"buffer_store_dword v15, v30, {srd(rWS)}, s96 offen"]

STUBS = []
def check(name, load, reg, want, wait):
    STUBS.extend([f"{name}:", f"s_mov_b32 {sSpin}, 0", f"{name}_L:", "s_sleep 1", load.split(";")[0], f"s_add_u32 {sSpin}, {sSpin}, 1", "s_waitcnt vmcnt(0)",
                  f"v_cmp_gt_u32 vcc, {want}, {reg}", f"s_cmp_gt_u32 {sSpin}, 0x20000", f"s_cbranch_scc1 {name}_R", "s_nop 3", f"s_cbranch_vccnz {name}_L", f"s_branch {name}_R"])
    return [wait], [f"v_cmp_gt_u32 vcc, {want}, {reg}"], [f"s_cbranch_vccnz {name}\n{name}_R:"]
HELD = []
def hold(reg, lo, hi, share=False):
    for r, a_, b_, s_ in HELD: assert r != reg or hi < a_ or b_ < lo or (share and not s_ and False), ("scratch clash", reg, lo, hi, a_, b_)
    HELD.append((reg, lo, hi, share))
def put_check(tl, name, load, reg, want, tag, g_load, g_chk):
    g = g0 = tl.put(load + f" ;@{tag}", g_load)
    w, c, b = check(name, load, reg, want, f"s_waitcnt vmcnt(@{tag})")
    g = tl.put(w, max(g + 1, g_chk)); g = tl.put(c, g + 1); g = tl.put(b, g + 5, lock=True); hold(reg, g0, g); return g
def line_check(name, load, reg, want, wait):
    w, c, b = check(name, load, reg, want, wait)
    return w + c + ["s_nop 4"] + b
def signal(sreg, off=0): return f"buffer_atomic_add {vOne}, {vSig}, {srd(rWS)}, {sreg} offen offset:{off} sc1"
def pack(d, s0, s1): return [f"v_cvt_pk_bf16_f32 v{d.b}, v{s0.b}, v{s0.b+1}", f"v_cvt_pk_bf16_f32 v{d.b+1}, v{s0.b+2}, v{s0.b+3}",
                             f"v_cvt_pk_bf16_f32 v{d.b+2}, v{s1.b}, v{s1.b+1}", f"v_cvt_pk_bf16_f32 v{d.b+3}, v{s1.b+2}, v{s1.b+3}"]
def sprinkle(main, extra, every, start=0):
    groups = []; cur = []
    for x in extra:
        cur.append(x)
        if x.split("\n")[-1].startswith("buffer_"): groups.append(cur); cur = []
    if cur: groups[-1] += cur
    out = []
    for i, l in enumerate(main):
        if groups and i >= start and (i - start) % every == 0: out += groups.pop(0)
        out.append(l)
    for g in groups: out += g
    return out

def startup():
    L = []; a = L.append
    if STAMPS: a("s_memrealtime s[100:101]")
    a("s_cmp_ge_u32 s2, 256"); a("s_cbranch_scc1 L_END")
    for r, slot in ((rC, 4), (rWkv, 6), (52, 7), (rWS, 12), (rX, 0), (rWq, 5), (rU1, 1), (rWO, 2), (rWOB, 8), (rG, 9), (rD, 11), (rO, 10)):
        a(f"s_load_dwordx2 s[{r}:{r+1}], s[0:1], {slot*8}")
    a("s_getpc_b64 s[96:97]")
    a(f"s_lshr_b32 {sSlot}, s2, 3"); a(f"s_lshl_b32 s98, {sSlot}, 11")
    a("s_add_u32 s96, s96, s98"); a("s_addc_u32 s97, s97, 0")
    a("v_lshlrev_b32 v16, 3, v0"); a("v_mov_b32 v17, s97"); a("v_add_co_u32 v16, vcc, s96, v16")
    a("v_lshrrev_b32 v5, 6, v0"); a(f"v_and_b32 {vLane}, 63, v0")
    a("v_addc_co_u32 v17, vcc, 0, v17, vcc")
    a(f"v_readfirstlane_b32 {sWave}, v5")
    a("global_load_dwordx2 a[252:253], v[16:17], off")
    a(f"v_and_b32 {vN}, 15, v0"); a(f"v_lshrrev_b32 {vG}, 4, {vLane}"); a(f"v_lshlrev_b32 {vL16}, 4, {vLane}")
    a(f"s_and_b32 {sX}, s2, 7"); a(f"s_and_b32 {sT2}, {sSlot}, 3"); a(f"s_lshl2_add_u32 {sH}, {sX}, {sT2}")
    a(f"s_lshr_b32 {sJ}, {sSlot}, 2"); a(f"s_lshl2_add_u32 {sGs}, {sJ}, {sWave}"); a(f"s_sub_u32 {sGl}, 63, {sGs}")
    a(f"v_lshrrev_b32 v16, 3, {vLane}"); a(f"v_and_b32 v17, 7, {vLane}")
    a(f"v_xor_b32 v18, v17, {vG}"); a("v_lshlrev_b32 v19, 10, v16")
    a(f"v_lshl_add_u32 {vCe}, v18, 4, v19"); a("v_xor_b32 v18, 4, v18"); a(f"v_lshl_add_u32 {vCo}, v18, 4, v19"); a(f"v_add_u32 {vCo}, {8192 - 1024}, {vCo}")
    a(f"v_and_b32 v18, 1, {vG}"); a("v_lshlrev_b32 v18, 1, v18"); a("v_xor_b32 v18, v17, v18"); a("v_lshlrev_b32 v19, 13, v16")
    a(f"v_lshl_add_u32 {vWe}, v18, 4, v19"); a("v_xor_b32 v18, 4, v18"); a(f"v_lshl_add_u32 {vWo}, v18, 4, v19"); a(f"v_add_u32 {vWo}, {65536 - 1024}, {vWo}")
    for dst, w in ((sR1, opt("w1", 2)), (sR2, opt("w2", 2))):
        a(f"s_add_u32 {dst}, {sT2}, {sJ}"); a(f"s_and_b32 {dst}, {dst}, {w - 1}")
        a(f"s_mul_i32 {sT}, {sX}, {w}"); a(f"s_and_b32 {sT}, {sT}, 7"); a(f"s_or_b32 {dst}, {dst}, {sT}")
    a(f"s_lshl_b32 {sCk}, {sR1}, 7"); a(f"s_lshl_b32 {sWk}, {sR1}, 19")
    a(f"s_lshr_b32 {t2}, {sWave}, 1"); a(f"s_and_b32 {t3}, {sWave}, 1")
    a(f"s_lshl3_add_u32 {sKst}, {t2}, {sJ}"); a(f"s_lshl_b32 {sT}, {t3}, 5"); a(f"s_add_u32 {sCb}, {sKst}, {sT}"); a(f"s_lshl_b32 {sCb}, {sCb}, 15")
    a(f"s_lshl_b32 {sCl}, {sWave}, 13"); a(f"s_add_u32 {sCl}, {sCl}, {CB}")
    a(f"s_lshl1_add_u32 {sWb}, {sH}, {t3}"); a(f"s_lshl_b32 {sWb}, {sWb}, 7"); a(f"s_lshl_b32 {sWl}, {sWave}, 12")
    a(f"s_add_u32 {sCc}, {sCb}, {sCk}"); a(f"s_add_u32 {sWc}, {sWb}, {sWk}")
    for r, size in ((rC, 2048*512*2), (rWkv, 512*4096*2)):
        a(f"s_mov_b32 s{r+2}, {size}"); a(f"s_mov_b32 s{r+3}, 0x20000")
    a(f"s_cmp_lt_u32 {sWave}, 2")
    a("s_waitcnt lgkmcnt(0)")
    a(f"s_cselect_b32 s{rWkv}, s{rWkv}, s52"); a(f"s_cselect_b32 s{rWkv+1}, s{rWkv+1}, s53")
    return L

KS = 32 * 8192
FL = [' sc1', '', ' nt']
OF = FL[opt('fo', 0)]
P2ORD = list(range(8)); P2ORD.insert(opt("p2l", 8), 8)
def dma2(ve, vo, rs, lds_s, lds_imm, g_s, g_imm, tag):
    return ([f"s_add_u32 m0, {lds_s}, {lds_imm}", f"s_add_u32 {sT}, {g_s}, {g_imm}"],
            [f"buffer_load_dwordx4 {ve}, {srd(rs)}, {sT} offen lds ;@{tag}", f"buffer_load_dwordx4 {vo}, {srd(rs)}, {sT} offen offset:1024 lds ;@{tag}"])
def act_dma(st, half):
    lo = (st % 3) * 32768 + half * 4096
    if st < 8: d = [dma2(vCe, vCo, rC, sCl, lo + q*2048, sCc, half*16*32768 + q*16384, f"c{st}") for q in range(2)]
    else: d = [dma2(vCe, vCo, rX, sCl, lo + q*2048, sCc2 if half else sCc, q*16*1152, f"c{st}") for q in range(2)]
    pre = []
    if half == 0 and 0 < st < 8:
        pre = [[f"s_xor_b32 {sCc}, {sCk}, {st*128}", f"s_add_u32 {sCc}, {sCb}, {sCc}"]]
    if half == 0 and st == 8:
        pre = [[f"s_lshl_b32 {sCk}, {sR2}, 7", f"s_mul_i32 {sCb}, {sGs}, {32*1152}", f"s_mul_i32 {sCb2}, {sGl}, {32*1152}"],
               [f"v_lshrrev_b32 v{TMP+15}, 3, {vLane}", f"v_lshl_add_u32 {vCe}, v{TMP+15}, 7, {vCe}"],
               [f"v_lshl_add_u32 {vCo}, v{TMP+15}, 7, {vCo}", f"v_add_u32 {vCo}, 1024, {vCo}"]]
    if half == 0 and st >= 8:
        i = P2ORD[st - 8]
        pre += [[f"s_xor_b32 {sT2}, {sCk}, {i*128}" if i < 8 else f"s_mov_b32 {sT2}, 1024", f"s_add_u32 {sCc}, {sCb}, {sT2}", f"s_add_u32 {sCc2}, {sCb2}, {sT2}"]]
    return pre, d
def wt_dma(t):
    lo = (t & 3) * 16384; pre = []
    if t < 16:
        if t and t % 2 == 0: pre = [[f"s_xor_b32 {sWc}, {sWk}, {t*KS}", f"s_add_u32 {sWc}, {sWb}, {sWc}"]]
        return pre, [dma2(vWe, vWo, rWkv, sWl, lo + q*2048, sWc, (t & 1)*KS + q*131072, f"w{t}") for q in range(2)]
    if t == 16:
        pre = [[f"s_lshr_b32 {sT2}, {sWave}, 1", f"s_lshl_b32 {sWk}, {sT2}, 17", f"s_add_u32 {sWb}, {sWb}, {sWk}"],
               [f"s_lshl_b32 {sT2}, {sT2}, 11", f"s_and_b32 {sWl}, {sWl}, 4096", f"s_add_u32 {sWl}, {sWl}, {sT2}"]]
    if t % 2 == 0:
        i = P2ORD[(t - 16) >> 1]
        pre += [[f"s_xor_b32 {sWk}, {sR2}, {i}" if i < 8 else f"s_mov_b32 {sWk}, 8", f"s_lshl_b32 {sWc}, {sWk}, 19", f"s_add_u32 {sWc}, {sWc}, {sWb}"],
                [f"s_mul_i32 {sAc}, {sWk}, {BS}", f"s_add_u32 {sAc}, {sAc}, {sAb}"]]
    return pre, [dma2(vWe, vWo, rWq, sWl, lo, sWc, (t & 1)*KS, f"w{t}"),
                 ([f"s_add_u32 m0, {sAl}, {lo}", f"s_add_u32 {sT}, {sAc}, {(t & 1)*4096}"], [f"buffer_load_dwordx4 {vL16}, {srd(rWS)}, {sT} offen sc1 lds ;@w{t}"])]
def rec_dma(n):
    src = [f"s_add_u32 {sT}, {sKg}, {(n + 1)*RS}"]
    if n < 0: src = [f"s_cmp_lt_u32 {sWave}, 2", f"s_cselect_b32 {sT}, {sKg}, {OOB}"]
    if n > 4: src += [f"s_cmp_ge_u32 {sWave}, {n - 4}", f"s_cselect_b32 {sT}, {sT}, {OOB}"]
    return [], [([f"s_add_u32 m0, {sKl}, {((n + 3) % RING)*16384}"] + src,
                 [f"buffer_load_dwordx4 {vL16}, {srd(rWS)}, {sT} offen offset:{q*1024} sc1 lds ;@r{n+1}" for q in range(4)])]
def wrap(r, lo): return [f"s_add_u32 {r}, {r}, 16384", f"s_cmp_ge_u32 {r}, {RING*16384}", f"s_cselect_b32 {r}, {lo}, {r}"]
def ring_dma(tag, last=False):
    return ([[f"s_mov_b32 m0, {sKl}", f"s_mov_b32 {sT}, {sKg}", f"s_add_u32 {sKg}, {sKg}, {RS}"]],
            [([f"s_cmp_lt_u32 {sWave}, 3", f"s_cselect_b32 {sKg}, {sT}, {OOB}"] if last else wrap(sKl, sW4),
              [f"buffer_load_dwordx4 {vL16}, {srd(rWS)}, {sKg if last and q else sT} offen offset:{q*1024} sc1 lds ;@{tag}" for q in range(4)])])
def zgrp(dst, gam, add): return [f"s_lshr_b32 {dst}, {gam}, 2", f"s_lshl_b32 {dst}, {dst}, 22", f"s_add_u32 {dst}, {dst}, {add}", f"s_and_b32 {sT2}, {gam}, 3", f"s_mul_i32 {sT2}, {sT2}, {Z_G}", f"s_add_u32 {dst}, {dst}, {sT2}"]
def zq(dst): return [f"s_bfe_u32 {dst}, {sH}, {(1 << 16) | 3}", f"s_mul_i32 {dst}, {dst}, {Z_Q}", f"s_add_u32 {dst}, {dst}, {sSide}", f"s_add_u32 {dst}, {dst}, {WS_Z}"]
def flat(pd):
    pre, d = pd; o = []
    for p in pre: o += p
    for s_, x in d: o += s_ + x
    return o
def put_dmas(tl, groups, lo, hi):
    n = sum(len(x) for _, d in groups for _, x in d)
    if not n: return lo
    step = (hi - lo) / n; k = 0; g = lo - 1
    for pre, d in groups:
        for p in pre: g = tl.put(p, g)
        for s_, x in d:
            g = tl.put(s_, max(g, int(lo + k*step) - 2))
            for ins in x:
                g = tl.put(ins, max(g + 1, int(lo + k*step))); k += 1
            g += 1
    return g

def build():
    L = startup(); a = L.append
    if STAMPS: a("v_writelane_b32 v15, s100, 15")
    L += stamp(0)
    L += flat(act_dma(0, 0)) + flat(wt_dma(0)) + flat(act_dma(0, 1))
    for r, size in ((rWS, WS_SIZE), (rX, 2048*576*2), (rWq, 576*4096*2), (rU1, 576*1728*2), (rWOB, 4096*576*2), (rG, 1152), (rD, 256), (rO, 2048*576*2), (rWO, 576*576*2)):
        a(f"s_mov_b32 s{r+2}, {size}"); a(f"s_mov_b32 s{r+3}, 0x20000")
    a(f"s_lshl_b32 {sFH}, {sH}, 10"); a(f"s_add_u32 {sFH}, {sFH}, {WS_FL}")
    a(f"s_lshr_b32 {sSide}, {sH}, 4"); a(f"s_xor_b32 {sSide}, {sSide}, {SC}"); a(f"s_lshl_b32 {sSide}, {sSide}, 13")
    a(f"s_and_b32 {sHb}, {sH}, 15"); a(f"s_lshl_b32 {sHb}, {sHb}, 22"); a(f"s_add_u32 {sHb}, {sHb}, {sSide}")
    a(f"s_cmp_eq_u32 {sGs}, 0"); a(f"s_cselect_b32 {t0}, {sFH}, {OOB}")
    a(f"s_lshl_b32 {t1}, {sJ}, 10"); a(f"s_add_u32 {t1}, {t1}, {sHb}"); a(f"s_add_u32 {t1}, {t1}, {64*RS}"); a(f"s_cmp_eq_u32 {sWave}, 1"); a(f"s_cselect_b32 {t0}, {t1}, {t0}")
    a(f"s_bfe_u32 {t1}, s2, {(1 << 16) | 1}"); a(f"s_xor_b32 {t1}, {t1}, {SC}"); a(f"s_lshl3_add_u32 {t1}, {t1}, {t3}"); a(f"s_lshl_b32 {t1}, {t1}, 10")
    a(f"s_and_b32 {sT}, s2, 1"); a(f"s_mul_i32 {sT}, {sT}, {Z_Q}"); a(f"s_add_u32 {t1}, {t1}, {sT}"); a(f"s_add_u32 {t1}, {t1}, {WS_Z + 9*BS}")
    a(f"s_lshr_b32 {sAc}, s2, 2"); L.extend(zgrp(sT, sAc, t1)); a(f"s_cmp_ge_u32 {sWave}, {2 if opt('zx', 1) else 4}"); a(f"s_cselect_b32 {t0}, {sT}, {t0}")
    for q in range(4): a(f"v_mov_b32 v{16+q}, 0")
    a(f"buffer_store_dwordx4 v[16:19], {vL16}, {srd(rWS)}, {t0} offen sc1 ;@zero")
    a(f"s_add_u32 {sFH}, {sFH}, 512")
    a(f"s_cmp_eq_u32 {sWave}, 0"); a(f"s_cselect_b32 {sSig}, {sFH}, {OOB}")
    a(f"v_mov_b32 v24, {OOB}"); a(f"v_cmp_eq_u32 vcc, 1, {vLane}")
    a(f"s_lshl_b32 {t0}, {t2}, 7"); a(f"s_lshl_b32 {t1}, {t3}, 12")
    a(f"v_cndmask_b32 {vSig}, v24, 0, vcc")
    a(f"v_lshrrev_b32 v16, 1, {vN}"); a(f"v_xor_b32 v16, v16, {vG}"); a(f"v_add_u32 v17, {t0}, {vN}"); a("v_lshlrev_b32 v17, 7, v17"); a(f"v_add_u32 v17, {CB}, v17")
    a(f"v_lshl_add_u32 {vC0}, v16, 4, v17"); a(f"v_xor_b32 {vC1}, 64, {vC0}")
    a(f"v_bfe_u32 v16, {vLane}, 2, 2"); a(f"v_lshl_add_u32 v17, {vG}, 3, v16"); a("v_lshlrev_b32 v17, 7, v17"); a(f"v_and_b32 v18, 3, {vLane}")
    a("v_lshl_add_u32 v17, v18, 3, v17"); a(f"v_add_u32 v17, {t1}, v17"); a("v_lshrrev_b32 v16, 1, v16"); a(f"v_and_b32 v18, 1, {vG}"); a("v_lshl_add_u32 v16, v18, 1, v16")
    for p in range(4): a(f"v_xor_b32 v18, {p}, v16"); a(f"v_lshl_add_u32 {vWp[p]}, v18, 5, v17")
    a(f"s_mul_i32 {sKst}, {sKst}, {RS}"); a(f"s_add_u32 {sKst}, {sKst}, {sHb}")
    a(f"s_add_u32 {sVst}, {sKst}, {t1}"); a(f"s_add_u32 {sVst}, {sVst}, {RS + BS}"); a(f"s_lshr_b32 {t1}, {t1}, 1"); a(f"s_add_u32 {sKst}, {sKst}, {t1}")
    a(f"s_lshl_b32 {sAl}, {sWave}, 10"); a(f"s_bfe_u32 {sT}, {sH}, {(1 << 16) | 3}"); a(f"s_lshl_b32 {sT}, {sT}, 22"); a(f"s_add_u32 {sT}, {sT}, {sSide}"); a(f"s_add_u32 {sT}, {sT}, {WS_WA}")
    a(f"s_and_b32 {sAb}, {sH}, 7"); a(f"s_mul_i32 {sAb}, {sAb}, {WA_S}"); a(f"s_add_u32 {sAb}, {sAb}, {sAl}"); a(f"s_add_u32 {sAb}, {sAb}, {sT}"); a(f"s_add_u32 {sAl}, {sAl}, 8192")
    a(f"s_mov_b32 {sScale}, {f2u(LOG2E / math.sqrt(128.0)):#x}")
    a(f"s_mov_b32 {sPerm0}, 0x05040100"); a(f"s_mov_b32 {sPerm1}, 0x07060302")
    a(f"s_lshl2_add_u32 {t0}, {sX}, {sWave}")
    a(f"s_xor_b32 {sSpin}, {sSlot}, {UX}")
    a(f"s_mul_i32 {sU1b}, {sSpin}, {32*3456}"); a(f"s_mul_i32 {sT2}, {t0}, 36"); a(f"s_add_u32 {sU1b}, {sU1b}, {sT2}")
    a(f"s_and_b32 {sU1s}, {t0}, 7"); a(f"s_mul_i32 {sU1s}, {sU1s}, {WA_S}"); a(f"s_add_u32 {sU1s}, {sU1s}, {sT}")
    a(f"s_lshr_b32 {sT}, {sSpin}, 1"); a(f"s_and_b32 {sT2}, {sSpin}, 1"); a(f"s_mul_i32 {sT}, {sT}, {BS // 4096}"); a(f"s_add_u32 {sT}, {sT}, {sT2}"); a(f"s_lshl_b32 {sT}, {sT}, 12"); a(f"s_add_u32 {sU1s}, {sU1s}, {sT}")
    a(f"s_lshl_b32 {sU1g}, {sSpin}, 6")
    a(f"s_lshl_b32 {sSigA}, {t0}, 10"); a(f"s_add_u32 {sSigA}, {sSigA}, {WS_FL + 512}")
    a(f"s_cmp_lt_u32 {sSpin}, 18"); a(f"s_cselect_b32 {sU1s}, {sU1s}, {OOB}"); a(f"s_cselect_b32 {sSigA}, {sSigA}, {OOB}")
    a(f"v_lshrrev_b32 v18, 2, {vN}"); a(f"v_and_b32 v19, 3, {vN}")
    a("v_mul_u32_u24 v20, 1152, v18"); a("v_cmp_eq_u32 vcc, 2, v19"); a("v_lshl_add_u32 v20, v19, 3, v20"); a("v_add_u32 v21, 1, v19")
    a("v_cndmask_b32 v21, v21, 0, vcc")
    a("v_cmp_eq_u32 vcc, 3, v18"); a("v_mul_u32_u24 v21, 1152, v21"); a("v_add_u32 v21, 32, v21"); a("v_cndmask_b32 v20, v20, v21, vcc")
    a(f"v_cmp_eq_u32 vcc, 15, {vN}"); a(f"v_mul_u32_u24 v21, {8*3456}, {vG}"); a("v_add_u32 v20, v20, v21")
    a(f"v_lshlrev_b32 v21, 4, {vG}"); a("v_cndmask_b32 v26, v20, v24, vcc"); a("v_cndmask_b32 v27, v24, v21, vcc")
    a(f"v_and_b32 v18, 7, {vLane}"); a(f"v_cmp_gt_u32 vcc, 48, {vLane}"); a("v_mul_u32_u24 v18, 3456, v18"); a(f"v_mul_u32_u24 v19, 1152, {vG}"); a(f"v_bfe_u32 v20, {vLane}, 3, 1")
    a("v_mul_u32_u24 v20, 140, v20"); a("v_add3_u32 v18, v18, v19, v20"); a("v_cndmask_b32 v28, v24, v18, vcc")
    L += flat(wt_dma(1)) + flat(act_dma(1, 0))

    VB = [V(32 + 4*i) for i in range(56)]
    accV = lambda rt, d: VB[((rt >> 1)*4 + d)*2 + (rt & 1)]
    def accK(rt, d):
        i = rt*4 + d
        return VB[32 + i] if i < 24 else A(4*(i - 24))
    fC = lambda b, i: A(64 + 64*b + 4*i)
    fW = lambda b, i: A(96 + 64*b + 4*i)
    set0 = [fW(0, 4+i) for i in range(4)] + [fW(1, 4+i) for i in range(4)] + [fC(b, i) for i in range(4) for b in range(2)]
    set1 = [fW(0, i) for i in range(4)] + [fW(1, i) for i in range(4)] + [fC(b, 4+i) for i in range(4) for b in range(2)]
    fX2 = lambda b, i: (set1 if b else set0)[i]
    fW2 = lambda b, i: (set1 if b else set0)[4 + i]
    def reads(t):
        b = t & 1; vc = vC1 if b else vC0; wi = (t & 3)*16384; R_ = []
        tr = lambda r, p, o: [f"ds_read_b64_tr_b16 {r(2)}, {vWp[p]} offset:{o}", f"ds_read_b64_tr_b16 {r(2,2)}, {vWp[p]} offset:{o + 512}"]
        if t < 16:
            for i in range(0, 8, 2): R_.append([f"ds_read_b128 {fC(b,i+q)(4)}, {vc} offset:{(i+q)*2048}" for q in range(2)])
            for i in (4, 5, 6, 7, 0, 1, 2, 3): R_.append(tr(fW(b, i), i & 3, wi + (i >> 2)*8192))
        else:
            for i in range(0, 4, 2): R_.append([f"ds_read_b128 {fX2(b,i+q)(4)}, {vc} offset:{(i+q)*2048}" for q in range(2)])
            for i in range(8): R_.append(tr(fW2(b, i), i & 3, wi + (i >> 2)*4096))
            for i in range(0, 4, 2): R_.append([f"ds_read_b128 {fW2(b,8+i+q)(4)}, {vL16} offset:{wi + 8192 + (i+q)*1024}" for q in range(2)])
        return R_
    mK = lambda t, rt, d: mfma(accK(rt, d), fW(t & 1, d), fC(t & 1, rt), "0" if t == 0 else None)
    mV = lambda t, rt, d: mfma(accV(rt, d), fC(t & 1, rt), fW(t & 1, 4 + d), "0" if t == 0 else None)

    a("s_waitcnt vmcnt(@c0,@w0,@zero)"); a("s_barrier")
    for r in reads(0): L += r
    a(f"s_lshl_b32 {t0}, {sH}, 2"); a(f"s_cmp_eq_u32 {sGs}, 0"); a(f"s_cselect_b32 {t0}, {t0}, {OOB}")
    a(f"buffer_store_dword {vOne}, {vSig}, {srd(rD)}, {t0} offen sc1")
    a("s_waitcnt lgkmcnt(0)")
    L += stamp(1)

    tl = Timeline(); base = {}
    for t in range(14):
        M = []
        for rt in range(8):
            for i in (range(8) if rt % 2 == 0 else range(7, -1, -1)): M.append(mK(t, rt, i) if i < 4 else mV(t, rt, i - 4))
        base[t] = tl.add(M)
    vord = [(2*n1 + u, d) for n1 in range(4) for d in range(4) for u in range(2)]
    base[14] = tl.add([mV(14, rt, d) for rt, d in vord] + [mV(15, rt, d) for rt, d in vord])
    base[15] = tl.add([mK(t, rt, d) for rt in range(8) for d in range(4) for t in (14, 15)])
    order2 = [(aa, i) for i in range(12) for aa in (range(4) if i % 2 == 0 else range(3, -1, -1))]
    qord = [(aa, i) for aa in range(4) for i in range(8)]
    sched2 = {t: [(t, k) for k in order2] for t in range(16, 32)}
    sched2[32] = [(32, k) for k in qord[:24]] + [(33, k) for k in qord[:24]]
    sched2[33] = [(t, k) for k in qord[24:] for t in (32, 33)] + [(t, (aa, 8 + T)) for aa in range(4) for T in range(4) for t in (32, 33)]
    for t in range(16, 34): base[t] = tl.add(["?"] * 48)
    fin = {k: base[t] + i for t in (32, 33) for i, (tt, k) in enumerate(sched2[t]) if tt == 33}
    bQs = tl.add(["?"] * 16); bQl = tl.add(["?"] * 16)
    kof = lambda g: max(t for t in base if base[t] <= g)

    KVSIG = opt("kvsig", 9); RPF = opt("rpf", 14)
    catch = {0: [act_dma(1, 1), wt_dma(2), wt_dma(3)], 1: [act_dma(2, 0), wt_dma(4), act_dma(2, 1)], 2: [wt_dma(5), act_dma(3, 0), wt_dma(6)], 3: [act_dma(3, 1), wt_dma(7), act_dma(4, 0)]}
    recs = {16 + RPF + i: i - 1 for i in range(18 - RPF)}
    STG = {29: range(0, 3), 30: range(3, 6)} if opt("stg2", 0) else {29: range(6)}
    for t in range(34):
        b = base[t]; n = (base[t+1] if t < 33 else bQs) - b
        tags = [f"@w{t+1}", f"@c{(t+1) >> 1}"] if t < 33 else ["@r0"]
        if t == 16 + KVSIG: tags.append("@kvA")
        tl.force(b, [f"s_waitcnt vmcnt({','.join(tags)})"]); tl.force(b + 1, ["s_barrier"], lock=True)
        wpos = {14: 31, 32: 23}.get(t, n - 1)
        tl.force(b + wpos, ["s_waitcnt lgkmcnt(0)"])
        if t in (14, 32): tl.seq(reads(t + 1), b + 2, b + wpos - 7, step=1)
        if t in catch: grp = catch[t]
        else:
            grp = []
            if t + 4 < 34: grp.append(wt_dma(t + 4))
            st, hf = (t + 5) >> 1, 1 - (t & 1)
            if st < 17: grp.append(act_dma(st, hf))
            if t in STG: grp.append(([], [([f"s_add_u32 m0, {sStg}, {i*1024}", f"s_add_u32 {sT}, {sRB if i < 5 else sRA}, {[0, 9216, 18432, 27648, 128, 0][i]}"],
                                               [f"buffer_load_dwordx4 {'v22' if i < 4 else 'v24' if i < 5 else 'v25'}, {srd(rWOB if i < 5 else rWO)}, {sT} offen lds ;@stg"]) for i in STG[t]]))
            if t in recs:
                if recs[t] == -1: grp.append(([[f"s_lshl_b32 {sKl}, {sWave}, 12", f"s_and_b32 {sKg}, {sKl}, 8192", f"s_mul_i32 {sKg}, {sKg}, {BS // 8192 - 1}"], [f"s_add_u32 {sKg}, {sKg}, {sKl}", f"s_add_u32 {sKg}, {sKg}, {sHb}"]], []))
                grp.append(rec_dma(recs[t]))
        put_dmas(tl, grp, b + (16 if t in (14, 32) else 4), b + n - 2)
        if t == 15:
            g = tl.seq([f"s_lshr_b32 {t3}, {sWave}, 1", f"s_lshl_b32 {t3}, {t3}, 14", f"s_lshl_b32 {t2}, {sWave}, 13", f"s_sub_u32 {t3}, {t2}, {t3}", f"s_and_b32 {t2}, {sWave}, 1", f"s_lshl_b32 {t2}, {t2}, 12"], base[14] + 26)
            g = tl.seq([f"v_add_u32 {vC0}, {t3}, {vC0}", f"v_add_u32 {vC1}, {t3}, {vC1}"] + [f"v_subrev_u32 {p}, {t2}, {p}" for p in vWp], g + 1, b)
            R_ = reads(16); g = tl.seq(R_[:6], b + 2, step=2)
            for k, r in enumerate(R_[6:]): g = tl.put(r, max(g + 1, b + 8*((k//2 if k < 4 else k - 2) + 1)))
            assert g < b + n - 8
        elif t not in (14, 32, 33):
            RM = opt("rm", 2)
            if RM == 0: tl.seq(reads(t + 1), b + 2, b + n - 9, step=2)
            else:
                fl = [x for r in reads(t + 1) for x in r]; bb = [x for x in fl if "b128" in x]; tt = [x for x in fl if "b128" not in x]
                if RM == 1: items = [x for i in range(8) for x in (bb[i], tt[2*i], tt[2*i+1])]
                else: items = [x for i in range(8) for x in (bb[i], [tt[2*i], tt[2*i+1]])]
                span = n - 2 - opt("rt", 14); g = b + 1
                for i, it in enumerate(items): g = tl.put(it, max(g + 1, b + 2 + (i * span) // len(items) - (2 if n == 48 else 0)), b + n - 5)
        if t % 2 == 0 and t < 32:
            d = -65536 if (t >> 1) % 3 == 2 else 32768
            tl.put([f"v_add_u32 {vC0}, {d}, {vC0}", f"v_add_u32 {vC1}, {d}, {vC1}"], b + (25 if t == 14 else n - 8), b + (33 if t == 14 else n - 1))

    aU = 192; US = opt("ustep", 5)
    if opt("u1t", 3) >= 0:
        g = tl.seq([f"s_xor_b32 {t0}, {sSlot}, {UX}", f"s_mul_i32 {t0}, {t0}, {32*3456}", f"s_mul_i32 {t1}, {sWave}, {8*3456}", f"s_add_u32 {t0}, {t0}, {t1}", f"s_mul_i32 {t1}, {sX}, 144", f"s_add_u32 {t0}, {t0}, {t1}"], base[opt("u1t", 3)] + 2)
        tl.put(f"buffer_load_dword a252, v28, {srd(rU1)}, {t0} offen", g + 1)
    g = base[opt("u1", 5)] + 2
    for jj in range(8):
        g = tl.put(f"s_add_u32 {t0}, {sU1b}, {jj*3456}", g)
        g = tl.put(f"buffer_load_dwordx2 a[{aU+2*jj}:{aU+2*jj+1}], v26, {srd(rU1)}, {t0} offen", g + 1) + US
    g = tl.put(f"buffer_load_dwordx4 a[{aU+16}:{aU+19}], v27, {srd(rG)}, {sU1g} offen ;@u1", g)
    g = tl.put("s_waitcnt vmcnt(@u1)", g + opt("u1w", 40))
    for hp in range(2):
        g = tl.seq([f"v_accvgpr_read_b32 v{16+jj}, a{aU+2*jj+hp}" for jj in range(8)], g + 1)
        g = tl.seq([f"v_perm_b32 v{24+4*e+q}, v{17+2*q}, v{16+2*q}, {sPerm1 if e else sPerm0}" for e in range(2) for q in range(4)], g + 2)
        if hp == 0: g = tl.seq([f"v_accvgpr_read_b32 v{16+q}, a{aU+16+q}" for q in range(4)] + [f"v_or_b32 v{24+q}, v{24+q}, v{16+q}" for q in range(4)], g)
        for e in range(2): g = tl.put(f"buffer_store_dwordx4 v[{24+4*e}:{27+4*e}], {vL16}, {srd(rWS)}, {sU1s} offen offset:{(2*hp+e)*1024}{FL[opt('fwa', 0)]}", g + 1 + e*US)
    hold("v30", base[opt("u1", 5)], g + 2)
    g = tl.seq([f"s_lshl_b32 {t0}, {sX}, 4", f"v_and_b32 v22, 3, {vLane}", f"v_lshl_add_u32 v22, v22, 2, {t0}"], g + 1)
    g = put_check(tl, "CK_Z", f"buffer_load_dword v23, v22, {srd(rD)}, 0 offen sc1", "v23", 1, "ckz", g + 1, g + 50)
    g = tl.put(signal(sSigA), g + 1)
    note("WA signal at k-step", kof(g))
    g = tl.seq([f"s_mul_i32 {t0}, {sGs}, {18*8192}", f"s_lshl_b32 {t1}, {sH}, 8", f"s_add_u32 {t0}, {t0}, {t1}", f"s_lshl2_add_u32 {t1}, s2, {sWave}", f"s_mul_i32 {t1}, {t1}, 2304",
                f"v_lshrrev_b32 v16, 1, {vLane}", f"v_and_b32 v17, 1, {vLane}", "v_lshlrev_b32 v16, 13, v16", "v_lshl_add_u32 v16, v17, 7, v16", f"v_mov_b32 v17, {OOB}",
                f"v_cmp_gt_u32 s[96:97], 18, {vLane}", f"v_lshlrev_b32 v18, 7, {vLane}", "v_mov_b32 v29, 0"], g + 1)
    g = tl.seq(["v_cndmask_b32 v16, v17, v16, s[96:97]", "v_cndmask_b32 v18, v17, v18, s[96:97]"], g + 2)
    pft = [opt("pf0", 8), opt("pf1", 9), opt("pf2", 10)]
    g = tl.put(f"buffer_load_dword a253, v18, {srd(rX)}, {t1} offen", max(g + 1, base[pft[0]] + 2))
    g = tl.put(f"buffer_load_dword a252, v16, {srd(rWq)}, {t0} offen", max(g + 1, base[pft[1]] + 2))
    g = tl.put(f"s_add_u32 {t0}, {t0}, {9*8192}", g + 1)
    g = tl.put(f"buffer_load_dword a252, v16, {srd(rWq)}, {t0} offen", max(g + 1, base[pft[2]] + 2))
    if opt("pf3", 12) >= 0:
        g = tl.seq([f"s_lshr_b32 {t0}, s2, 1", f"s_lshl2_add_u32 {t0}, {t0}, {sWave}", f"s_mul_i32 {t0}, {t0}, {8*1152}", f"s_and_b32 {t1}, s2, 1", f"s_lshl_b32 {t1}, {t1}, 9", f"s_add_u32 {t0}, {t0}, {t1}",
                    f"s_lshl2_add_u32 {t1}, s2, {sWave}", f"s_mul_i32 {t1}, {t1}, 768",
                    f"v_cmp_gt_u32 s[96:97], 40, {vLane}", f"v_and_b32 v16, 7, {vLane}", "v_mul_u32_u24 v16, 1152, v16", f"v_lshrrev_b32 v19, 3, {vLane}", "v_lshl_add_u32 v16, v19, 7, v16",
                    "v_cndmask_b32 v16, v17, v16, s[96:97]", f"v_cmp_gt_u32 s[96:97], 6, {vLane}"], g + 1)
        g = tl.put("v_cndmask_b32 v18, v17, v18, s[96:97]", g + 2)
        g = tl.put(f"buffer_load_dword a252, v16, {srd(rWOB)}, {t0} offen", max(g + 1, base[opt("pf3", 12)] + 2))
        g = tl.put(f"buffer_load_dword a253, v18, {srd(rWO)}, {t1} offen", g + 1)
    if opt("pfo", 0):
        g = tl.seq([f"s_lshl2_add_u32 {t1}, s2, {sWave}", f"s_mul_i32 {t1}, {t1}, 2304", f"v_cmp_gt_u32 s[96:97], 18, {vLane}", f"v_lshlrev_b32 v18, 7, {vLane}"], g + 1)
        g = tl.put("v_cndmask_b32 v18, v17, v18, s[96:97]", g + 2)
        g = tl.put(f"buffer_load_dword a253, v18, {srd(rO)}, {t1} offen", max(g + 1, base[opt("pfo", 0)] + 2))
    assert g < base[14], (g, base)
    g = put_check(tl, "CK_WA", f"buffer_load_dword v30, v29, {srd(rWS)}, {sFH} offen sc1", "v30", 18, "ckwa", base[opt("cwa", 10)] + 40, base[11] + 50)
    assert g < base[12] + 2, (g, base)

    NA = opt("na", 2)
    vfr = [("V", f) for f in range(16)]; kfr = [("K", f) for f in range(16)]
    sord = vfr[:4*NA] + kfr[:4*NA] + vfr[4*NA:] + kfr[4*NA:]
    S1, S2, SW = opt("s1", 27), opt("s2", 27), opt("sw", 13)
    spos = {}; g = base[14] + 46
    for k, fr in enumerate(sord):
        off = (fr[1] >> 2)*16*RS + ((fr[1] & 3)*1024 if fr[0] == "V" else ((fr[1] >> 1) & 1)*4096 + (fr[1] & 1)*1024)
        gg = tl.put(f"s_add_u32 {t1}, {sVst if fr[0] == 'V' else sKst}, {off & ~4095}", g)
        gg = tl.put(f"buffer_store_dwordx4 %{fr[0]}{fr[1]}%, {vL16}, {srd(rWS)}, {t1} offen offset:{off & 4095}{FL[opt('fkv', 0)]}", gg + 1)
        spos[fr] = gg; g = max(gg + 1, g + (S1 if gg < base[16 + SW] else S2))
        if opt("nb", 0):
            NB, PER = opt("nb", 0), opt("per", 2)
            g = gg + opt("bsp", 8) if (k + 1) % NB else base[14 + ((k + 1) // NB) * PER + opt("sb", 0)] + 2
    note("kv stores: part A ends at P2 k-step", kof(spos[sord[8*NA-1]]) - 16, ", last at", kof(spos[sord[-1]]) - 16)
    assert spos[sord[8*NA-1]] < base[16 + KVSIG] - 30 and spos[sord[-1]] < bQs
    where = {}; freeV = []
    g = 0
    for f in range(16):
        g = tl.seq(pack(VB[2*f], VB[2*f], VB[2*f+1]), max(g, base[14] + 33 + 2*f + 7))
        assert g < spos[("V", f)]
        where[("V", f)] = VB[2*f]; freeV.append((g, VB[2*f+1]))
    for f in range(12):
        x0, x1 = accK(f >> 1, 2*(f & 1)), accK(f >> 1, 2*(f & 1) + 1)
        g = tl.seq([f"v_mul_f32 v{x.b+q}, {sScale}, v{x.b+q}" for x in (x0, x1) for q in range(4)] + pack(x0, x0, x1), max(g, base[15] + 4*f + 10))
        assert g < spos[("K", f)], (f, g, spos)
        where[("K", f)] = x0; freeV.append((g, x1))
    freeA = []
    for f in range(12, 16):
        x0 = accK(f >> 1, 2*(f & 1)); y0, y1 = V(TMP), V(TMP + 4)
        g = tl.seq([f"v_accvgpr_read_b32 v{TMP+q}, a{x0.b+q}" for q in range(8)] + [f"v_mul_f32 v{TMP+q}, {sScale}, v{TMP+q}" for q in range(8)] + pack(y0, y0, y1)
                   + [f"v_accvgpr_write_b32 a{x0.b+q}, v{TMP+q}" for q in range(4)], g)
        assert g < spos[("K", f)]
        where[("K", f)] = x0; freeA.append((g, x0 + 4))
    gpk = g
    PARK = base[16 + opt("park", 11)]
    topark = [fr for fr in reversed(sord) if where[fr].p == "v" and spos[fr] > PARK]
    for fr in sord:
        if where[fr].p == "v" and fr not in topark: freeV.append((spos[fr] + 1, where[fr]))
    freeV.sort(key=lambda x: x[0])
    spareA = [A(32 + 4*i) for i in range(8)] + [A(192 + 4*i) for i in range(15)]
    loc = {}
    for i, key in enumerate(order2):
        if i < len(spareA): loc[key] = spareA[i]
        else:
            tf, blk = freeV.pop(0); assert tf < base[16] + i, ("no free block", i, tf - base[16]); loc[key] = blk
    migr = {}; g = gpk; pend = list(order2[:len(spareA)])
    while pend or topark:
        if topark and freeA:
            fr = topark.pop(0); ta, ab = freeA.pop(0); src = where[fr]
            g = tl.seq([f"v_accvgpr_write_b32 a{ab.b+q}, v{src.b+q}" for q in range(4)], max(g, ta))
            assert g < spos[fr]
            where[fr] = ab; freeV.append((g, src)); freeV.sort(key=lambda x: x[0])
            continue
        key = pend.pop(0); tf, blk = freeV.pop(0); i = order2.index(key)
        lo = max(g, tf + 1); tm = 16
        while base[tm] + i + 30 < lo: tm += 1
        assert tm < 31, "migration too late"
        g = tl.seq([f"v_accvgpr_read_b32 v{blk.b+q}, a{loc[key].b+q}" for q in range(4)], max(lo, base[tm] + i + 8))
        assert g < base[tm + 1] + i - 2, (key, tm, g)
        migr[key] = (tm, blk)
        if loc[key].b < 64: freeA.append((g, loc[key]))
    gmig = g
    note("migrations end at P2 k-step", kof(g) - 16)
    assert len(freeV) == 8
    spareV = [b_ for _, b_ in freeV]; gspare = max(t_ for t_, _ in freeV)
    for t_ in tl.sl: t_.mem = [re.sub(r"%([VK])(\d+)%", lambda m: where[(m.group(1), int(m.group(2)))](4), x) for x in t_.mem]
    loc_at = lambda key, t: migr[key][1] if key in migr and t > migr[key][0] else loc[key]
    for t in range(16, 34):
        for i, (tt, (aa, c)) in enumerate(sched2[t]): tl.sl[base[t] + i].mf = mfma(loc_at((aa, c), tt), fW2(tt & 1, c), fX2(tt & 1, aa), "0" if tt == 16 else None)
    acc2 = lambda aa, i: loc_at((aa, i), 99)

    Q = lambda aa, s: acc2(aa, 2*s)
    Cb = lambda G, u, a2: spareV[4*G + 2*u + a2]
    Sb = lambda b, ch: acc2(b, 2*ch + 1)
    Pb = lambda b, a2: acc2(2, 2*(2*b + a2) + 1)
    Ol = [acc2(aa, 8 + T) for aa in range(4) for T in range(4)]
    XV = [acc2(3, 2*s + 1) for s in range(4)]
    def O(aa, dt): return A(4*(aa*8 + dt)) if aa < 2 else Ol[(aa - 2)*8 + dt]
    Kf = lambda u, s: A(192 + 4*(u*4 + s))
    Vf = lambda dt: A(64 + 4*dt)
    Ls = lambda aa: A(224 + 4*aa)
    ONE = A(240)
    sreg = lambda b, e: Sb(b, e >> 2).b + (e & 3)
    vB, vNEG, vOmg = "v5", "v6", 8
    qk = lambda G, b: [mfma(Sb(b, 2*u + a2), Kf(u, s), Q(2*G + a2, s), Cb(G, u, a2) if s == 0 else None) for u in range(2) for a2 in range(2) for s in range(4)]
    def pv(G, b, c=None): return [mfma(O(2*G + a2, dt), Vf(dt), Pb(b, a2), c) for dt in range(8) for a2 in range(2)] + [mfma(Ls(2*G + a2), ONE, Pb(b, a2), c) for a2 in range(2)]
    ex = lambda b, e: f"v_exp_f32 v{sreg(b,e)}, v{sreg(b,e)}"
    cv = lambda b, i: f"v_cvt_pk_bf16_f32 v{Pb(b, (i>>1)&1).b + 2*(i>>2) + (i&1)}, v{sreg(b,2*i)}, v{sreg(b,2*i+1)}"
    for i, m in enumerate(qk(0, 0) + qk(1, 1)): tl.sl[bQs + i].mf = m

    tl.put(signal(sSig, 4), base[16 + KVSIG] + 2)
    g = tl.seq([f"v_and_b32 v28, 31, {vLane}", "v_lshlrev_b32 v28, 2, v28"], gpk + 1)
    g = put_check(tl, "CK_ZA", f"buffer_load_dword v30, v28, {srd(rD)}, 0 offen sc1", "v30", 1, "ckza", g + 1, g + 40)
    g = put_check(tl, "CK_KV", f"buffer_load_dword v30, v29, {srd(rWS)}, {sFH} offen offset:4 sc1", "v30", 8, "ckkv", max(g + 1, base[16 + opt("ckl", 11)] + 4), base[15 + RPF] + 34)
    assert g < base[16 + RPF] + 2
    m96 = "s[96:97]"; K1 = opt("k1", 16); ZR = opt("zr", 1)
    sal = [f"s_lshr_b32 {sKq}, {sX}, 1", f"s_and_b32 {sRb}, {sX}, 1", f"s_xor_b32 {t0}, {sJ}, {opt('jx', 7)}", f"s_lshl1_add_u32 {sRb}, {t0}, {sRb}", f"s_and_b32 {sCt}, {sSlot}, 3",
           f"s_lshl_b32 {sStg}, {sWave}, 13", f"s_add_u32 {sStg}, {sStg}, 131072",
           f"s_mul_i32 {t0}, s2, 5462", f"s_lshr_b32 {t0}, {t0}, 16", f"s_mul_i32 {t2}, {t0}, 12", f"s_sub_u32 {t2}, s2, {t2}", f"s_mul_i32 {t2}, {t2}, 3", f"s_add_u32 {t2}, {t2}, {sWave}",
           f"s_mul_i32 {t3}, {t0}, 13108", f"s_lshr_b32 {t3}, {t3}, 16", f"s_mul_i32 {sRA}, {t3}, 5", f"s_sub_u32 {t0}, {t0}, {sRA}"]
    g = tl.seq(sal, gmig + 1)
    val = [f"v_lshrrev_b32 v16, 1, {vLane}", f"v_and_b32 v17, 1, {vLane}", "v_mul_u32_u24 v18, 1152, v16", "v_lshl_add_u32 v18, v17, 4, v18", "v_mov_b32 v24, v18",
           "v_lshrrev_b32 v18, 4, v16", "v_bfe_u32 v19, v16, 2, 2", "v_and_b32 v16, 3, v16",
           "v_lshrrev_b32 v20, 1, v19", "v_mul_u32_u24 v20, 18, v20", "v_and_b32 v21, 1, v19", "v_lshl_add_u32 v20, v21, 1, v20", "v_lshl_add_u32 v20, v16, 2, v20", "v_add_u32 v20, v20, v18",
           f"v_mad_u32_u24 v20, {t0}, 36, v20",
           "v_lshlrev_b32 v21, 1, v18", "v_lshl_add_u32 v21, v19, 2, v21", "v_lshrrev_b32 v22, 1, v16", "v_add_u32 v21, v21, v22", "v_mul_u32_u24 v21, 18, v21",
           "v_and_b32 v22, 1, v16", "v_add3_u32 v21, v21, v22, 16", f"v_cmp_lt_u32 {m96}, 1, v19", "v_mov_b32 v22, 0x100000", "v_mul_u32_u24 v23, 1, v23"]
    g = tl.seq(val, g + 1)
    g = tl.seq([f"v_cndmask_b32 v21, v21, v22, {m96}", f"v_mov_b32 v22, {t0}", f"v_cmp_eq_u32 {m96}, 4, v22"], g + 1)
    g = tl.seq([f"v_cndmask_b32 v20, v20, v21, {m96}", "v_mul_u32_u24 v20, 1152, v20", "v_lshl_add_u32 v20, v17, 4, v20", "v_mov_b32 v25, v20",
                f"v_mov_b32 v16, {t2}", f"v_mov_b32 v17, {t3}", f"v_add_u32 v18, 32, v22"], g + 2)
    g = tl.seq([f"s_mul_i32 {sRA}, {t3}, {144*1152}", f"s_lshl_b32 {t2}, {t2}, 5", f"s_add_u32 {sRA}, {sRA}, {t2}",
                f"s_and_b32 {t0}, s2, 1", f"s_lshr_b32 {t2}, {sWave}, 1", f"s_lshl1_add_u32 {t0}, {t0}, {t2}", f"s_mul_i32 {t0}, {t0}, 9", f"s_and_b32 {t2}, {sWave}, 1", f"s_mul_i32 {t3}, {t2}, 5",
                f"s_add_u32 {t0}, {t0}, {t3}", f"s_lshr_b32 {t3}, s2, 1", f"s_mul_i32 {sRB}, {t3}, 1152", f"s_add_u32 {sRB}, {sRB}, {t0}", f"s_lshl_b32 {sRB}, {sRB}, 5"], g + 1)
    g = tl.seq([f"v_cmp_gt_u32 {m96}, 5, {vLane}", f"v_add_u32 v19, {t0}, {vLane}", f"v_lshrrev_b32 v20, 5, {t3}", f"v_and_b32 v21, 31, {t3}"], g + 1)
    g = tl.seq([f"v_cndmask_b32 v16, v16, v19, {m96}", f"v_cndmask_b32 v17, v17, v20, {m96}", f"v_cndmask_b32 v18, v18, v21, {m96}",
                "v_mul_u32_u24 v19, 7282, v16", "v_lshrrev_b32 v19, 16, v19", "v_mul_u32_u24 v20, 9, v19", "v_sub_u32 v16, v16, v20",
                f"v_and_b32 v20, {ZR}, v19", "v_lshlrev_b32 v20, 2, v20", f"v_cndmask_b32 v20, 0, v20, {m96}", "v_xor_b32 v18, v18, v20",
                "v_lshlrev_b32 v19, 22, v19", "v_and_b32 v20, 1, v17", f"v_mul_u32_u24 v20, {WO_S}, v20", "v_lshrrev_b32 v21, 1, v17", f"v_xor_b32 v21, {SC}, v21", "v_lshlrev_b32 v21, 13, v21", "v_add3_u32 v19, v19, v20, v21",
                "v_lshrrev_b32 v20, 1, v16", "v_sub_u32 v20, v20, v17", "v_add_u32 v20, 3, v20", "v_and_b32 v20, 3, v20",
                f"v_cmp_eq_u32 {m96}, 8, v16", "v_and_b32 v16, 1, v16", "v_lshlrev_b32 v21, 1, v20", "v_lshlrev_b32 v22, 1, v18", f"v_min_u32 v23, {K1}, v18"], g + 1)
    g = tl.seq(["v_add_u32 v21, 1, v21", f"v_cndmask_b32 v21, v21, 0, {m96}", f"v_cndmask_b32 v20, v20, 0, {m96}", "v_mad_u32_u24 v21, v18, 5, v21", "v_lshl_add_u32 v21, v23, 1, v21",
                "v_mad_u32_u24 v22, v20, 37, v22", "v_mad_u32_u24 v22, v20, 37, v22", "v_lshl_add_u32 v20, v20, 6, v18", f"v_mov_b32 v23, {128 + K1}", f"v_cmp_gt_u32 {m96}, v23, v20", "v_add_u32 v22, 37, v22", f"v_add_u32 v19, {WS_WO}, v19"], g + 1)
    g = tl.seq([f"v_cndmask_b32 v21, v22, v21, {m96}", "v_add_u32 v21, v21, v16", "v_and_b32 v22, -8, v21", f"v_mad_u32_u24 v21, v22, {BS // 8192 - 1}, v21", "v_lshl_add_u32 v19, v21, 10, v19"], g + 1)
    g = tl.seq([[f"s_cmp_eq_u32 {t2}, 1", f"s_cselect_b32 s96, 16, 0"], [f"s_cmp_eq_u32 {sWave}, 3", f"s_cselect_b32 {t0}, 32, 0"], f"s_or_b32 s96, s96, {t0}", [f"s_cmp_ge_u32 s2, 240", f"s_cselect_b32 {t0}, 32, 0"],
                f"s_or_b32 s96, s96, {t0}", "s_mov_b32 s97, 0"], g + 1)
    g = tl.seq([f"v_mov_b32 v20, {OOB}", f"v_cndmask_b32 v26, v19, v20, {m96}", f"v_lshlrev_b32 v27, 3, {vLane}", f"v_add_u32 v27, {sStg}, v27",
                f"v_lshrrev_b32 v22, 3, {vLane}", "v_mul_u32_u24 v22, 1152, v22", f"v_and_b32 v23, 7, {vLane}", "v_lshl_add_u32 v22, v23, 4, v22",
                f"v_lshrrev_b32 v23, 2, {vLane}", "v_mul_u32_u24 v23, 96, v23", "v_add_u32 v23, v23, v27"], g + 1)
    assert g < base[29], kof(g)
    g = tl.seq([f"v_mov_b32 v16, 0x3f803f80"] + [f"v_accvgpr_write_b32 a{ONE.b+q}, v16" for q in range(4)] + [f"v_accvgpr_write_b32 a{Ls(2).b+q}, 0" for q in range(8)]
               + [f"v_lshlrev_b32 v16, 2, {vG}", f"v_sub_u32 v16, {vN}, v16"] + [f"v_cmp_gt_i32 s[{sTri[r]}:{sTri[r]+1}], {r}, v16" for r in range(4)]
               + [f"v_cmp_eq_u32 {m96}, 3, {vG}", f"v_add_u32 v17, 48, {vN}", "v_lshlrev_b32 v17, 2, v17", f"v_lshlrev_b32 v18, 16, {vG}", f"v_lshl_add_u32 v18, {vN}, 4, v18", "v_add_u32 v19, 0x8000, v18",
                  f"v_cndmask_b32 v19, v19, v20, {m96}"], g + 1)
    g = tl.seq([f"v_mov_b32 v{Cb(G,u,a2).b+r}, 0" for G in range(2) for u in range(2) for a2 in range(2) for r in range(4)], max(g, gspare + 2))
    g = tl.put(f"v_mov_b32 {vNEG}, {NEG:#x}", max(g, base[30]))
    def diag(G):
        o = []
        for r in range(4):
            for u in range(2): o.append(f"v_cndmask_b32 v{Cb(G,u,u).b+r}, v{Cb(G,u,u).b+r}, {vNEG}, s[{sTri[r]}:{sTri[r]+1}]")
            o.append(f"v_mov_b32 v{Cb(G,1,0).b+r}, {vNEG}")
        return o
    STUBS.extend(["D0:"] + diag(0) + ["s_branch D0_R"])
    g = tl.put([f"s_cmp_eq_u32 {sGs}, 0", "s_cbranch_scc1 D0\nD0_R:"], g + 1, lock=True)
    g = tl.seq([f"s_lshl_b32 {t0}, {sH}, 18", f"s_add_u32 {t0}, {t0}, {WS_QA}", f"s_lshl_b32 {t2}, {sGs}, 9", f"s_add_u32 {t2}, {t2}, {t0}", f"s_lshl_b32 {t3}, {sGl}, 9", f"s_add_u32 {t3}, {t3}, {t0}"], g + 1)
    note("P3 constants end at P2 k-step", kof(g) - 16)
    assert g < base[33] + 16
    g = tl.put("s_waitcnt vmcnt(@stg)", base[16 + opt("stw", 15)] + 3)
    g = tl.seq([[f"ds_read_b64_tr_b16 a[{192+4*i+2*q}:{193+4*i+2*q}], {'v23' if i < 4 else 'v27'} offset:{32*i + q*2048 if i < 4 else i*1024 + q*512}" for q in range(2)] for i in range(6)], g)
    dst = [sRB, sRA, sCc, sCc2, sWb, sWk]
    g = tl.seq([f"v_readlane_b32 {dst[i]}, v26, {i}" for i in range(6)], g)
    assert g < base[17 + opt("stw", 15)] - 6
    g = base[17 + opt("stw", 15)] - 3
    for i in range(6): g = tl.put(f"buffer_store_dwordx4 a[{192+4*i}:{195+4*i}], {vL16}, {srd(rWS)}, {dst[i]} offen sc1 ;@wo", g + opt("wsp", 5))
    note("w_o stores end at P2 k-step", kof(g) - 16)
    gwo = g
    g = 0
    for aa in range(4):
        for s in range(4): g = tl.seq(pack(Q(aa, s), acc2(aa, 2*s), acc2(aa, 2*s + 1)), max(g, fin[(aa, 2*s + 1)] + 7))
    assert g < bQs - 2
    tl.seq([f"ds_read_b128 {Kf(i>>2, i&3)(4)}, {vL16} offset:{2*16384 + i*1024}" for i in range(8)], max(base[33] + 2, gwo + 2), bQs - 8)
    g = 0
    for aa in range(4):
        ins = [f"ds_bpermute_b32 v{vOmg+aa}, v17, v{acc2(aa,8).b+3}"]
        for hf in range(2):
            d = acc2(aa, 8 + 2*hf)
            ins += pack(d, d, acc2(aa, 9 + 2*hf))
            ins.append(f"buffer_store_dwordx4 {d(4)}, v{18+hf}, {srd(rWS)}, {t2 if aa < 2 else t3} offen offset:{(aa & 1)*256}{FL[opt('fqa', 0)]} ;@qa")
        g = tl.seq(ins, max(g, fin[(aa, 11)] + 7))
    nrec = 18 - RPF - 1
    tl.force(bQl - 1, ["s_waitcnt vmcnt(@r1)"]); tl.force(bQl, ["s_barrier"])
    if STAMPS and opt("kst", 1):
        for t in range(2, 34):
            tl.force(base[t] + 2, ["s_memtime s[100:101]" if opt("kst", 1) == 1 else "s_memrealtime s[100:101]"])
            tl.force(base[t] + {14: 32, 32: 24}.get(t, (base[t+1] if t < 33 else bQs) - base[t]), [f"v_writelane_b32 v15, s100, {30 + t}"])
    L += tl.lines()
    L += stamp(2)
    for i in range(8): a(f"ds_read_b128 {Vf(i)(4)}, {vL16} offset:{3*16384 + 8192 + i*1024}")
    def maxsub(G, b):
        o = []; m = [TMP + 8 + 2*a2 for a2 in range(2)]
        rr = [[sreg(b, 4*(2*u + a2) + q) for u in range(2) for q in range(4)] for a2 in range(2)]
        for a2, r in enumerate(rr): o += [f"v_max3_f32 v{m[a2]}, v{r[0]}, v{r[1]}, v{r[2]}", f"v_max3_f32 v{m[a2]+1}, v{r[3]}, v{r[4]}, v{r[5]}"]
        for a2, r in enumerate(rr): o += [f"v_max3_f32 v{m[a2]}, v{m[a2]}, v{r[6]}, v{r[7]}", f"v_max_f32 v{m[a2]}, v{m[a2]}, v{m[a2]+1}"]
        for sw in ("v_permlane32_swap_b32", "v_permlane16_swap_b32"):
            o += [f"v_mov_b32 v{x+1}, v{x}" for x in m] + ["s_nop 1"] + [f"{sw} v{x+1}, v{x}" for x in m] + ["s_nop 0"] + [f"v_max_f32 v{x}, v{x}, v{x+1}" for x in m]
        o += [f"v_sub_f32 v{sreg(b,e)}, v{sreg(b,e)}, v{m[(e >> 2) & 1]}" for e in range(16)]
        c = [f"v_sub_f32 v{Cb(G,u,a2).b+r}, v{Cb(G,u,a2).b+r}, v{m[a2]}" for u in range(2) for a2 in range(2) for r in range(4)]
        return o, c
    rest = [x for n in range(nrec, 8) for x in flat(rec_dma(n))]
    o, c = maxsub(0, 0)
    body = o + c
    for e in range(16):
        body.append(ex(0, e))
        if e >= 3 and e % 2 == 1: body.append(cv(0, (e - 3) // 2))
    o, c = maxsub(1, 1)
    body += o[:1] + [cv(0, 7)] + o[1:] + c
    body += [f"v_mov_b32 v{blk.b+q}, 0" for blk in Ol for q in range(4)]
    L += sprinkle(body, rest, opt("spr", 8))
    for i in range(8): a(f"ds_read_b128 {Kf(i>>2, i&3)(4)}, {vL16} offset:{3*16384 + i*1024}")
    a("s_waitcnt lgkmcnt(8)")
    EVT = [opt("e0", 3), opt("e1", 8), opt("e2", 11)]
    tp = Timeline(); tp.add(pv(0, 0, "0"))
    items = []
    for e in range(13):
        items.append(ex(1, e))
        if e >= 3 and e % 4 == 3: items.append([cv(1, (e - 3) // 2), cv(1, (e - 3) // 2 + 1)])
    tp.seq(items, 0, step=1)
    a(f"s_and_b32 {sWst}, {sKq}, 1"); a(f"s_mul_i32 {sWst}, {sWst}, {WO_S}"); a(f"s_lshl_b32 {t0}, {sCt}, 22"); a(f"s_add_u32 {sWst}, {sWst}, {t0}")
    a(f"s_mov_b32 {sW4}, {sKl}"); a(f"s_cmp_lt_u32 {sWave}, 2"); a(f"s_cselect_b32 {t1}, 8, -2"); a(f"s_add_u32 {t1}, {t1}, {sWave}")
    tp.seq([f"s_mul_i32 {t0}, {sJ}, {4*RS}", f"s_sub_u32 {t0}, {65*RS}, {t0}", f"s_add_u32 {sLastP}, {sKg}, {t0}",
            f"s_and_b32 {t0}, {sKg}, 0xffff", f"s_add_u32 {sWst}, {sWst}, {t0}", f"s_add_u32 {sWst}, {sWst}, {WS_WO}",
            f"s_add_u32 {t0}, {sWave}, 6", f"s_mul_i32 {t0}, {t0}, {RS}", f"s_add_u32 {sKg}, {sKg}, {t0}", f"s_lshl_b32 {t1}, {t1}, 14", f"s_add_u32 {sKl}, {sKl}, {t1}",
            f"s_mov_b32 {sBo}, {4*16384}", f"s_mov_b32 {sN}, 1", f"s_mov_b32 {sEvT}, {EVT[0]}", f"s_lshl2_add_u32 {sSE}, {sJ}, 4", f"s_min_u32 {sCnt}, {sEvT}, {sGs}"], 0)
    tp.put([f"s_cmp_lt_u32 {sGs}, 2", "s_waitcnt vmcnt(@r3) lgkmcnt(0)"], 17)
    L += tp.lines()
    L += stamp(3)
    a("s_cbranch_scc1 L_NE")
    if "kill" in OPT:
        ks = OPT["kill"].split("+"); L = "\n".join(L).split("\n")
        for i, l in enumerate(L):
            c = ("kv" if "@kv" in l else "qa" if "@qa" in l else "wo" if "@wo" in l else "stg" if "@stg" in l else "pf" if l.startswith(("buffer_load_dword a252", "buffer_load_dword a253")) else
                 "u1" if l.startswith("buffer_load_dwordx2 a[") else "u1s" if sU1s + " offen offset" in l else "rec" if "@r" in l else None)
            if l.startswith("buffer_") and c in ks: L[i] = re.sub(r"s\[\d+:\d+\]", srd(rO), l)
            if l == f"s_mov_b32 s{rO+2}, {2048*576*2}": L[i] = f"s_mov_b32 s{rO+2}, 0"
        L.insert(-1, f"s_mov_b32 s{rO+2}, {2048*576*2}")
    pre = resolve_waits("\n".join(L).split("\n"))
    if "drop" in OPT:
        ks = OPT["drop"].split("+"); o = []; nb = 0
        for l in pre:
            if l == "s_barrier":
                nb += 1
                if ("bar" in ks and 1 < nb < 36) or ("bar2" in ks and 1 < nb < 36 and nb % 2): continue
            if "st" in ks and l.startswith("buffer_store_dwordx4") and nb > 1: l = "s_nop 0"
            if "va" in ks and l.startswith(("v_cvt", "v_mul_f32", "v_accvgpr", "v_perm")) and 1 < nb < 36: continue
            if "dma" in ks and " lds" in l and 1 < nb < 36: continue
            if "tr" in ks and l.startswith("ds_read") and 1 < nb < 36: continue
            o.append(l)
        pre = o

    KS_, KD_ = [6, 8, 8, 10, 14, 16, 16, 18], [6, 8, 10, 12, 14, 16, 18, 20]
    VP_ = {"S0": [22, 24, 24, 26, 30, 32, 32, 33], "S1": [22, 24, 24, 26, 28, 28, 30, 32], "D": [18, 22, 24, 26, 30, 32, 33, 34], "F0": [18, 22, 24, 26, 30, 32, 32, 33]}
    def half(mode, hb):
        sal, ds, va = {}, {}, {}
        add = lambda d, g, x: d.setdefault(g, []).append(x)
        newrec = mode != "D" or hb == 0
        if newrec: add(va, 2, f"v_add_u32 {vB}, {sBo}, {vL16}")
        for e in range(16): add(va, 7 + 2*e if e < 13 else 2*e - 25, ex(hb if e < 13 else 1 - hb, e))
        for i in range(8): add(va, 10 + 4*i if i < 6 else 4*i - 22, cv(hb if i < 6 else 1 - hb, i))
        KP, VP = (KD_, VP_["D"]) if mode == "D" else (KS_, VP_[mode + str(hb)])
        for i in range(8):
            if (newrec and VP[i] < 34) or (not newrec and VP[i] >= 34): add(ds, VP[i] % 34, f"ds_read_b128 {Vf(i)(4)}, {vB} offset:{8192 + i*1024}")
        if mode == "S" or (mode == "D" and hb == 1):
            for i in range(8): add(ds, KP[i], f"ds_read_b128 {Kf(i>>2,i&3)(4)}, {vB} offset:{i*1024}")
        nk, nv = sum(p < 15 for p in KP), sum(p < 31 for p in VP)
        setup = [f"s_cmp_eq_u32 {sKg}, {sLastP}", f"s_cselect_b32 {sT}, {sWst}, {sKg}", f"s_mov_b32 m0, {sKl}"]
        if hb == 0: add(sal, 0, "s_barrier")
        if newrec and mode != "F":
            if hb == 0:
                for g, x in zip((1, 2, 3), setup): add(sal, g, x)
            for q, g in enumerate([4, 12, 20, 28] if hb == 0 else [0, 4, 12, 20]): add(ds, g, f"buffer_load_dwordx4 {vL16}, {srd(rWS)}, {sT} offen offset:{q*1024} sc1 lds")
            for g, x in zip((5, 7, 9, 11, 13, 17, 19), wrap(sBo, 0) + [f"s_add_u32 {sKg}, {sT}, {RS}"] + wrap(sKl, sW4)): add(sal, g, x)
        if not newrec: add(sal, 4, "s_nop 0")
        if mode == "S" and hb == 0:
            for g, x in zip((27, 29, 33), setup): add(sal, g, x)
        if mode != "F" and hb == 1: add(sal, 21, f"s_add_u32 {sN}, {sN}, 1"); add(sal, 29, f"s_cmp_lt_u32 {sN}, {sCnt}")
        vw = "vmcnt(8) " if hb == 1 else ""
        if mode == "S": add(sal, 15, f"s_waitcnt lgkmcnt({nk})"); add(sal, 31, f"s_waitcnt {vw}lgkmcnt({nv})")
        if mode == "F": add(sal, 15, "s_waitcnt lgkmcnt(0)")
        if mode == "D" and hb == 1: add(sal, 15, f"s_waitcnt lgkmcnt({nk})"); add(sal, 31, f"s_waitcnt {vw}lgkmcnt(0)")
        return sal, ds, va
    def emit(mf, f):
        sal, ds, va = f
        return weave(mf, {g: sal.get(g, []) + ds.get(g, []) + va.get(g, []) for g in range(len(mf))})
    D = ["L_DUAL:"] + emit(qk(0, 0) + pv(1, 1), half("D", 0)) + emit(qk(1, 1) + pv(0, 0), half("D", 1)) + ["s_cbranch_scc1 L_DUAL"]
    Sg = ["L_SINGLE:"] + emit(qk(1, 0) + pv(1, 1), half("S", 0)) + emit(qk(1, 1) + pv(1, 0), half("S", 1)) + ["s_cbranch_scc1 L_SINGLE"]
    check_scc(D); check_scc(Sg)
    tb = [V(TMP), V(TMP + 4), V(TMP + 8), V(TMP + 12)]
    BIG = f2u(2.0 ** opt("big", 60))
    rdl = lambda G: [f"v_accvgpr_read_b32 v{XV[0].b+2*a2}, a{Ls(2*G+a2).b}" for a2 in range(2)]
    def slow(G, name):
        g_ = sGl if G else sGs; m = [16, 18]; o = [f"{name}:", f"v_add_u32 v20, 4096, {vL16}", f"s_mov_b32 {t2}, 0"]
        o += [f"v_mov_b32 v{x}, {vNEG}" for x in m]
        o += [f"{name}_P:", f"s_mov_b32 {t1}, 0", f"s_mov_b32 {t0}, {sHb}", f"{name}_T:", f"s_add_u32 {t3}, {t0}, {RS + BS}"]
        o += [f"buffer_load_dwordx4 {Kf(i>>2,i&3)(4)}, {'v20' if i > 3 else vL16}, {srd(rWS)}, {t0} offen offset:{(i&3)*1024} sc1" for i in range(8)]
        o += [f"buffer_load_dwordx4 {Vf(i)(4)}, {'v20' if i > 3 else vL16}, {srd(rWS)}, {t3} offen offset:{(i&3)*1024} sc1" for i in range(8)]
        o += ["s_waitcnt vmcnt(0)"] + [mfma(Sb(0, 2*u + a2), Kf(u, s_), Q(2*G + a2, s_), "0" if s_ == 0 else None) for u in range(2) for a2 in range(2) for s_ in range(4)]
        o += ["s_nop 7", f"s_cmp_lg_u32 {t1}, {g_}", f"s_cbranch_scc1 {name}_U"]
        for r in range(4):
            o += [f"v_cndmask_b32 v{Sb(0,3*u).b+r}, v{Sb(0,3*u).b+r}, {vNEG}, s[{sTri[r]}:{sTri[r]+1}]" for u in range(2)] + [f"v_mov_b32 v{Sb(0,2).b+r}, {vNEG}"]
        o += [f"{name}_U:", f"s_cmp_lg_u32 {t2}, 0", f"s_cbranch_scc1 {name}_A"]
        o += [f"v_max3_f32 v{m[(e>>2)&1]}, v{m[(e>>2)&1]}, v{sreg(0,e)}, v{sreg(0,e+1)}" for e in range(0, 16, 2)]
        o += [f"s_branch {name}_N", f"{name}_A:"]
        o += [f"v_sub_f32 v{sreg(0,e)}, v{sreg(0,e)}, v{m[(e>>2)&1]}" for e in range(16)] + [ex(0, e) for e in range(16)] + ["s_nop 0"] + [cv(0, i) for i in range(8)] + ["s_nop 1"] + pv(G, 0)
        o += [f"{name}_N:", f"s_add_u32 {t0}, {t0}, {RS}", f"s_add_u32 {t1}, {t1}, 1", f"s_cmp_le_u32 {t1}, {g_}", f"s_cbranch_scc1 {name}_T",
              f"s_cmp_lg_u32 {t2}, 0", f"s_cbranch_scc1 {name}_E"]
        for sw in ("v_permlane32_swap_b32", "v_permlane16_swap_b32"):
            o += [f"v_mov_b32 v{x+1}, v{x}" for x in m] + ["s_nop 1"] + [f"{sw} v{x+1}, v{x}" for x in m] + ["s_nop 1"] + [f"v_max_f32 v{x}, v{x}, v{x+1}" for x in m]
        for blk in [O(2*G + a2, dt) for a2 in range(2) for dt in range(8)] + [Ls(2*G), Ls(2*G + 1)]:
            o += [(f"v_mov_b32 v{blk.b+q}, 0" if blk.p == "v" else f"v_accvgpr_write_b32 a{blk.b+q}, 0") for q in range(4)]
        o += [f"s_mov_b32 {t2}, 1", f"s_branch {name}_P", f"{name}_E:", "s_nop 7"] + rdl(G) + [f"s_branch {name}_R"]
        return o
    def epilogue(G, bad, ret=None):
        sc = XV[0].b
        o = rdl(G) + [f"v_cmp_nle_f32 vcc, v{sc}, v7", f"v_cmp_nle_f32 s[96:97], v{sc+2}, v7", "s_nop 3", "s_or_b64 vcc, vcc, s[96:97]", f"s_cbranch_vccnz {bad}"] + ([f"{ret}:"] if ret else [])
        for a2 in range(2): o.append(f"v_mul_f32 v{vOmg+2*G+a2}, {f2u(LOG2E):#x}, v{vOmg+2*G+a2}")
        for a2 in range(2): o.append(f"v_exp_f32 v{vOmg+2*G+a2}, v{vOmg+2*G+a2}")
        o += ["s_nop 0"]
        for a2 in range(2): o.append(f"v_fma_f32 v{sc+2*a2}, v{sc+2*a2}, v{vOmg+2*G+a2}, v{sc+2*a2}")
        for a2 in range(2): o.append(f"v_rcp_f32 v{sc+2*a2}, v{sc+2*a2}")
        o += [f"s_add_u32 {t0}, {sZl if G else sZs}, 4096"]
        for a2 in range(2): o.append(f"v_mov_b32 v{sc+2*a2+1}, v{sc+2*a2}")
        k = 0
        for s in range(4):
            for a2 in range(2):
                aa = 2*G + a2; x0, x1 = O(aa, 2*s), O(aa, 2*s + 1)
                if x0.p == "a":
                    y0, y1 = tb[2*(k & 1)], tb[2*(k & 1) + 1]; k += 1
                    o += [f"v_accvgpr_read_b32 v{y.b+q}, a{x.b+q}" for x, y in ((x0, y0), (x1, y1)) for q in range(4)]
                    x0, x1 = y0, y1
                o += [f"v_pk_mul_f32 v[{x.b+q}:{x.b+q+1}], v[{x.b+q}:{x.b+q+1}], v[{sc+2*a2}:{sc+2*a2+1}]" for x in (x0, x1) for q in (0, 2)]
                o += pack(x0, x0, x1)
                o.append(f"buffer_store_dwordx4 {x0(4)}, {vL16}, {srd(rWS)}, {t0 if s > 1 else (sZl if G else sZs)} offen offset:{(s & 1)*2048 + a2*1024} sc1")
        return o
    SE = epilogue(0, "L_NS") + [f"s_mov_b32 {sDone}, 1"]
    SE2 = epilogue(0, "SLOW0", "SLOW0_R")
    SL = [slow(0, "SLOW0"), slow(1, "SLOW1")]
    vF, vFa = f"v{XV[1].b}", f"v{XV[1].b+1}"
    ldW = f"buffer_load_dword {vF}, {vFa}, {srd(rWS)}, 0 offen sc1"
    w, c, b = check("CK_Q", ldW, vF, 32, "s_waitcnt vmcnt(8)")
    X0 = ["L_DISP:", f"s_cmp_lg_u32 {sN}, {sEvT}", "s_cbranch_scc1 L_NE", f"s_cmp_eq_u32 {sN}, {EVT[2]}", "s_cbranch_scc1 L_E2", f"s_cmp_eq_u32 {sN}, {EVT[1]}", "s_cbranch_scc1 L_E1", f"s_cmp_lg_u32 {sN}, {EVT[0]}", "s_cbranch_scc1 L_NE"]
    EV = [["s_waitcnt vmcnt(8)", signal(sFH, 8), f"s_mov_b32 {sEvT}, {EVT[1]}", "s_branch L_NE"],
          ["L_E1:", f"v_and_b32 {vFa}, 31, {vLane}", f"v_lshlrev_b32 {vFa}, 10, {vFa}", f"v_add_u32 {vFa}, {WS_FL + 512 + 8}, {vFa}", ldW, f"s_mov_b32 {sEvT}, {EVT[2]}", "s_branch L_NE"],
          ["L_E2:"] + w + c + [f"s_mov_b32 {sEvT}, 32", "s_nop 3"] + b[0].split("\n")]
    assert EVT[0] >= 3 and EVT[2] - EVT[1] >= 2 and EVT[2] <= 13
    X1 = ["L_NE:", f"s_min_u32 {sCnt}, {sEvT}, {sGs}", f"s_cmp_lt_u32 {sN}, {sGs}", "s_cbranch_scc1 L_DUAL", f"s_cmp_gt_u32 {sN}, {sGs}", "s_cbranch_scc1 L_POST"]
    X2 = diag(0) + ["s_nop 0", "s_branch L_DUAL"]
    X3 = ["L_POST:", f"s_min_u32 {sCnt}, {sEvT}, {sSE}", f"s_cmp_lg_u32 {sN}, {sSE}", "s_cbranch_scc1 L_SINGLE"]
    X4 = ["L_SE:"] + stamp(4) + zq(t0) + [f"s_and_b32 {t1}, {sH}, 7", f"s_mul_i32 {t1}, {t1}, {BS}", f"s_add_u32 {t0}, {t0}, {t1}"] + zgrp(sZs, sGs, t0) + zgrp(sZl, sGl, t0) + [
          f"s_mov_b32 {sDone}, 0", f"v_mov_b32 v7, {BIG:#x}", f"s_mov_b32 {sSE}, 64"]
    X5 = ["L_NS:"] + stamp(11) + [f"s_mov_b32 {sCnt}, {sEvT}", f"s_cmp_eq_u32 {sN}, 32", "s_cbranch_scc1 L_FIN"]
    X6 = [f"s_cmp_lt_u32 {sN}, 32", "s_cbranch_scc1 L_DISP", f"s_cmp_eq_u32 {sSE}, 32", "s_cbranch_scc1 L_SE"]

    sFz, sFc, sZb, sPx, sFp, sRd = sCnt, sBo, sWst, sSE, sEvT, sScale
    E = ["L_FIN:"] + stamp(5) + diag(1); a = E.append
    E += [f"s_sub_u32 {sRd}, {sKl}, {sW4}", f"s_mov_b32 {sStg}, {sBo}"]
    E += [f"s_lshl_b32 {t1}, {sH}, 18", f"s_add_u32 {t1}, {t1}, {WS_QA}", f"s_lshl_b32 {t2}, {sGs}, 9", f"s_add_u32 {t2}, {t2}, {t1}", f"s_lshl_b32 {t3}, {sGl}, 9", f"s_add_u32 {t3}, {t3}, {t1}"]
    la = [([f"s_add_u32 m0, {sStg}, {(G*5 + c - 2)*768}", f"s_add_u32 {sT}, {t3 if G else t2}, {c*32768 - 256}"],
           ["s_mov_b32 exec_hi, 0xffff", f"buffer_load_dwordx4 {vL16}, {srd(rWS)}, {sT} offen sc1 lds", "s_mov_b32 exec_hi, -1"]) for G in range(2) for c in range(2, 7)]
    sal, ds, va = half("F", 0)
    for (su, dm), g in zip(la, (4, 8, 12, 16, 20, 28)):
        sal.setdefault(g - 3, []).append(su[0]); sal.setdefault(g - 2, []).append(su[1]); assert g not in ds and g not in va; ds[g] = dm
    E += emit(qk(1, 0) + pv(1, 1), (sal, ds, va))
    a(ex(0, 13)); a(ex(0, 14)); a(ex(0, 15)); a(f"v_cmp_lt_u32 vcc, 31, {vLane}"); a(cv(0, 6)); a(cv(0, 7))
    a("s_waitcnt lgkmcnt(0)")
    vRow, vLa = XV[2].b, XV[2].b + 1
    qr = [Cb(0, 0, 0), Cb(0, 0, 1)]
    E += la[6][0][:1]
    tp = Timeline(); tp.add(pv(1, 0))
    for k, (su, dm) in enumerate(la[6:]):
        tp.force(3*k, su if k else su[1:]); tp.sl[3*k + 1].mem = dm; tp.sl[3*k + 1].lock = True
    g = tp.seq([f"v_and_b32 v{vRow+2}, 31, {vLane}", f"v_mov_b32 v{vRow}, {sGs}", f"v_mov_b32 v{vRow+3}, {sGl}", f"v_cndmask_b32 v{vRow}, v{vRow}, v{vRow+3}, vcc", f"v_lshl_add_u32 v{vRow}, v{vRow}, 5, v{vRow+2}",
                f"v_lshlrev_b32 v{vRow+3}, 4, v{vRow}", f"v_lshrrev_b32 v{vLa}, 5, {vLane}", f"v_mul_u32_u24 v{vLa}, 3840, v{vLa}", f"v_lshl_add_u32 v{vLa}, v{vRow+2}, 4, v{vLa}", f"v_add_u32 v{vLa}, {sStg}, v{vLa}"], 0)
    g = tp.put(f"buffer_load_dwordx4 {qr[0](4)}, v{vRow+3}, {srd(rWS)}, {t1} offen sc1", max(g + 1, 12))
    g = tp.put([f"s_add_u32 {t1}, {t1}, 32768", f"s_lshl_b32 {sFz}, {sGs}, 10", f"s_lshr_b32 {t0}, {sH}, 3"], g + 1)
    g = tp.put(f"buffer_load_dwordx4 {qr[1](4)}, v{vRow+3}, {srd(rWS)}, {t1} offen sc1", g + 1)
    g = tp.put([f"s_lshl_b32 {t0}, {t0}, 7", f"s_add_u32 {sFz}, {sFz}, {t0}", f"s_add_u32 {sFz}, {sFz}, {WS_FL}"], g + 1)
    E += tp.lines()
    sRt, sO9, sZb1, sZx, sT3 = sN, sLastP, sRB, sRA, sR2
    a(f"s_lshr_b32 {t0}, {sWave}, 1"); a(f"s_lshl1_add_u32 {sRt}, {sRb}, {t0}")
    a(f"s_lshl3_add_u32 {sFc}, {sRt}, {sKq}"); a(f"s_lshl_b32 {sFc}, {sFc}, 7"); a(f"s_add_u32 {sFc}, {sFc}, {WS_FL}"); a(f"s_and_b32 {sZx}, {sCt}, {ZR}")
    ldB = f"buffer_load_dword v12, v13, {srd(rWS)}, {sFc} offen sc1"
    a("v_mov_b32 v13, 0"); a("s_nop 0")
    ep = epilogue(1, "SLOW1", "SLOW1_R"); i = ep.index("SLOW1_R:") + 1
    E += ep[:i] + sprinkle(ep[i:], flat(ring_dma("x")) * 2, opt("esp", 9), opt("es0", 0))
    E1 = [f"s_cmp_eq_u32 {sDone}, 0", "s_cbranch_scc1 L_SE2"]
    SE2 = ["L_SE2:"] + SE2 + ["s_branch L_LA"]
    E2 = ["L_LA:"] + stamp(6); a = E2.append
    a(f"v_mov_b32 v5, v{vRow}"); a(f"v_mov_b32 v6, v{vLa}")
    a("s_waitcnt vmcnt(16)")
    for q in range(8): a(f"v_mov_b32 v{16+q}, v{qr[q>>2].b + (q&3)}")
    Kr = lambda w: 32 + 8*w; Xr = lambda w: 96 + 4*w; Vr = lambda w: 128 + 8*w
    for w in range(8):
        o = (16 - 2*w)*16
        a(f"ds_read_b128 v[{Xr(w)}:{Xr(w)+3}], v6 offset:{o + 4*768}"); a(f"ds_read_b128 v[{Kr(w)}:{Kr(w)+3}], v6 offset:{o}"); a(f"ds_read_b128 v[{Kr(w)+4}:{Kr(w)+7}], v6 offset:{o + 768}")
    for w in range(8):
        o = (16 - 2*w)*16
        a(f"ds_read_b128 v[{Vr(w)}:{Vr(w)+3}], v6 offset:{o + 2*768}"); a(f"ds_read_b128 v[{Vr(w)+4}:{Vr(w)+7}], v6 offset:{o + 3*768}")
    E2 += zq(t1) + [f"s_and_b32 {t0}, {sWave}, 1", f"s_lshl_b32 {t0}, {t0}, 10", f"s_add_u32 {t0}, {t0}, {t1}", f"s_sub_u32 {t2}, 63, {sRt}"] + zgrp(sZb, sRt, t0) + zgrp(sZb1, t2, t0)
    E2 += [f"s_add_u32 {sRd}, {sRd}, {(RING - 3)*16384}", f"s_sub_u32 {t0}, {sRd}, {RING*16384}", f"s_cmp_ge_u32 {sRd}, {RING*16384}", f"s_cselect_b32 {sRd}, {t0}, {sRd}"]
    a(f"v_add_u32 v14, 4096, {vL16}"); a(f"v_add_u32 v7, {sRd}, {vL16}")
    a("s_waitcnt lgkmcnt(0)"); a("s_barrier")
    E2 += stamp(12)
    Zf = lambda k, a2: A(4*(2*k + a2)) if k < 32 else V(32 + 4*(2*(k - 32) + a2))
    def zload(k, a2):
        b_, r = (sZb1, sT3) if a2 else (sZb, sT2)
        pre_ = [] if k % 4 else [f"s_xor_b32 {r}, {sZx}, {k >> 2}", f"s_mul_i32 {r}, {r}, {BS}", f"s_add_u32 {r}, {r}, {b_}"] if k < 32 else [f"s_add_u32 {r}, {b_}, {(k >> 2)*BS}"]
        return pre_, f"buffer_load_dwordx4 {Zf(k,a2)(4)}, {'v14' if k & 2 else vL16}, {srd(rWS)}, {r} offen offset:{(k & 1)*2048} sc1 ;@Z{k}_{a2}"
    NZS, NWP, Z0, RA = 0, opt("nwp", 5), opt("z0", 4), 6
    early = []
    for q in range(NWP): early += flat(ring_dma(f"W{5 + q}"))
    if opt("wt", 1):
        c0 = 5 + NWP; nl = 4*(21 - c0)
        E2 += [f"s_mul_i32 {t0}, {sGs}, {nl}", f"v_min_u32 v8, {nl - 1}, {vLane}", f"v_add_u32 v8, {t0}, v8", f"v_min_u32 v8, {32*nl - 25}, v8", "v_lshrrev_b32 v9, 6, v8", "v_and_b32 v8, 63, v8",
               f"v_mul_u32_u24 v9, {BS}, v9", "v_lshl_add_u32 v8, v8, 7, v9", f"s_and_b32 {t0}, {sW4}, 8192", f"s_mul_i32 {t0}, {t0}, {BS // 8192 - 1}", f"s_add_u32 {t0}, {t0}, {sW4}",
               f"s_sub_u32 {sO9}, {sKg}, {t0}", f"s_add_u32 {sO9}, {sO9}, {NWP*RS}"]
        vm_ = [i for i, x in enumerate(early) if x.startswith("buffer_")]
        early.insert(vm_[opt("wtp", 5)] + 1, f"buffer_load_dword v255, v8, {srd(rWS)}, {sO9} offen")
    vm_ = [i for i, x in enumerate(early) if x.startswith("buffer_")]
    early.insert(vm_[-opt("fbl", 6)] + 1, ldB + " ;@fb")
    N1 = opt("n1", 6); LS = opt("ls", 150)
    lg = 24
    d2 = lambda d, x, y, first=False: f"v_dot2_f32_bf16 v{d}, v{x}, v{y}, 0" if first else f"v_dot2c_f32_bf16 v{d}, v{x}, v{y}"
    LA = []; a = LA.append
    a(f"v_and_b32 v9, 0xffff, v{Xr(0)+1}"); a(f"v_and_b32 v11, 0xffff0000, v{Xr(0)+1}")
    for w in range(8): a(d2(lg+w, Xr(w)+2, Xr(0)+3, True))
    for w in range(8): a(d2(lg+w, Xr(w), 9))
    for i in range(8):
        for w in range(8): a(d2(lg+w, 16+i, Kr(w)+i))
    a(f"v_mov_b32 v9, {NEG:#x}"); a(f"v_mul_f32 v11, {f2u(-LOG2E):#x}, v11"); a("v_exp_f32 v11, v11")
    for w in range(1, 8, 2):
        a(f"v_cmp_gt_u32 vcc, {2*w}, v5")
        a(f"v_cmp_gt_u32 s[{sTri[0]}:{sTri[0]+1}], {2*w+2}, v5" if w < 7 else "s_nop 0")
        a("s_nop 0"); a(f"v_cndmask_b32 v{lg+w}, v{lg+w}, v9, vcc")
        if w < 7: a(f"v_cndmask_b32 v{lg+w+1}, v{lg+w+1}, v9, s[{sTri[0]}:{sTri[0]+1}]")
    a(f"v_max3_f32 v10, v{lg}, v{lg+1}, v{lg+2}"); a(f"v_max3_f32 v10, v10, v{lg+3}, v{lg+4}"); a(f"v_max3_f32 v10, v10, v{lg+5}, v{lg+6}"); a(f"v_max_f32 v10, v10, v{lg+7}")
    a(f"s_mov_b32 {t0}, {f2u(LOG2E / math.sqrt(18.0)):#x}")
    for w in range(8): a(f"v_sub_f32 v{lg+w}, v{lg+w}, v10")
    for w in range(8): a(f"v_mul_f32 v{lg+w}, {t0}, v{lg+w}")
    for w in range(8): a(f"v_exp_f32 v{lg+w}, v{lg+w}")
    for w in range(8): a(f"v_cvt_pk_bf16_f32 v{Kr(w)}, v{lg+w}, 0")
    for w in range(8): a(f"v_lshlrev_b32 v{Kr(w)+1}, 16, v{Kr(w)}")
    a(f"v_add_f32 v10, v{Kr(0)+1}, v{Kr(1)+1}")
    for w in range(2, 8): a(f"v_add_f32 v10, v10, v{Kr(w)+1}")
    a("v_fmac_f32 v10, v10, v11"); a("v_rcp_f32 v10, v10")
    ob = 192
    for w in range(8):
        for i in range(8):
            for q in range(2): a(d2(ob+2*i+q, Vr(w)+i, Kr(w)+q, w == 0))
        for q in range(2): a(d2(ob+16+q, Xr(w)+2*q, Kr(w)+1, w == 0))
    a("v_bfe_u32 v9, v5, 5, 2"); a(f"v_mul_u32_u24 v9, {Z_G}, v9"); a("v_lshrrev_b32 v11, 7, v5"); a("v_lshl_add_u32 v9, v11, 22, v9"); a(f"v_and_b32 v11, 1, {vG}"); a("v_lshl_add_u32 v9, v11, 10, v9"); a(f"v_lshl_add_u32 v9, {vN}, 4, v9")
    for i in range(18): a(f"v_mul_f32 v{ob+i}, v10, v{ob+i}")
    for i in range(9): a(f"v_cvt_pk_bf16_f32 v{ob+i}, v{ob+2*i}, v{ob+2*i+1}")
    E2 += sprinkle(LA[:LS], early[:vm_[N1 - 1] + 1], LS // N1) + [f"s_waitcnt vmcnt({N1})", signal(sFz)]
    E2 += sprinkle(LA[LS:], early[vm_[N1 - 1] + 1:], (len(LA) - LS) // (len(vm_) + 1 - N1))
    a = E2.append
    a(f"s_add_u32 {t1}, {t1}, {8*BS}")
    a(f"s_bfe_u32 {t2}, {sH}, {(2 << 16) | 1}"); a(f"s_lshl_b32 {t2}, {t2}, 11"); a(f"s_add_u32 {t2}, {t2}, {t1}")
    a(f"s_and_b32 {t3}, {sH}, 1"); a(f"s_lshl_b32 {t3}, {t3}, 9"); a(f"s_add_u32 {t2}, {t2}, {t3}")
    a(f"s_lshl2_add_u32 {t0}, {sRb}, {sCt}")
    a(f"s_lshl2_add_u32 {sPx}, {t0}, {sWave}"); a(f"s_mul_i32 {sPx}, {sPx}, {PX_S}"); a(f"s_add_u32 {sPx}, {sPx}, {WS_PX}")
    a(f"s_lshr_b32 {sFp}, {t0}, 1"); a(f"s_lshl_b32 {sFp}, {sFp}, 10"); a(f"s_and_b32 {t0}, {t0}, 1"); a(f"s_lshl_b32 {t0}, {t0}, 7"); a(f"s_add_u32 {sFp}, {sFp}, {t0}")
    a(f"s_lshl2_add_u32 {sFp}, {sWave}, {sFp}"); a(f"s_add_u32 {sFp}, {sFp}, {WS_FL + 640}")
    accA = lambda t, a2: V(72 + 4*(2*t + a2)); accC = lambda t, a2: V(128 + 4*(2*t + a2))
    NWB = 8; Wb = lambda f: V(144 + 4*(f % NWB)); IN = lambda i: V(176 + 4*i)
    wread = lambda f: f"ds_read_b128 {Wb(f)(4)}, {'v8' if (f >> 4) & 1 else 'v7'} offset:{(f & 15)*1024} ;@f{f}"
    for f in range(RA): a(wread(f))
    a("v_mov_b32 v10, 0")
    E2 += stamp(7)
    E2 += ["s_waitcnt vmcnt(@fb)", "v_cmp_gt_u32 vcc, 8, v12", f"s_mov_b32 {sSpin}, 0", "s_nop 3", "s_cbranch_vccz L_ZBX",
           "%LATE%", "L_ZBX:"]
    LATE = ["L_ZB:", f"s_sleep {opt('slp', 2)}", ldB, f"s_add_u32 {sSpin}, {sSpin}, 1", "s_waitcnt vmcnt(0)", "v_cmp_gt_u32 vcc, 8, v12", f"s_cmp_gt_u32 {sSpin}, 0x20000", "s_cbranch_scc1 L_ZBX", "s_nop 2", "s_cbranch_vccnz L_ZB"]
    E2 += stamp(8)
    for k in range(Z0):
        for a2 in range(2): E2 += zload(k, a2)[0] + [zload(k, a2)[1]]
    a(f"buffer_store_dwordx4 v[{ob}:{ob+3}], v9, {srd(rWS)}, {t2} offen sc1"); a(f"buffer_store_dwordx4 v[{ob+4}:{ob+7}], v9, {srd(rWS)}, {t2} offen offset:256 sc1")
    a(f"s_bfe_u32 {t3}, {sH}, {(1 << 16) | 2}"); a(f"s_lshl_b32 {t3}, {t3}, 8"); a(f"s_add_u32 {t2}, {t1}, {t3}")
    a(f"s_and_b32 {t3}, {sH}, 3"); a(f"s_lshl2_add_u32 {t2}, {t3}, {t2}"); a(f"s_add_u32 {t2}, {t2}, {BS}")
    a(f"buffer_store_dword v{ob+8}, v9, {srd(rWS)}, {t2} offen sc1 ;@za")
    a("s_waitcnt vmcnt(@Z0_1) lgkmcnt(@f1)")
    t4 = Timeline()
    seq = [(k, t) for k in range(37) for t in ([6, 0, 1, 2, 3] + ([4, 5] if k < K1 else []))]; bB = 2*len(seq)
    seq += [(k, t) for k in range(K1, 37) for t in (4, 5)]; bC = 2*len(seq)
    seq += [(k, t) for k in range(37) for t in (7, 8)]
    t4.add([mfma(accA(t, a2), Wb(f), Zf(k, a2), "0" if k == 0 else None) for f, (k, t) in enumerate(seq) for a2 in range(2)])
    kst = [2*seq.index((k, 6)) for k in range(37)]
    barpos = {c: 32*c - 2*RA - 3 for c in range(2, 21, 2)}
    for c, p in barpos.items():
        if c > 2: t4.force(p - 1, [f"s_waitcnt vmcnt(@W{min(c + 1, 20)})"])
        t4.force(p, ["s_barrier"], lock=True)
    ldA = f"buffer_load_dword v12, v10, {srd(rWS)}, {sFc} offen offset:4 sc1"
    g = t4.put("s_waitcnt vmcnt(@za)", opt("zaw", 56)); t4.put(signal(sFz, 4), g + 1)
    gA = put_check(t4, "CK_ZAA", ldA, "v12", 8, "fa", kst[32] - 130, kst[32] - 84)
    st = lambda blk, sr, off, tag: f"buffer_store_dwordx4 {blk(4)}, {vL16}, {srd(rWS)}, {sr} offen offset:{off} sc1 ;@{tag}"
    ld = lambda blk, sr, off, tag: f"buffer_load_dwordx4 {blk(4)}, {vL16}, {srd(rWS)}, {sr} offen offset:{off} sc1 ;@{tag}"
    dst = [t0, t1, t2]; g = 100
    for d in (1, 2, 3):
        r = dst[d - 1]; g = t4.seq([f"s_add_u32 {r}, {sKq}, {d}", f"s_and_b32 {r}, {r}, 3", f"s_mul_i32 {r}, {r}, 6144", f"s_add_u32 {r}, {r}, {sPx}", f"s_add_u32 {r}, {r}, {(d - 1)*2048}"], g, step=3) + 3
    g = t4.seq([f"s_sub_u32 {t3}, {sWave}, {sKq}", f"s_and_b32 {t3}, {t3}, 3", f"s_lshl_b32 {t3}, {t3}, 10", f"s_add_u32 {t3}, {t3}, {sPx}", f"s_add_u32 {t3}, {t3}, {24576 - 1024}", f"s_add_u32 {sO9}, {sPx}, 24576",
                [f"s_cmp_eq_u32 {sWave}, {sKq}", f"s_cselect_b32 {t3}, {OOB}, {t3}", f"s_cselect_b32 {sO9}, {sO9}, {OOB}"], f"s_mul_i32 {sStg}, {sKq}, 6144", f"s_add_u32 {sPx}, {sPx}, {sStg}", f"s_add_u32 {sStg}, {sPx}, 4096"], g, step=3)
    g = t4.seq(pack(V(228), accA(6, 0), accA(6, 1)), bB - 2, step=1); g = t4.put(st(V(228), t3, 0, "p1"), g + 1)
    for d in (1, 2, 3):
        for a2 in range(2):
            g = t4.seq(pack(accA(2*d - 2, a2), accA(2*d - 2, a2), accA(2*d - 1, a2)), max(g + 1, (bC if d == 3 else bB) + 5), step=1)
            g = t4.put(st(accA(2*d - 2, a2), dst[d - 1], a2*1024, "p2" if d == 3 else "p1"), g + 1)
        if d == 2: g1 = g
    g2 = g
    ld1 = f"buffer_load_dword v12, v10, {srd(rWS)}, {sFp} offen sc1"; ld2 = f"buffer_load_dword v12, v10, {srd(rWS)}, {sFp} offen offset:16 sc1"
    g = t4.put("s_waitcnt vmcnt(@p1)", g1 + opt("pw1", 50)); g1 = t4.put(signal(sFp), g + 1)
    g = t4.put("s_waitcnt vmcnt(@p2)", g2 + opt("pw2", 40)); g2 = t4.put(signal(sFp, 16), g + 1)
    g = put_check(t4, "CK_P1", ld1, "v12", 4, "g1", g1 + opt("pw3", 40), g1 + opt("pw3", 40) + 30)
    for i in range(7): g = t4.put(ld(IN(i), sPx if i < 4 else sO9, (i if i < 4 else i - 4)*1024, "in1"), g + 3)
    gin = g
    t4.put(ld2, max(gin + 1, g2 + 1, len(t4) - opt("pw4", 20)))
    note("P4: bB", bB, "bC", bC, "signals", g1, g2, "inbox loads end", gin, "of", len(t4))
    items = []
    for k in range(37):
        for a2 in range(2):
            if k >= Z0: s_, l_ = zload(k, a2); items.append((kst[k], gA + 1 if k >= 32 else 0, [s_] if s_ else [], l_))
    for c in range(5 + NWP, 21):
        pre_, [(su, dm)] = ring_dma(f"W{c}", c == 20)
        for q, x in enumerate(dm): items.append((barpos[c & ~1] - 29 + 14*(c & 1) + 3*q, barpos[(c - 7) & ~1] + 1 if c >= RING else 0, pre_ + [su] if q == 0 else [], x))
    items.sort(key=lambda x: x[0])
    pace = opt("vend", 560) / len(items); g = 0
    for n_, (dl, lo, su, op) in enumerate(items):
        lo = max(lo, g + 3, min(int(n_ * pace) + 2, dl - opt("zl", 60)))
        for x in su: lo = max(lo, t4.put(x, max(g + 1, lo - 2)) + 1); g = lo - 1
        g = t4.put(op, lo); assert g < dl - 16, (n_, g, dl, op)
    note("P4: last load at", g, "pace", round(pace, 2))
    rpos = {f: -99 for f in range(RA)}; g = -1
    for f in range(RA, 333):
        c = (f >> 4) & ~1
        lo = max(2*f - 2*RA - 2, 2*(f - NWB) + 1, barpos[c] + 1 if c >= 2 else 0)
        try: g = t4.put(wread(f), max(g + 1, lo), 2*f - 8)
        except RuntimeError: g = t4.put(wread(f), max(g, lo), 2*f - 5)
        rpos[f] = g
    for f in range(2, 333, 2): t4.put_back(f"s_waitcnt lgkmcnt(@f{min(f + 1, 332)})", 2*f - 1, max(rpos[min(f + 1, 332)] + 1, 0))
    for k in range(1, 37): t4.put_back(f"s_waitcnt vmcnt(@Z{k}_0,@Z{k}_1)", kst[k] - 1, kst[k] - 8)
    for c in range(1, 21):
        w_ = wrap(sRd, 0); g = t4.put(w_[0], rpos[16*c - 17] + 1 if c > 1 else 0); g = t4.put(w_[1:], g)
        g = t4.put(f"v_add_u32 {'v8' if c & 1 else 'v7'}, {sRd}, {vL16}", g); assert g < rpos[16*c], (c, g); assert c == 20 or g <= rpos[16*c - 1]
    g = 200
    t4.seq(["v_mov_b32 v13, 0xffff0000", f"v_mul_u32_u24 v5, 1152, {vN}", f"v_lshl_add_u32 v6, {vG}, 3, v5", f"v_and_b32 v9, 1, {vG}", "v_lshl_add_u32 v5, v9, 5, v5", f"v_lshrrev_b32 v9, 1, {vG}", "v_lshl_add_u32 v5, v9, 4, v5"], g + 1)
    def unpack(src, d0, d1):
        o = []
        for q in range(4): o += [f"v_lshlrev_b32 v{16+2*q}, 16, v{src.b+q}", f"v_and_b32 v{17+2*q}, v13, v{src.b+q}"]
        for q in range(4): d = (d0 if q < 2 else d1).b + 2*(q & 1); o.append(f"v_pk_add_f32 v[{d}:{d+1}], v[{d}:{d+1}], v[{16+2*q}:{17+2*q}]")
        return o
    if STAMPS:
        for q, p in enumerate((260, bC)): t4.sl[p].va = t4.sl[p].va + stamp(13 + q)
    E2 += t4.lines()
    E2 += stamp(9)
    E2 += line_check("CK_P2", ld2, "v12", 4, "s_waitcnt vmcnt(0)")
    for a2 in range(2): a(ld(IN(7 + a2), sStg, a2*1024, f"in{7 + a2}"))
    a(f"s_and_b32 {t2}, {sWave}, 1"); a(f"s_mul_i32 {t2}, {t2}, {16*1152}"); a(f"s_mul_i32 {t3}, {sCt}, 288"); a(f"s_add_u32 {t2}, {t2}, {t3}"); a(f"s_add_u32 {t2}, {t2}, 256")
    a(f"s_sub_u32 {t3}, 63, {sRt}"); a(f"s_mul_i32 {t3}, {t3}, {32*1152}"); a(f"s_add_u32 {t3}, {t3}, {t2}"); a(f"s_mul_i32 {t0}, {sRt}, {32*1152}"); a(f"s_add_u32 {t2}, {t2}, {t0}")
    a(f"s_lshl_b32 {t1}, {sKq}, 6"); a(f"s_sub_u32 {t1}, {t1}, 256"); a(f"s_add_u32 {t0}, {t2}, {t1}"); a(f"s_add_u32 {t1}, {t3}, {t1}")
    for i in range(4): E2 += unpack(IN(i), accC(0, i & 1), accC(1, i & 1))
    a(f"s_cmp_lg_u32 {sWave}, {sKq}"); a("s_cbranch_scc1 L_NO9")
    for q in range(3): E2 += unpack(IN(4 + q), accA(6, 0), accA(6, 1))
    E2 += pack(V(228), accA(6, 0), accA(6, 1))
    a("s_waitcnt vmcnt(0)")
    a(f"buffer_store_dwordx2 v[228:229], v6, {srd(rO)}, {t2} offen{OF}"); a(f"buffer_store_dwordx2 v[230:231], v6, {srd(rO)}, {t3} offen{OF}")
    a("s_branch L_9D"); a("L_NO9:"); a("s_waitcnt vmcnt(0)"); a("L_9D:")
    for a2 in range(2):
        d = accC(0, a2)
        E2 += unpack(IN(7 + a2), d, accC(1, a2)) + pack(d, d, accC(1, a2)) + ["s_nop 1", f"v_permlane16_swap_b32 v{d.b}, v{d.b+2}", f"v_permlane16_swap_b32 v{d.b+1}, v{d.b+3}"]
        a(f"buffer_store_dwordx4 {d(4)}, v5, {srd(rO)}, {t1 if a2 else t0} offen{OF}")
    E2 += stamp_out(10)
    a("L_END:"); a("s_endpgm")
    sp = lambda x: "\n".join(x).split("\n")
    E = sp(E); E2 = sp(E2); i = E2.index("%LATE%")
    Ea, Eb = resolve_waits(E2[:i] + E2[i+1:]), resolve_waits(E2[:i] + LATE + E2[i+1:])
    vmn = lambda l: int(re.search(r"vmcnt\((\d+)\)", l).group(1))
    E2 = Eb[:i + len(LATE)] + [(x if x == y or vmn(x) < vmn(y) else y) for x, y in zip(Ea[i:], Eb[i + len(LATE):])]
    E2early = E2[:i] + E2[i + len(LATE):]
    if "drop4" in OPT:
        ks = OPT["drop4"].split("+"); i0 = E2.index("L_ZBX:"); o = E2[:i0]
        for l in E2[i0:]:
            if "z" in ks and "@Z" in l: continue
            if "w" in ks and "@W" in l: continue
            if "ds" in ks and l.startswith("ds_read"): continue
            if "lw" in ks and l.startswith("s_waitcnt lgkm") and "(0)" not in l: continue
            if "vw" in ks and l.startswith("s_waitcnt") and "vmcnt" in l and "(0)" not in l: l = re.sub(r"vmcnt\(\d+\)", "vmcnt(63)", l)
            if "bar" in ks and l == "s_barrier": continue
            if "ck" in ks and l.startswith("s_cbranch_vccnz"): continue
            o.append(l)
        E2 = o
    check_scc(pre); check_scc(E); check_scc(E2)
    code = pre + D + X0 + EV[0] + EV[1] + EV[2] + X1 + X2 + X3 + X4 + SE + X5 + Sg + X6 + E + E1 + E2 + SE2 + STUBS + SL[0] + SL[1]
    toD, toS = X1[:4], X1 + X3
    traces = [pre + D*2 + X0 + EV[0] + toD + D*2 + X0 + EV[1] + toD + D*2 + X0[:5] + EV[2] + X1 + X2 + D + X0[:3] + toS + Sg + X6[:2] + X0[:3] + toS + X4 + SE + X5 + Sg + Sg + X6 + E + E1 + E2,
              pre + toS + Sg*2 + X6[:2] + X0 + EV[0] + toS + Sg + X6[:2] + X0 + EV[1] + toS + X4 + SE + X5 + Sg*2 + X6[:2] + X0[:5] + EV[2] + toS + Sg + X6 + X4 + SE + X5 + E + E1 + SE2 + E2,
              pre + X1 + X2 + D + X0[:3] + toS + X4 + SE + X5 + E + E1 + E2]
    def splice(lines, nm, sl):
        i = lines.index(f"{nm}_R:"); iT, iA, iN, iE = (sl.index(f"{nm}_{c}:") for c in "TANE")
        return lines[:i] + sl[:iA] + sl[iN:iN+5] + sl[iT:iA] + sl[iN:iE] + sl[sl.index(f"{nm}_P:"):iA-9] + sl[iA:iN+5] + sl[iT:iA-9] + sl[iA:iN+7] + sl[iE:] + lines[i:]
    traces.append(X6 + splice(E, "SLOW1", SL[1]) + E1 + splice(SE2, "SLOW0", SL[0]) + E2)
    traces.append(E2early)
    return code, traces

if __name__ == "__main__":
    path = [x for x in sys.argv[1:] if not x.startswith("--")]
    path = path[0] if path else "gated_mix__sliding_local_dilated__compressed_kv_cla__prompt.s"
    code, traces = build()
    bad = sorted(set(p.split("] ", 1)[1] for t in traces for p in verify(t, "k")))
    for p in bad[:40]: print(p)
    out = ["; gated mix: local dilated attention + compressed-KV causal attention, one persistent launch (generated by gen/gen4.py)",
           f"; @launch grid=(256,1,1) block=(256,1,1) lds={LDS_BYTES}", HEADER] + kernel_open(NAME) + [l.split(" ;@")[0] for l in code]
    out += ['.section .rodata,"a"', ".p2align 6", kernel_desc(NAME)]
    open(path, "w").write("\n".join(out) + "\n")
    print("hazard problems:", len(bad), "lines:", len(code))
```
